```python
import torch

def _softmax(x, axis=-1):
    return torch.softmax(x, dim=axis)
def _gelu(x):
    return torch.nn.functional.gelu(x, approximate="tanh")
def _silu(x):
    return torch.nn.functional.silu(x)
def _sigmoid(x):
    return torch.sigmoid(x)
def _layernorm(x, axis=-1, eps=1e-5):
    m = x.mean(dim=axis, keepdim=True)
    v = x.var(dim=axis, keepdim=True, unbiased=False)
    return (x - m) / torch.sqrt(v + eps)
def _scatter_add(tgt, idx, src, axis=0):
    return tgt.clone().index_add_(axis, idx, src)
def _segment_sum(src, seg, n):
    out = torch.zeros((n,) + src.shape[1:], dtype=src.dtype)
    return out.index_add_(0, seg, src)
def _pad(x, pw):
    flat = tuple(v for pair in reversed(pw) for v in pair)
    return torch.nn.functional.pad(x, flat)

kernel_name = 'recurrent_scan__gqa_block_cached__mixer_channel_mlp__decode'

def setup_inputs():

    _w = (lambda a: (lambda t: t.to(torch.bfloat16) if t.is_floating_point() else t)(torch.as_tensor(a)))
    def _A_setup():
        B, Sq, D = 2, 1, 512
        Hq, Hkv, Sk, Dh = 32, 8, 32768, 128
        assert Hq % Hkv == 0, (Hq, Hkv)
        return {
            "x": _w((lambda *s: torch.randn(*s, dtype=torch.bfloat16) * 0.1)(B, Sq, D)),
            "k_cache": _w((lambda *s: torch.randn(*s, dtype=torch.bfloat16) * 0.8)(B, Hkv, Sk, Dh)),
            "v_cache": _w((lambda *s: torch.randn(*s, dtype=torch.bfloat16) * 3.2)(B, Hkv, Sk, Dh)),
            "wq": _w((lambda *s: torch.randn(*s, dtype=torch.bfloat16) * 0.8)(D, Hq * Dh) * (D ** -0.5)),
            "wo": _w((lambda *s: torch.randn(*s, dtype=torch.bfloat16) * 3.2)(Hq * Dh, D) * ((Hq * Dh) ** -0.5)),
        }
    _A_in = _A_setup()

    def _B_setup():
        B, S, D, F = 2, 1, 512, 1792
        return {
            "x": _w((lambda *s: torch.randn(*s, dtype=torch.bfloat16) * 0.1)(B, S, D)),
            "w1": _w((lambda *s: torch.randn(*s, dtype=torch.bfloat16) * 3.2)(D, F) * (D ** -0.5)),
            "b1": _w((lambda *s: torch.randn(*s, dtype=torch.bfloat16) * 3.2)(F)),
            "w2": _w((lambda *s: torch.randn(*s, dtype=torch.bfloat16) * 3.2)(F, D) * (F ** -0.5)),
            "b2": _w((lambda *s: torch.randn(*s, dtype=torch.bfloat16) * 3.2)(D)),
        }
    _B_in = _B_setup()

    return {
        "A_x": _A_in["x"],
        "A_k_cache": _A_in["k_cache"],
        "A_v_cache": _A_in["v_cache"],
        "A_wq": _A_in["wq"],
        "A_wo": _A_in["wo"],
        "B_x": _B_in["x"],
        "B_w1": _B_in["w1"],
        "B_b1": _B_in["b1"],
        "B_w2": _B_in["w2"],
        "B_b2": _B_in["b2"],
    }

def reference(A_x, A_k_cache, A_v_cache, A_wq, A_wo, B_x, B_w1, B_b1, B_w2, B_b2):
    def _A_ref(x, k_cache, v_cache, wq, wo):
        B, Sq, D = x.shape
        Hq, Dh = 32, 128
        Hkv = k_cache.shape[1]
        rep = Hq // Hkv
        q = (lambda x, *d: x.permute(*d))((x @ wq).reshape(B, Sq, Hq, Dh), 0, 2, 1, 3)
        k = (lambda x, n, axis: torch.repeat_interleave(x, n, dim=axis))(k_cache, rep, axis=1)
        v = (lambda x, n, axis: torch.repeat_interleave(x, n, dim=axis))(v_cache, rep, axis=1)
        scores = torch.einsum("bhqd,bhkd->bhqk", q, k) * (Dh ** -0.5)
        p = _softmax(scores, axis=-1)
        o = torch.einsum("bhqk,bhkd->bhqd", p, v)
        return (lambda x, *d: x.permute(*d))(o, 0, 2, 1, 3).reshape(B, Sq, Hq * Dh) @ wo

    def _B_ref(x, w1, b1, w2, b2):
        y = _layernorm(x, axis=-1)
        h = _gelu(torch.einsum("bsd,df->bsf", y, w1) + b1)
        return torch.einsum("bsf,fd->bsd", h, w2) + b2

    x = A_x
    xn = _layernorm(x, axis=-1)
    s = _A_ref(xn, A_k_cache, A_v_cache, A_wq, A_wo)
    g = _silu(_B_ref(xn, B_w1, B_b1, B_w2, B_b2))
    return x + s * g
```

```python
import re

TRANS = ("v_exp_f32", "v_log_f32", "v_rcp_f32", "v_rsq_f32", "v_sqrt_f32", "v_sin_f32", "v_cos_f32")
_reg = re.compile(r"\b([vs])\[(\d+):(\d+)\]|\b([vs])(\d+)\b|\b(vcc|exec|m0)(_lo|_hi)?\b")


def regs(op):
    out = set()
    for m in _reg.finditer(op):
        if m.group(1):
            for i in range(int(m.group(2)), int(m.group(3)) + 1):
                out.add(m.group(1) + str(i))
        elif m.group(4):
            out.add(m.group(4) + m.group(5))
        else:
            out.add(m.group(6))
    return out


def V(x):
    return {r for r in x if r[0] == 'v' and r != 'vcc'}


def S(x):
    return {r for r in x if r[0] == 's' or r in ('vcc', 'exec', 'm0')}


class Asm:
    def __init__(self):
        self.lines = []
        self.hist = []
        self.pos = 0
        self.vm = []
        self.nnop = 0

    def raw(self, t):
        self.lines.append(t)

    def c(self, t):
        self.lines.append("  ; " + t)

    def _nop(self, n):
        while n > 0:
            k = min(n, 16)
            self.lines.append(f"  s_nop {k-1}")
            self.pos += k
            self.nnop += k
            n -= k

    def flush(self):
        need = 0
        for r in self.hist:
            mx = 0
            if r['mfma_d']: mx = max(mx, 8)
            if r['vw']: mx = max(mx, 2)
            if r['sw']: mx = max(mx, 5)
            if r['st']: mx = max(mx, 2)
            need = max(need, mx - (self.pos - r['pos'] - 1))
        return need

    def label(self, name, flush=True):
        if flush:
            self._nop(self.flush())
            self.hist = []
        self.lines.append(name + ":")

    def I(self, text, flush=True, vmid=None):
        text = text.strip()
        body = text.split(";")[0].strip()
        parts = body.split(None, 1)
        mn = parts[0]
        rest = parts[1] if len(parts) > 1 else ""
        ops = [o.strip() for o in re.split(r",(?![^\[]*\])", rest)] if rest else []
        rec = dict(pos=0, vw=set(), sw=set(), trans=False, mfma_d=set(), mfma_c=set(), st=set(), execw=False, mfma_dt=None)
        need = 0

        def chk(cond, n):
            nonlocal need
            for r in self.hist:
                if cond(r):
                    need = max(need, n - (self.pos - r['pos'] - 1))

        if mn.startswith("s_cbranch") or mn == "s_branch" or mn == "s_endpgm" or mn == "s_barrier":
            if flush and mn not in ("s_endpgm", "s_barrier"):
                self._nop(max(0, self.flush() - 1))
            self.lines.append("  " + text)
            self.pos += 1
            if mn == "s_branch" or mn == "s_endpgm":
                self.hist = []
            return
        if mn == "s_nop":
            self.lines.append("  " + text)
            self.pos += int(ops[0]) + 1
            return
        if mn.startswith("v_mfma"):
            d, a, b, cc = regs(ops[0]), regs(ops[1]), regs(ops[2]), regs(ops[3])
            rd = V(a | b | cc)
            chk(lambda r: r['vw'] & rd, 2)
            chk(lambda r: r['execw'], 4)
            chk(lambda r: r['mfma_d'] & V(a | b), 8)
            chk(lambda r: (r['mfma_d'] & V(cc)) and r['mfma_d'] != V(cc), 6)
            chk(lambda r: (r['mfma_d'] & V(d)) and not (r['mfma_d'] == V(cc) == V(d)), 6)
            chk(lambda r: r['st'] & V(d), 2)
            rec['mfma_d'] = V(d)
            rec['mfma_c'] = V(cc)
        elif mn.startswith("v_"):
            dpp = any(k in body for k in ("quad_perm", "row_", "wave_"))
            perml = mn.startswith("v_permlane")
            first = ops[0].split()[0] if ops else ""
            dst = regs(first)
            src = set()
            for o in ops[1:]:
                src |= regs(o)
            if perml:
                dst = regs(ops[0]) | regs(ops[1])
                src = set(dst)
            if mn.startswith("v_fmac") or mn.startswith("v_pk_fmac") or dpp:
                src |= dst
            if mn.startswith("v_cmpx"):
                dst |= {'exec'}
                rec['execw'] = True
            rdv, rds = V(src), S(src)
            wv = V(dst)
            if dpp:
                chk(lambda r: r['vw'] & rdv, 2)
                chk(lambda r: r['execw'], 5)
            if perml:
                chk(lambda r: r['vw'] & rdv, 2)
                chk(lambda r: r['execw'], 4)
            if mn.startswith("v_readlane") or mn.startswith("v_readfirstlane"):
                chk(lambda r: r['vw'] & rdv, 1)
                chk(lambda r: r['execw'], 4)
            chk(lambda r: r['trans'] and (r['vw'] & rdv), 1)
            chk(lambda r: (r['sw'] - ({'exec'} if 'exec' not in rds else set())) & rds, 2)
            chk(lambda r: r['mfma_d'] & (rdv | wv), 8)
            chk(lambda r: r['mfma_c'] & wv, 3)
            chk(lambda r: r['st'] & wv, 2)
            rec['vw'] = wv
            rec['sw'] = S(dst)
            rec['trans'] = mn.split("_e")[0] in TRANS or mn in TRANS or mn.replace('_dpp', '') in TRANS
        elif mn.startswith("buffer_") or mn.startswith("global_") or mn.startswith("ds_"):
            allr = set()
            for o in ops:
                allr |= regs(o)
            chk(lambda r: r['mfma_d'] & V(allr), 8)
            chk(lambda r: (r['sw'] - {'exec', 'vcc'}) & S(allr), 5)
            isload = ("load" in mn) or ("read" in mn)
            if isload:
                chk(lambda r: r['st'] & V(regs(ops[0])), 1)
            if ("store" in mn) and (mn.endswith("x4") or mn.endswith("x3")):
                rec['st'] = V(regs(ops[0] if mn.startswith("buffer_") else ops[1]))
            if not mn.startswith("ds_"):
                self.vm.append(vmid)
        else:
            pass
        self._nop(need)
        rec['pos'] = self.pos
        self.lines.append("  " + text)
        self.pos += 1
        self.hist.append(rec)
        self.hist = [r for r in self.hist if self.pos - r['pos'] <= 10]

    def vm_reset(self, lst=()):
        self.vm = list(lst)

    def vm_wait(self, vmid):
        idx = max(i for i, x in enumerate(self.vm) if x == vmid)
        n = len(self.vm) - 1 - idx
        assert n <= 63
        self.I(f"s_waitcnt vmcnt({n})")
        self.vm = self.vm[idx + 1:]

    def vm_all(self):
        self.I("s_waitcnt vmcnt(0)")
        self.vm = []

    def text(self):
        return "\n".join(self.lines) + "\n"
```

```python
import sys, struct, math
sys.path.insert(0, "exp")
from asmlib import Asm

NAME = "recurrent_scan__gqa_block_cached__mixer_channel_mlp__decode_kernel"
REF = "recurrent_scan__gqa_block_cached__mixer_channel_mlp__decode.s.ref"


def f32(x):
    return "0x%08x" % struct.unpack("<I", struct.pack("<f", x))[0]


QP = 0x10000
HP = 0xA0000
O1 = 0x100000
ML = 0x280000
O2 = 0x300000
OM = 0x400000
TS = 0x700000
WSSZ = 0x800000
L_Q = 0
L_OL = 1024
L_ML = 9216
L_RL = 9728
L_HL = 12800
L_FL = 13312
LOG2E = 1.4426950408889634
DPPF = "row_mask:0xf bank_mask:0xf"
NST = 16


def gen(prof=False, ntkv="nt", budget=20000, SO1=1024, SO2=2048, drys=True, dryt=True,
        slp1=0, slp2=0, slpq=0, qd=32, pace=12):
    a = Asm()
    I = a.I
    hdr = [l for l in open(REF).read().split("\n") if l.startswith(";") and "@launch" not in l]
    for l in hdr:
        a.raw(l)
    a.raw("; @launch grid=(256,1,1) block=(512,1,1) lds=16384")
    a.raw('.amdgcn_target "amdgcn-amd-amdhsa--gfx950"')
    a.raw(".text")
    a.raw(f".globl {NAME}")
    a.raw(".p2align 8")
    a.raw(f".type {NAME},@function")
    a.raw(f"{NAME}:")

    def stamp(i):
        if prof:
            I(f"s_memrealtime s[{64+2*i}:{65+2*i}]")

    def stamps_out(wavereg):
        if not prof:
            return
        I("s_mov_b64 exec, 1")
        I("s_lshl_b32 s30, s2, 3")
        I(f"s_add_u32 s30, s30, {wavereg}")
        I("s_lshl_b32 s30, s30, 7")
        I(f"s_add_u32 s30, s30, {TS}")
        I("s_waitcnt lgkmcnt(0)")
        for i in range(2 * NST):
            I(f"v_mov_b32 v{64+i}, s{64+i}")
        I("v_mov_b32 v100, 0")
        for i in range(NST // 2):
            I(f"buffer_store_dwordx4 v[{64+4*i}:{67+4*i}], v100, s[12:15], s30 offen offset:{16*i}")

    def tagcalc(r=21):
        I(f"s_mul_i32 s{r}, s{r}, 0x9E3779B1")
        I(f"s_add_u32 s{r}, s{r}, 0x7F4A7C15")

    skipid = [0]

    def barrier():
        k = skipid[0]; skipid[0] += 1
        I(f"s_cbranch_execz L_sk{k}", flush=False)
        I("s_barrier")
        a.label(f"L_sk{k}", flush=False)

    def lanebits():
        I("v_bfe_u32 v1, v0, 3, 1")
        I("v_lshrrev_b32 v2, 4, v0")
        I("v_and_b32 v3, 15, v0")

    def masks():
        I("v_and_b32 v8, 1, v0")
        I("v_bfe_u32 v9, v0, 1, 2")
        I("v_lshlrev_b32 v8, 4, v8")
        I("v_mov_b32 v10, 0xffff")
        I("v_cmp_eq_u32 s[56:57], 0, v9")
        I("v_cmp_eq_u32 s[58:59], 1, v9")
        I("v_cmp_eq_u32 s[62:63], 2, v9")
        I("v_cmp_eq_u32 vcc, 3, v9")
        I("v_lshlrev_b32 v8, v8, v10")
        I("v_cndmask_b32 v4, 0, v8, s[56:57]")
        I("v_cndmask_b32 v5, 0, v8, s[58:59]")
        I("v_cndmask_b32 v6, 0, v8, s[62:63]")
        I("v_cndmask_b32 v7, 0, v8, vcc")

    I("s_cmp_ge_u32 s2, 0x100")
    I("s_cbranch_scc1 L_exit")
    I("s_load_dwordx16 s[32:47], s[0:1], 0")
    I("s_load_dwordx2 s[12:13], s[0:1], 96")
    I("s_load_dwordx8 s[48:55], s[0:1], 64")
    if prof:
        for i in range(2 * NST):
            I(f"s_mov_b32 s{64+i}, 0")
    stamp(0)
    I("v_lshrrev_b32 v1, 6, v0")
    I("v_and_b32 v0, 63, v0")
    I("v_readfirstlane_b32 s3, v1")
    I("s_and_b32 s20, s2, 7")
    I("s_lshl_b32 s20, s20, 5")
    I("s_lshr_b32 s25, s2, 3")
    I("s_add_u32 s20, s20, s25")
    I(f"s_mov_b32 s14, {WSSZ}")
    I("s_mov_b32 s15, 0x00020000")
    I("s_mov_b32 s7, 0x00020000")
    I("s_mov_b32 s11, 0x00020000")
    I("s_sub_u32 s24, s3, 4")
    I(f"s_cmp_ge_u32 s24, {3 if drys else 4}")
    I("s_cbranch_scc1 L_stream")
    I("s_setprio 3")
    I("s_cmp_eq_u32 s3, 4")
    I("s_cbranch_scc1 L_h0a")
    I("v_mov_b32 v8, 0")
    I(f"v_mov_b32 v9, {L_FL}")
    I("ds_write_b32 v9, v8")
    I("s_waitcnt lgkmcnt(0)")
    I("s_barrier")
    I("s_branch L_hinit")
    a.label("L_h0a")
    lanebits()
    I("v_and_b32 v12, 7, v0")
    I("v_lshl_or_b32 v12, v2, 3, v12")
    I("v_lshlrev_b32 v12, 5, v12")
    I("v_lshl_or_b32 v12, v1, 10, v12")
    I("v_lshlrev_b32 v13, 5, v2")
    I("v_lshl_or_b32 v13, v1, 10, v13")
    I("v_lshlrev_b32 v14, 4, v3")
    I("v_lshl_or_b32 v14, v2, 17, v14")
    I("s_and_b32 s24, s2, 7")
    I("s_lshl_b32 s26, s24, 19")
    I("s_lshl_b32 s27, s25, 8")
    I("s_add_u32 s26, s26, s27")
    I("s_lshl_b32 s27, s24, 7")
    I("s_mov_b32 s6, 2048")
    I(f"s_mov_b32 s10, {63*8192+256}")
    I("s_mov_b32 s28, 0")
    I("s_waitcnt lgkmcnt(0)")
    stamp(8)
    I("s_mov_b32 s4, s32")
    I("s_mov_b32 s5, s33")
    I("s_add_u32 s8, s38, s26")
    I("s_addc_u32 s9, s39, 0")
    a.vm_reset()
    I("buffer_load_dwordx4 v[32:35], v12, s[4:7], 0 offen", vmid="x")
    I("buffer_load_dwordx4 v[36:39], v12, s[4:7], 0 offen offset:16", vmid="x")
    I("buffer_load_dwordx4 v[40:43], v13, s[4:7], s27 offen", vmid="xa")
    I("buffer_load_dwordx4 v[44:47], v13, s[4:7], s27 offen offset:16", vmid="xa")
    for t in range(16):
        I(f"buffer_load_dwordx4 v[{64+4*t}:{67+4*t}], v14, s[8:11], s28 offen nt", vmid=f"wq{t}")
        if t < 15:
            I("s_add_u32 s28, s28, 0x2000")
    I("s_barrier")
    I("s_load_dword s31, s[12:13], 0")
    I("s_branch L_h0b")
    vm_h0 = list(a.vm)

    a.label("L_stream")
    a.c("stream wave")
    I("s_lshl_b32 s24, s3, 12")
    I("v_and_b32 v2, 3, v0")
    I("v_lshlrev_b32 v2, 10, v2")
    I("v_bfe_u32 v1, v0, 2, 2")
    I("v_lshl_or_b32 v2, v1, 8, v2")
    I("v_lshrrev_b32 v1, 4, v0")
    I("v_lshl_or_b32 v2, v1, 4, v2")
    I("v_add_u32 v2, s24, v2")
    I("v_lshl_add_u32 v3, v0, 4, s24")
    I("s_lshl_b32 s29, s20, 19")
    I("s_mov_b32 s6, 0x80000")
    I("s_mov_b32 s10, 0x80000")
    I("s_mov_b32 s23, 0")
    I("s_cmp_eq_u32 s3, 7")
    I("s_cselect_b64 exec, 0, -1")
    def kreg(s, c): return f"v[{64+32*s+4*c}:{67+32*s+4*c}]"
    def vreg(s, r): return f"v[{80+32*s+4*r}:{83+32*s+4*r}]"

    def issueK(s, sk=True):
        k = skipid[0]; skipid[0] += 1
        if drys and sk:
            I(f"s_cbranch_execz L_sk{k}", flush=False)
        for c in range(4):
            I(f"buffer_load_dwordx4 {kreg(s, c)}, v2, s[4:7], s23 offen offset:{64*c} {ntkv}")
        if drys and sk:
            a.label(f"L_sk{k}", flush=False)

    def issueV(s, sk=True):
        k = skipid[0]; skipid[0] += 1
        if drys and sk:
            I(f"s_cbranch_execz L_sk{k}", flush=False)
        for r in range(4):
            I(f"buffer_load_dwordx4 {vreg(s, r)}, v3, s[8:11], s23 offen offset:{1024*r} {ntkv}")
        if drys and sk:
            a.label(f"L_sk{k}", flush=False)
        I("s_add_u32 s23, s23, 0x4000")

    for r in (36, 37, 40, 41, 44, 45, 48, 49, 52, 53, 25, 28, 29, 30, 31, 32, 33, 34, 35):
        I(f"v_mov_b32 v{r}, 0")
    I("v_mov_b32 v24, 0xff7fffff")
    I(f"s_mov_b32 s25, {f32(128 ** -0.5 * LOG2E)}")
    I("v_and_b32 v26, 1, v0")
    I("v_cmp_eq_u32 vcc, 1, v26")
    I("v_mov_b32 v54, 0x0c0c0100")
    I("v_mov_b32 v27, 0x01000c0c")
    I("v_cndmask_b32 v54, v54, v27, vcc")
    I("v_mov_b32 v55, 0x0c0c0302")
    I("v_mov_b32 v27, 0x03020c0c")
    I("v_cndmask_b32 v55, v55, v27, vcc")
    I("v_and_b32 v26, 2, v0")
    I("v_cmp_eq_u32 vcc, 2, v26")
    I("v_mov_b32 v27, 0x0c0c0c0c")
    I("v_bfe_u32 v26, v0, 2, 2")
    I("v_cndmask_b32 v56, v27, v54, vcc")
    I("v_cndmask_b32 v57, v27, v55, vcc")
    I("v_cndmask_b32 v54, v54, v27, vcc")
    I("v_cndmask_b32 v55, v55, v27, vcc")
    I("v_lshrrev_b32 v27, 4, v0")
    I("v_lshlrev_b32 v62, 8, v26")
    I("v_lshl_or_b32 v62, v27, 4, v62")
    I("v_lshlrev_b32 v63, 4, v0")
    I("s_lshl_b32 s24, s3, 9")
    I(f"s_add_u32 s24, s24, {L_OL}")
    I("v_lshl_add_u32 v59, v0, 3, s24")
    I("s_lshl_b32 s24, s3, 3")
    I(f"s_add_u32 s24, s24, {L_ML}")
    I("v_lshl_add_u32 v1, v26, 5, s24")
    I("s_lshl_b32 s24, s3, 11")
    I(f"s_add_u32 s24, s24, {L_OL}")
    I("v_and_b32 v0, 15, v0")
    I("v_lshlrev_b32 v0, 5, v0")
    I("v_lshl_or_b32 v0, v27, 9, v0")
    I("v_add_u32 v0, s24, v0")
    I("s_lshr_b32 s24, s20, 4")
    I("s_lshl_b32 s24, s24, 2")
    I("s_add_u32 s24, s24, s3")
    I("s_lshl_b32 s24, s24, 4")
    I("s_and_b32 s26, s20, 15")
    I("s_add_u32 s24, s24, s26")
    I(f"s_mul_i32 s27, s24, {SO1}")
    I(f"s_add_u32 s27, s27, {O1}")
    I("s_lshl_b32 s28, s24, 4")
    I(f"s_add_u32 s28, s28, {ML}")
    I("s_waitcnt lgkmcnt(0)")
    I("s_add_u32 s4, s34, s29")
    I("s_addc_u32 s5, s35, 0")
    I("s_add_u32 s8, s36, s29")
    I("s_addc_u32 s9, s37, 0")

    I("s_load_dword s21, s[12:13], 0")
    I("s_barrier")
    if drys:
        I("s_cbranch_execz L_pro", flush=False)
    issueK(0, False); issueV(0, False)
    stamp(6)
    issueK(1, False); issueV(1, False)
    stamp(7)
    for s in range(2, 6):
        I(f"s_waitcnt vmcnt({pace})")
        issueK(s, False)
        I(f"s_waitcnt vmcnt({pace})")
        issueV(s, False)
    I("s_waitcnt lgkmcnt(0)")
    tagcalc()
    stamp(1)
    I("s_barrier")
    stamp(2)
    a.label("L_pro", flush=False)
    for c in range(4):
        I(f"ds_read_b128 v[{4+4*c}:{7+4*c}], v62 offset:{L_Q + 64*c}")
    I("s_cmp_eq_u32 s3, 7")
    I("s_cselect_b32 s26, 1, 8")
    I("s_waitcnt lgkmcnt(0)")

    def proc(s, wk=None, wv=None, iss=None, vearly=True):
        a.c(f"unit in slot {s}")
        if wk is not None:
            I(f"s_waitcnt vmcnt({wk})")
        for c in range(4):
            I(f"v_mfma_f32_16x16x32_bf16 v[20:23], {kreg(s, c)}, v[{4+4*c}:{7+4*c}], {'0' if c == 0 else 'v[20:23]'}")
        if iss is not None:
            issueK(iss)
        I("v_max3_f32 v26, v20, v21, v22")
        I("v_max_f32 v26, v26, v23")
        I("v_mov_b32 v27, v26")
        I("v_permlane32_swap_b32 v26, v27")
        I("v_max_f32 v26, v26, v27")
        I("v_mov_b32 v27, v26")
        I("v_permlane16_swap_b32 v26, v27")
        I("v_max_f32 v26, v26, v27")
        I("v_mul_f32 v26, s25, v26")
        I("v_max_f32 v26, v24, v26")
        I("v_sub_f32 v62, v24, v26")
        for r in range(4):
            I(f"v_fma_f32 v{20+r}, v{20+r}, s25, -v26")
        I("v_exp_f32 v62, v62")
        I("v_exp_f32 v20, v20")
        I("v_exp_f32 v21, v21")
        I("v_mov_b32_dpp v58, v62 row_newbcast:0 row_mask:0x1 bank_mask:0xf")
        I("v_exp_f32 v22, v22")
        I("v_exp_f32 v23, v23")
        I("v_mov_b32_dpp v58, v62 row_newbcast:4 row_mask:0x2 bank_mask:0xf")
        I("v_mov_b32 v24, v26")
        I("v_cvt_pk_bf16_f32 v60, v20, v21")
        I("v_mov_b32_dpp v58, v62 row_newbcast:8 row_mask:0x4 bank_mask:0xf")
        I("v_cvt_pk_bf16_f32 v61, v22, v23")
        I("v_add_f32 v27, v20, v21")
        I("v_mov_b32_dpp v58, v62 row_newbcast:12 row_mask:0x8 bank_mask:0xf")
        I("v_add_f32 v26, v22, v23")
        for r in range(4):
            u = 60 + (r >> 1)
            I(f"v_perm_b32 v{38+4*r}, v{u}, v{u}, v{54 + (r & 1)}")
            I(f"v_perm_b32 v{39+4*r}, v{u}, v{u}, v{56 + (r & 1)}")
        I("v_add_f32 v27, v27, v26")
        for r in range(4):
            I(f"v_pk_mul_f32 v[{28+2*r}:{29+2*r}], v[{28+2*r}:{29+2*r}], v[58:59] op_sel_hi:[1,0]")
        I("v_fma_f32 v25, v25, v62, v27")
        if wv is not None:
            I(f"s_waitcnt vmcnt({wv})")
        if iss is not None and vearly:
            issueV(iss)
        for r in range(4):
            I(f"v_mfma_f32_16x16x32_bf16 v[28:31], v[{38+4*r}:{41+4*r}], {vreg(s, r)}, v[28:31]")
            I(f"v_mfma_f32_16x16x32_bf16 v[32:35], v[{36+4*r}:{39+4*r}], {vreg(s, r)}, v[32:35]")
        if iss is not None and not vearly:
            issueV(iss)

    proc(0, iss=0, vearly=False)
    proc(1, iss=1, vearly=False)
    proc(2)
    proc(3)
    proc(4, 28, 24)
    proc(5, 20, 16)
    stamp(3)
    a.label("L_loop")
    I("s_cmp_eq_u32 s26, 0")
    I("s_cselect_b32 s6, 0, s6")
    I("s_cselect_b32 s10, 0, s10")
    proc(0, 12, 12, iss=2)
    proc(1, 12, 12, iss=0)
    I("s_cmp_eq_u32 s26, 0")
    I("s_cbranch_scc1 L_epi")
    proc(2, 12, 12, iss=1)
    I("s_sub_u32 s26, s26, 1")
    I("s_branch L_loop")
    a.label("L_epi")
    stamp(4)
    I("v_mov_b32 v27, v25")
    I("ds_write_b128 v0, v[28:31]")
    I("v_permlane32_swap_b32 v25, v27")
    I("ds_write_b128 v0, v[32:35] offset:16")
    I("v_add_f32 v25, v25, v27")
    I("v_mov_b32 v27, v25")
    I("s_lshl_b32 s24, s3, 5")
    I(f"s_add_u32 s24, s24, {L_ML}")
    I("v_permlane16_swap_b32 v25, v27")
    I("v_add_f32 v25, v25, v27")
    I("v_mov_b32 v26, s24")
    I("ds_write_b64 v1, v[24:25]")
    I("v_mov_b32 v21, s21")
    I("v_mov_b32 v23, s21")
    I("v_mov_b32 v45, s21")
    I("v_mov_b32 v47, s21")
    I("s_waitcnt lgkmcnt(0)")
    barrier()
    I("ds_read_b128 v[4:7], v26")
    I("ds_read_b128 v[8:11], v26 offset:16")
    for w in range(4):
        I(f"ds_read_b64 v[{12+2*w}:{13+2*w}], v59 offset:{2048*w}")
    I("s_waitcnt lgkmcnt(4)")
    I("v_max3_f32 v44, v4, v6, v8")
    I("v_max_f32 v44, v44, v10")
    for w in range(4):
        I(f"v_sub_f32 v{4+2*w}, v{4+2*w}, v44")
    for w in range(4):
        I(f"v_exp_f32 v{4+2*w}, v{4+2*w}")
    I("v_mul_f32 v46, v4, v5")
    I("s_waitcnt lgkmcnt(0)")
    I("v_mul_f32 v20, v4, v12")
    I("v_mul_f32 v22, v4, v13")
    for w in range(1, 4):
        I(f"v_fmac_f32 v20, v{4+2*w}, v{12+2*w}")
        I(f"v_fmac_f32 v22, v{4+2*w}, v{13+2*w}")
        I(f"v_fmac_f32 v46, v{4+2*w}, v{5+2*w}")
    if drys:
        I("s_cbranch_execz L_hinit", flush=False)
    I("buffer_store_dwordx4 v[20:23], v63, s[12:15], s27 offen sc1")
    I("s_mov_b64 exec, 1")
    I("buffer_store_dwordx4 v[44:47], off, s[12:15], s28 sc1")
    stamp(5)
    stamps_out("s3")
    a.label("L_exit", flush=False)
    I("s_endpgm")

    def red_b(v, t, op="v_add_f32"):
        I(f"{op}_dpp v{v}, v{v}, v{v} quad_perm:[1,0,3,2] {DPPF}")
        I(f"{op}_dpp v{v}, v{v}, v{v} quad_perm:[2,3,0,1] {DPPF}")
        I(f"{op}_dpp v{v}, v{v}, v{v} row_half_mirror {DPPF}")
        I(f"v_mov_b32 v{t}, v{v}")
        I(f"v_permlane16_swap_b32 v{v}, v{t}")
        I(f"{op} v{v}, v{v}, v{t}")
        I(f"v_mov_b32 v{t}, v{v}")
        I(f"v_permlane32_swap_b32 v{v}, v{t}")
        I(f"{op} v{v}, v{v}, v{t}")

    def unpack(src, f, n=8):
        for i in range(n):
            I(f"v_lshlrev_b32 v{f+2*i}, 16, v{src+i}")
            I(f"v_and_b32 v{f+2*i+1}, 0xffff0000, v{src+i}")

    def ln_stats(src, f, t):
        unpack(src, f)
        I(f"v_pk_add_f32 v[{t}:{t+1}], v[{f}:{f+1}], v[{f+2}:{f+3}]")
        I(f"v_pk_add_f32 v[{t+2}:{t+3}], v[{f+4}:{f+5}], v[{f+6}:{f+7}]")
        I(f"v_pk_add_f32 v[{t}:{t+1}], v[{t}:{t+1}], v[{f+8}:{f+9}]")
        I(f"v_pk_add_f32 v[{t+2}:{t+3}], v[{t+2}:{t+3}], v[{f+10}:{f+11}]")
        I(f"v_pk_add_f32 v[{t}:{t+1}], v[{t}:{t+1}], v[{f+12}:{f+13}]")
        I(f"v_pk_add_f32 v[{t+2}:{t+3}], v[{t+2}:{t+3}], v[{f+14}:{f+15}]")
        I(f"v_pk_add_f32 v[{t}:{t+1}], v[{t}:{t+1}], v[{t+2}:{t+3}]")
        I(f"v_add_f32 v{t}, v{t}, v{t+1}")
        red_b(t, t + 1)
        I(f"v_mul_f32 v{t}, {f32(1/512)}, v{t}")
        for i in range(8):
            I(f"v_pk_add_f32 v[{f+2*i}:{f+2*i+1}], v[{f+2*i}:{f+2*i+1}], v[{t}:{t+1}] op_sel_hi:[1,0] neg_lo:[0,1] neg_hi:[0,1]")
        I(f"v_pk_mul_f32 v[{t+2}:{t+3}], v[{f}:{f+1}], v[{f}:{f+1}]")
        I(f"v_pk_mul_f32 v[{t+4}:{t+5}], v[{f+2}:{f+3}], v[{f+2}:{f+3}]")
        for i in range(2, 8):
            d = t + 2 + 2 * (i & 1)
            I(f"v_pk_fma_f32 v[{d}:{d+1}], v[{f+2*i}:{f+2*i+1}], v[{f+2*i}:{f+2*i+1}], v[{d}:{d+1}]")
        I(f"v_pk_add_f32 v[{t+2}:{t+3}], v[{t+2}:{t+3}], v[{t+4}:{t+5}]")
        I(f"v_add_f32 v{t+2}, v{t+2}, v{t+3}")
        red_b(t + 2, t + 3)
        I(f"v_mul_f32 v{t+2}, {f32(1/512)}, v{t+2}")
        I(f"v_cvt_pk_bf16_f32 v{t+1}, v{t}, v{t+2}")
        I(f"v_lshlrev_b32 v{t}, 16, v{t+1}")
        I(f"v_and_b32 v{t+2}, 0xffff0000, v{t+1}")
        I(f"v_add_f32 v{t+2}, {f32(1e-5)}, v{t+2}")
        I(f"v_cvt_pk_bf16_f32 v{t+2}, v{t+2}, v{t+2}")
        I(f"v_and_b32 v{t+2}, 0xffff0000, v{t+2}")
        I(f"v_sqrt_f32 v{t+2}, v{t+2}")
        I(f"v_cvt_pk_bf16_f32 v{t+2}, v{t+2}, v{t+2}")
        I(f"v_and_b32 v{t+2}, 0xffff0000, v{t+2}")
        I(f"v_rcp_f32 v{t+2}, v{t+2}")

    def ln_apply(src, f, t, n=8, dup=None):
        unpack(src, f, n)
        for i in range(n):
            I(f"v_pk_add_f32 v[{f+2*i}:{f+2*i+1}], v[{f+2*i}:{f+2*i+1}], v[{t}:{t+1}] op_sel_hi:[1,0] neg_lo:[0,1] neg_hi:[0,1]")
        for i in range(n):
            I(f"v_cvt_pk_bf16_f32 v{src+i}, v{f+2*i}, v{f+2*i+1}")
        unpack(src, f, n)
        for i in range(n):
            I(f"v_pk_mul_f32 v[{f+2*i}:{f+2*i+1}], v[{f+2*i}:{f+2*i+1}], v[{t+2}:{t+3}] op_sel_hi:[1,0]")
        if dup is None:
            for i in range(n):
                I(f"v_cvt_pk_bf16_f32 v{src+i}, v{f+2*i}, v{f+2*i+1}")
        else:
            for i in range(2 * n):
                I(f"v_cvt_pk_bf16_f32 v{dup+i}, v{f+i}, v{f+i}")

    a.raw(".p2align 6")
    a.label("L_h0b")
    stamp(9)
    masks()
    I("v_lshrrev_b32 v13, 5, v0")
    I("v_lshlrev_b32 v13, 13, v13")
    I("v_and_b32 v14, 31, v0")
    I("v_lshl_or_b32 v13, v14, 4, v13")
    I("s_lshl_b32 s29, s25, 14")
    I("s_lshl_b32 s30, s24, 10")
    I("s_add_u32 s29, s29, s30")
    I(f"s_add_u32 s29, s29, {QP}")
    I("s_waitcnt lgkmcnt(0)")
    tagcalc(31)
    I("v_mov_b32 v57, s31")
    I("v_mov_b32 v59, s31")
    I("v_mov_b32 v61, s31")
    I("v_mov_b32 v63, s31")
    a.c("q producer")
    a.vm_reset(vm_h0)
    a.vm_wait("x")
    stamp(10)
    ln_stats(32, 128, 48)
    a.vm_wait("xa")
    ln_apply(40, 128, 48, dup=144)
    for t in range(16):
        for r in range(4):
            I(f"v_and_b32 v{160+4*t+r}, v{144+t}, v{4+r}")
    stamp(11)
    for t in range(16):
        ab = 160 + 4 * t
        a.vm_wait(f"wq{t}")
        if t == 0:
            stamp(12)
        I(f"v_mfma_f32_16x16x32_bf16 v[48:51], v[{ab}:{ab+3}], v[{64+4*t}:{67+4*t}], {'0' if t == 0 else 'v[48:51]'}")
    I("v_mov_b32 v56, v48")
    I("v_mov_b32 v58, v49")
    I("v_mov_b32 v60, v50")
    I("v_mov_b32 v62, v51")
    I("buffer_store_dwordx4 v[56:59], v13, s[12:15], s29 offen sc1")
    I("buffer_store_dwordx4 v[60:63], v13, s[12:15], s29 offen offset:512 sc1")
    I("v_mov_b32 v8, 1")
    I(f"v_mov_b32 v9, {L_FL}")
    I("ds_write_b32 v9, v8")
    stamp(1)

    a.label("L_hinit")
    I("s_mov_b64 exec, -1")
    I("s_setprio 3")
    I("s_sub_u32 s3, s3, 4")
    I("s_waitcnt lgkmcnt(0)")
    I("s_load_dword s21, s[12:13], 0")
    I(f"s_mov_b32 s22, {budget}")
    lanebits()
    I("v_lshlrev_b32 v12, 4, v0")
    I("s_and_b32 s24, s2, 7")
    I("s_lshr_b32 s25, s2, 3")
    I("s_lshr_b32 s23, s2, 5")
    I("s_lshl_b32 s23, s23, 3")
    I("s_add_u32 s23, s23, s24")
    I("s_lshl_b32 s28, s23, 2")
    I("s_add_u32 s28, s28, s3")
    I("s_lshl_b32 s29, s28, 14")
    I("s_and_b32 s30, s25, 3")
    I("s_lshl_b32 s31, s30, 8")
    I("s_add_u32 s29, s29, s31")
    I("s_add_u32 s16, s40, s29")
    I("s_addc_u32 s17, s41, 0")
    I(f"s_mov_b32 s18, {15*1024+256}")
    I("s_mov_b32 s19, 0x00020000")
    I("v_and_b32 v15, 1, v2")
    I("v_lshlrev_b32 v15, 13, v15")
    I("v_lshrrev_b32 v14, 1, v2")
    I("v_lshl_or_b32 v15, v14, 10, v15")
    I("v_lshl_or_b32 v15, v3, 4, v15")
    I("s_movk_i32 s26, 0x1000")
    for t in range(4):
        I(f"buffer_load_dwordx4 v[{16+4*t}:{19+4*t}], v15, s[16:19], {'s26' if t >= 2 else '0'} offen offset:{2048*(t&1)} nt")
    I("s_mov_b32 s4, s32")
    I("s_mov_b32 s5, s33")
    I("s_mov_b32 s6, 2048")
    I("s_mov_b32 s54, 2048")
    I("s_mov_b32 s55, 0x00020000")
    I("v_mov_b32 v61, 0")
    I("s_cmp_eq_u32 s3, 0")
    I("s_cbranch_scc1 L_igate")
    I("s_cmp_eq_u32 s3, 3")
    I("s_cbranch_scc1 L_qw")
    I("s_cmp_ge_u32 s2, 224")
    I("s_cbranch_scc1 L_qw")
    I("s_cmp_eq_u32 s3, 1")
    I("s_cbranch_scc1 L_imlp1")
    I("s_lshr_b32 s26, s24, 2")
    I("s_lshl_b32 s27, s25, 1")
    I("s_add_u32 s27, s27, s26")
    I("s_lshl_b32 s29, s27, 15")
    I("s_and_b32 s26, s24, 3")
    I("s_lshl_b32 s26, s26, 8")
    I("s_add_u32 s29, s29, s26")
    I("s_add_u32 s8, s48, s29")
    I("s_addc_u32 s9, s49, 0")
    I(f"s_mov_b32 s10, {31*1024+256}")
    I("v_lshlrev_b32 v14, 4, v3")
    I("v_lshl_or_b32 v14, v2, 13, v14")
    I("s_movk_i32 s29, 0x1000")
    for t in range(8):
        I(f"buffer_load_dwordx4 v[{64+4*t}:{67+4*t}], v14, s[8:11], {'s29' if t >= 4 else '0'} offen offset:{1024*(t&3)} nt")
    I("s_lshl_b32 s29, s25, 7")
    I("s_add_u32 s16, s46, s29")
    I("s_addc_u32 s17, s47, 0")
    I("s_mov_b32 s18, 128")
    I("v_and_b32 v47, 7, v0")
    I("v_lshlrev_b32 v47, 4, v47")
    I("v_lshl_or_b32 v47, v1, 3, v47")
    I("v_lshrrev_b32 v14, 5, v0")
    I("v_lshl_or_b32 v47, v14, 2, v47")
    I("buffer_load_dword v62, v47, s[16:19], 0 offen")
    I("s_branch L_qw")
    a.label("L_imlp1")
    I("v_and_b32 v13, 7, v0")
    I("v_lshl_or_b32 v14, v2, 3, v13")
    I("v_lshlrev_b32 v14, 5, v14")
    I("v_lshl_or_b32 v14, v1, 10, v14")
    I("buffer_load_dwordx4 v[32:35], v14, s[4:7], 0 offen")
    I("buffer_load_dwordx4 v[36:39], v14, s[4:7], 0 offen offset:16")
    I("v_bfe_u32 v14, v0, 2, 1")
    I("v_lshl_or_b32 v14, v2, 1, v14")
    I("v_lshlrev_b32 v14, 4, v14")
    I("v_lshl_or_b32 v14, v1, 10, v14")
    I("s_lshl_b32 s26, s24, 7")
    I("buffer_load_dwordx4 v[40:43], v14, s[4:7], s26 offen")
    I(f"s_mul_i32 s26, s24, {64*3584}")
    I("s_lshl_b32 s27, s25, 7")
    I("s_add_u32 s26, s26, s27")
    I("s_add_u32 s8, s44, s26")
    I("s_addc_u32 s9, s45, 0")
    I(f"s_mov_b32 s10, {63*3584+128}")
    I("v_lshl_or_b32 v14, v2, 1, v1")
    I(f"v_mul_u32_u24 v14, {8*3584}, v14")
    I("v_lshl_add_u32 v14, v13, 4, v14")
    I("s_mov_b32 s26, 0")
    for i in range(8):
        I(f"buffer_load_dwordx4 v[{64+4*i}:{67+4*i}], v14, s[8:11], s26 offen offset:{3584*(i & 1)} nt")
        if i & 1 and i < 7:
            I("s_add_u32 s26, s26, 7168")
    I("s_branch L_qw")
    a.label("L_igate")
    I("s_bfe_u32 s26, s2, 0x20001")
    I("s_lshl_b32 s26, s26, 7")
    I("s_and_b32 s27, s25, 7")
    I("s_lshl_b32 s27, s27, 4")
    I("s_add_u32 s26, s26, s27")
    I("s_bfe_u32 s27, s25, 0x10003")
    I("s_lshl_b32 s27, s27, 2")
    I("s_add_u32 s26, s26, s27")
    I("s_lshr_b32 s27, s25, 4")
    I("s_lshl_b32 s27, s27, 1")
    I("s_add_u32 s26, s26, s27")
    I("v_lshrrev_b32 v60, 5, v0")
    I("v_and_b32 v61, 1, v0")
    I("v_lshl_or_b32 v60, v61, 3, v60")
    I("v_add_u32 v60, s26, v60")
    I("v_lshlrev_b32 v60, 1, v60")
    I("s_and_b32 s27, s2, 1")
    I("s_lshl_b32 s27, s27, 10")
    I("v_add_u32 v61, s27, v60")
    I("s_mov_b32 s8, s50")
    I("s_mov_b32 s9, s51")
    I("s_mov_b32 s10, 1024")
    I("buffer_load_ushort v62, v61, s[4:7], 0 offen")
    I("buffer_load_ushort v63, v60, s[8:11], 0 offen")

    a.label("L_qw")
    I("s_lshr_b32 s26, s20, 4")
    I("s_and_b32 s27, s26, 7")
    I("s_lshl_b32 s27, s27, 2")
    I("s_add_u32 s27, s27, s3")
    I("s_lshl_b32 s27, s27, 14")
    I("s_lshr_b32 s26, s26, 3")
    I("s_lshl_b32 s26, s26, 13")
    I("s_add_u32 s26, s26, s27")
    I(f"s_add_u32 s26, s26, {QP}")
    I("s_add_u32 s27, s26, 4096")
    I("v_lshlrev_b32 v13, 4, v3")
    I("v_bfe_u32 v14, v0, 4, 1")
    I("v_lshl_or_b32 v13, v14, 3, v13")
    I("v_lshrrev_b32 v14, 5, v0")
    I("v_lshl_or_b32 v13, v14, 2, v13")
    I("s_lshl_b32 s29, s3, 8")
    I("v_add_u32 v13, s29, v13")
    masks()
    I("s_waitcnt lgkmcnt(0)")
    tagcalc()
    stamp(13)
    I("s_cmp_eq_u32 s3, 0")
    I("s_cbranch_scc1 L_qpoll")
    I(f"v_mov_b32 v14, {L_FL}")
    a.label("L_fw")
    I("ds_read_b32 v15, v14")
    I("s_waitcnt lgkmcnt(0)")
    I("v_readfirstlane_b32 s29, v15")
    I("s_cmp_lg_u32 s29, 0")
    I("s_cbranch_scc1 L_fok")
    I("s_sleep 2")
    I("s_sub_u32 s22, s22, 1")
    I("s_cbranch_scc0 L_fw")
    I("s_mov_b32 s22, 0")
    a.label("L_fok")
    if qd:
        I(f"s_sleep {qd}")
    a.label("L_qpoll")

    pollid = [0]

    def poll(loads, tags, sleep=0, live="-1"):
        k = pollid[0]; pollid[0] += 1
        M = [f"s[{32+2*i}:{33+2*i}]" for i in range(len(loads))]
        for m in M:
            I(f"s_mov_b64 {m}, {live}")
        a.label(f"L_poll{k}")
        for l, m in zip(loads, M):
            I(f"s_mov_b64 exec, {m}")
            I(l)
        I("s_mov_b32 s58, 0")
        I("s_waitcnt vmcnt(0)")
        for (t1, t2), m in zip(tags, M):
            I(f"s_mov_b64 exec, {m}")
            I(f"v_cmpx_eq_u32 vcc, s21, v{t1}")
            I(f"v_cmpx_eq_u32 vcc, s21, v{t2}")
            I(f"s_andn2_b64 {m}, {m}, exec")
            I("s_addc_u32 s58, s58, 0")
        I(f"s_mov_b64 exec, {live}")
        I("s_cmp_eq_u32 s58, 0")
        I(f"s_cbranch_scc1 L_pok{k}", flush=False)
        p0 = a.pos
        h0 = list(a.hist)
        if sleep:
            I(f"s_sleep {sleep}")
        I("s_sub_u32 s22, s22, 1")
        I(f"s_cbranch_scc0 L_poll{k}", flush=False)
        I("s_mov_b32 s22, 0")
        a.label(f"L_pok{k}", flush=False)
        a.pos = p0
        a.hist = h0
        a.vm_reset()

    def tp(base, n):
        return [(base + 4 * i + 1, base + 4 * i + 3) for i in range(n)]

    def sum8(base):
        for k in (0, 2, 4, 6):
            I(f"v_add_f32 v{base+4*k}, v{base+4*k}, v{base+4+4*k}")
            I(f"v_add_f32 v{base+2+4*k}, v{base+2+4*k}, v{base+6+4*k}")
        for k in (0, 4):
            I(f"v_add_f32 v{base+4*k}, v{base+4*k}, v{base+8+4*k}")
            I(f"v_add_f32 v{base+2+4*k}, v{base+2+4*k}, v{base+10+4*k}")
        I(f"v_add_f32 v{base}, v{base}, v{base+16}")
        I(f"v_add_f32 v{base+2}, v{base+2}, v{base+18}")

    a.c("q consumer")
    stamp(15)
    poll([f"buffer_load_dwordx4 v[{128+4*k}:{131+4*k}], v12, s[12:15], s{26+(k>>2)} offen offset:{1024*(k&3)} sc1" for k in range(8)],
         tp(128, 8), sleep=slpq)
    sum8(128)
    I("v_cvt_pk_bf16_f32 v128, v128, v130")
    I(f"ds_write_b32 v13, v128 offset:{L_Q}")
    I("s_waitcnt lgkmcnt(0)")
    stamp(2)
    I("s_barrier")
    I("v_lshrrev_b32 v46, 1, v0")
    I(f"v_mul_u32_u24 v46, {SO2}, v46")
    I("v_and_b32 v14, 1, v0")
    I("v_lshl_add_u32 v46, v14, 4, v46")
    I("s_bfe_u32 s26, s2, 0x20001")
    I(f"s_mul_i32 s31, s26, {64*SO2}")
    I("s_lshr_b32 s27, s25, 4")
    I("s_lshl_b32 s27, s27, 10")
    I("s_add_u32 s31, s31, s27")
    I("s_and_b32 s27, s2, 1")
    I("s_lshl_b32 s27, s27, 9")
    I("s_add_u32 s31, s31, s27")
    I("s_and_b32 s27, s25, 15")
    I("s_lshl_b32 s27, s27, 5")
    I("s_add_u32 s31, s31, s27")
    I("s_mov_b32 s62, 3")
    I("s_mov_b32 s63, 3")
    I(f"s_cmp_eq_u32 s3, {3 if dryt else 99}")
    I("s_cselect_b64 s[60:61], 0, -1")
    I("s_cmp_eq_u32 s3, 0")
    I("s_cbranch_scc1 L_gate")
    I("s_cmp_eq_u32 s3, 3")
    I("s_cbranch_scc1 L_tail")
    I("s_cmp_ge_u32 s2, 224")
    I("s_cbranch_scc1 L_tail")
    I("s_cmp_eq_u32 s3, 1")
    I("s_cbranch_scc1 L_mlp1")
    I("s_branch L_mlp2")

    def rbf(v):
        I(f"v_cvt_pk_bf16_f32 v{v}, v{v}, v{v}")
        I(f"v_and_b32 v{v}, 0xffff0000, v{v}")

    def reduce2(x0, x1):
        I(f"v_permlane32_swap_b32 v{x0}, v{x1}")
        I(f"v_add_f32 v{x0}, v{x0}, v{x1}")
        I(f"v_mov_b32 v{x1}, v{x0}")
        I(f"v_permlane16_swap_b32 v{x0}, v{x1}")
        I(f"v_add_f32 v{x0}, v{x0}, v{x1}")
        I(f"v_add_f32_dpp v{x0}, v{x0}, v{x0} row_ror:8 {DPPF}")
        I(f"v_add_f32_dpp v{x0}, v{x0}, v{x0} row_ror:4 {DPPF}")
        I(f"v_add_f32_dpp v{x0}, v{x0}, v{x0} quad_perm:[2,3,0,1] {DPPF}")

    a.raw(".p2align 6")
    a.label("L_tail")
    I(f"v_mul_u32_u24 v13, {512*SO1}, v1")
    I(f"v_mul_u32_u24 v14, {4*SO1}, v2")
    I("v_add_u32 v13, v13, v14")
    I("v_and_b32 v14, 7, v0")
    I("v_lshl_add_u32 v13, v14, 4, v13")
    I("v_and_b32 v14, 3, v0")
    I("v_lshlrev_b32 v14, 4, v14")
    I("v_lshl_or_b32 v14, v2, 6, v14")
    I("v_lshl_or_b32 v14, v1, 13, v14")
    I("s_lshr_b32 s27, s28, 3")
    I(f"s_mul_i32 s26, s27, {16*SO1}")
    I("s_and_b32 s29, s28, 7")
    I("s_lshl_b32 s29, s29, 7")
    I("s_add_u32 s26, s26, s29")
    I(f"s_add_u32 s26, s26, {O1}")
    I("s_lshl_b32 s27, s27, 8")
    I(f"s_add_u32 s27, s27, {ML}")
    I("s_lshl_b32 s29, s3, 10")
    I(f"s_add_u32 s29, s29, {L_RL - 1024}")
    I("v_add_u32 v15, s29, v12")
    I("s_lshl_b32 s29, s30, 6")
    I("s_add_u32 s29, s29, s23")
    I(f"s_mul_i32 s29, s29, {SO2}")
    I(f"s_add_u32 s29, s29, {O2}")
    I(f"s_add_u32 s24, s31, {O2}")
    I(f"s_add_u32 s25, s31, {O2 + 32*SO2}")
    I("v_mov_b32 v53, s21")
    I("v_mov_b32 v55, s21")
    I("v_mov_b32 v57, s21")
    I("v_mov_b32 v59, s21")
    a.label("L_tail2")
    I("s_mov_b64 exec, s[60:61]")
    I("s_waitcnt vmcnt(0)")
    barrier()
    stamp(4)
    lds_ = [f"buffer_load_dwordx4 v[80:83], v14, s[12:15], s27 offen sc1"]
    for i in range(4):
        lds_.append(f"buffer_load_dwordx4 v[{64+4*i}:{67+4*i}], v13, s[12:15], s26 offen offset:{SO1*i} sc1")
    poll(lds_, tp(80, 1) + tp(64, 4), sleep=slp1, live="s[60:61]")
    stamp(5)
    I(f"v_max_f32_dpp v84, v80, v80 quad_perm:[1,0,3,2] {DPPF}")
    I(f"v_max_f32_dpp v84, v84, v84 quad_perm:[2,3,0,1] {DPPF}")
    I("v_mov_b32 v85, v84")
    I("v_permlane16_swap_b32 v84, v85")
    I("v_max_f32 v84, v84, v85")
    I("v_mov_b32 v85, v84")
    I("v_permlane32_swap_b32 v84, v85")
    I("v_max_f32 v84, v84, v85")
    I("v_sub_f32 v80, v80, v84")
    I("v_exp_f32 v80, v80")
    I("v_mul_f32 v82, v80, v82")
    I(f"v_mul_f32_dpp v64, v80, v64 quad_perm:[0,0,0,0] {DPPF}")
    I(f"v_mul_f32_dpp v66, v80, v66 quad_perm:[0,0,0,0] {DPPF}")
    I(f"v_add_f32_dpp v82, v82, v82 quad_perm:[1,0,3,2] {DPPF}")
    for i in range(1, 4):
        I(f"v_fmac_f32_dpp v64, v80, v{64+4*i} quad_perm:[{i},{i},{i},{i}] {DPPF}")
        I(f"v_fmac_f32_dpp v66, v80, v{66+4*i} quad_perm:[{i},{i},{i},{i}] {DPPF}")
        if i == 1:
            I(f"v_add_f32_dpp v82, v82, v82 quad_perm:[2,3,0,1] {DPPF}")
        if i == 2:
            I("v_mov_b32 v83, v82")
    I("v_permlane32_swap_b32 v82, v83")
    I("v_permlane32_swap_b32 v64, v66")
    I("v_add_f32 v82, v82, v83")
    I("v_add_f32 v64, v64, v66")
    I("v_permlane16_swap_b32 v64, v82")
    I("v_add_f32 v64, v64, v82")
    I("v_mov_b32 v82, v64")
    I("v_permlane16_swap_b32 v64, v82")
    I("v_rcp_f32 v82, v82")
    I("v_mul_f32 v64, v64, v82")
    I("v_cvt_pk_bf16_f32 v64, v64, v64")
    I("v_mov_b32_dpp v64, v64 row_shr:4 row_mask:0x5 bank_mask:0xa")
    I("v_mov_b32_dpp v64, v64 row_shl:4 row_mask:0xa bank_mask:0x5")
    for t in range(4):
        for r in range(4):
            I(f"v_and_b32_dpp v{96+4*t+r}, v64, v{4+r} quad_perm:[{t},{t},{t},{t}] {DPPF}")
    for t in range(4):
        I(f"v_mfma_f32_16x16x32_bf16 v[48:51], v[{96+4*t}:{99+4*t}], v[{16+4*t}:{19+4*t}], {'0' if t == 0 else 'v[48:51]'}")
    I("s_cbranch_execz L_fin", flush=False)
    I("s_cmp_eq_u32 s3, 0")
    I("s_cbranch_scc1 L_fin", flush=False)
    I("ds_write_b128 v15, v[48:51]")
    I("s_waitcnt lgkmcnt(0)")
    I("s_barrier")
    if prof:
        I("s_add_u32 s3, s3, 4")
        stamps_out("s3")
    I("s_endpgm")
    a.label("L_fin")
    barrier()
    for w in range(3):
        I(f"ds_read_b128 v[{64+4*w}:{67+4*w}], v12 offset:{L_RL + 1024*w}")
    I("s_waitcnt lgkmcnt(1)")
    for r in range(4):
        I(f"v_add_f32 v{48+r}, v{48+r}, v{64+r}")
    for r in range(4):
        I(f"v_add_f32 v{48+r}, v{48+r}, v{68+r}")
    I("s_waitcnt lgkmcnt(0)")
    for r in range(4):
        I(f"v_add_f32 v{52+2*r}, v{48+r}, v{72+r}")
    I("buffer_store_dwordx4 v[52:55], v12, s[12:15], s29 offen sc1")
    I("buffer_store_dwordx4 v[56:59], v12, s[12:15], s29 offen offset:1024 sc1")
    stamp(6)
    poll([f"buffer_load_dwordx4 v[{64+4*e}:{67+4*e}], v46, s[12:15], s{24+e} offen sc1" for e in range(2)],
         tp(64, 2), sleep=slp2, live="s[60:61]")
    stamp(14)
    I("v_add_f32 v64, v64, v68")
    I("v_add_f32 v66, v66, v70")
    reduce2(64, 66)
    rbf(64)
    I("v_mul_f32 v64, v64, v63")
    rbf(64)
    I("v_add_f32 v64, v64, v62")
    I("v_cvt_pk_bf16_f32 v64, v64, v64")
    I("s_and_b64 exec, exec, s[62:63]")
    I("buffer_store_short v64, v61, s[52:55], 0 offen")
    I("s_cbranch_execz L_dry2", flush=False)
    I("s_cmp_lg_u32 s2, 0")
    I("s_cbranch_scc1 L_end2", flush=False)
    I("s_mov_b64 exec, 1")
    I("buffer_store_dword v53, off, s[12:15], 0 sc1")
    a.label("L_end2")
    stamp(7)
    stamps_out("4")
    I("s_endpgm")
    a.label("L_dry2")
    I("s_mov_b64 s[60:61], -1")
    stamp(3)
    I("s_branch L_tail2")

    a.raw(".p2align 6")
    a.label("L_gate")
    a.c("gate value for this workgroup's 4 outputs")
    I(f"s_add_u32 s26, s31, {OM}")
    I("v_cmp_gt_u32 s[56:57], 48, v0")
    I(f"v_add_u32 v47, {32*SO2}, v46")
    I("v_cndmask_b32 v47, v46, v47, s[56:57]")
    poll([f"buffer_load_dwordx4 v[{128+4*e}:{131+4*e}], v{46+e}, s[12:15], s26 offen sc1" for e in range(2)],
         tp(128, 2), sleep=64)
    I("v_cndmask_b32 v132, 0, v132, s[56:57]")
    I("v_cndmask_b32 v134, 0, v134, s[56:57]")
    I("v_add_f32 v128, v128, v132")
    I("v_add_f32 v130, v130, v134")
    reduce2(128, 130)
    rbf(128)
    I("v_lshlrev_b32 v63, 16, v63")
    I("v_lshlrev_b32 v62, 16, v62")
    I("v_add_f32 v128, v128, v63")
    rbf(128)
    I(f"v_mul_f32 v63, {f32(-LOG2E)}, v128")
    I("v_exp_f32 v63, v63")
    I("v_add_f32 v63, 1.0, v63")
    I("v_rcp_f32 v63, v63")
    I("v_mul_f32 v63, v63, v128")
    rbf(63)
    stamp(3)
    I("s_branch L_tail")

    a.raw(".p2align 6")
    a.label("L_mlp1")
    a.c("channel MLP layer 1: 64 hidden columns x 64 rows")
    I("v_and_b32 v13, 7, v0")
    I("v_or_b32 v116, v4, v6")
    I("v_or_b32 v117, v5, v7")
    for i in range(9):
        I(f"v_mov_b32 v{120+4*i}, 0")
        I(f"v_mov_b32 v{121+4*i}, 0")
    I("v_lshlrev_b32 v13, 4, v13")
    I("v_lshl_or_b32 v13, v2, 7, v13")
    I("s_lshl_b32 s26, s2, 10")
    I(f"s_add_u32 s26, s26, {HP}")
    ln_stats(32, 96, 48)
    ln_apply(32, 96, 48)
    ln_stats(32, 96, 54)
    ln_apply(40, 96, 48, n=4)
    ln_apply(40, 96, 54, n=4, dup=104)
    for i in range(8):
        I(f"v_and_b32 v{122+4*i}, v{104+i}, v116")
        I(f"v_and_b32 v{123+4*i}, v{104+i}, v117")
    for i in range(8):
        cx = '0' if i == 0 else 'v[32:35]'
        cy = '0' if i == 0 else 'v[36:39]'
        I(f"v_mfma_f32_16x16x32_bf16 v[32:35], v[{122+4*i}:{125+4*i}], v[{64+4*i}:{67+4*i}], {cx}")
        I(f"v_mfma_f32_16x16x32_bf16 v[36:39], v[{120+4*i}:{123+4*i}], v[{64+4*i}:{67+4*i}], {cy}")
    for r in range(4):
        I(f"v_mov_b32 v{65+2*r}, s21")
    for r in range(4):
        I(f"v_permlane16_swap_b32 v{32+r}, v{36+r}")
    for r in range(4):
        I(f"v_add_f32_dpp v{64+2*r}, v{36+r}, v{32+r} row_ror:8 {DPPF}")
    I("s_mov_b32 exec_lo, 0x00ff00ff")
    I("s_mov_b32 exec_hi, 0x00ff00ff")
    I("buffer_store_dwordx4 v[64:67], v13, s[12:15], s26 offen sc1")
    I("buffer_store_dwordx4 v[68:71], v13, s[12:15], s26 offen offset:512 sc1")
    I("s_mov_b64 exec, -1")
    stamp(3)
    I("s_branch L_tail")

    a.raw(".p2align 6")
    a.label("L_mlp2")
    a.c("channel MLP layer 2: 32 hidden rows x 128 columns")
    I("s_lshr_b32 s26, s24, 2")
    I("s_lshl_b32 s27, s25, 1")
    I("s_add_u32 s27, s27, s26")
    I("s_and_b32 s24, s24, 3")
    I("v_lshlrev_b32 v13, 1, v47")
    I("v_and_b32 v14, 1, v2")
    I("v_lshl_or_b32 v13, v14, 8, v13")
    I("s_lshl_b32 s26, s26, 7")
    I("v_lshlrev_b32 v14, 5, v2")
    I("v_lshl_or_b32 v14, v1, 8, v14")
    I("v_add_u32 v14, s26, v14")
    I("s_lshl_b32 s24, s24, 6")
    I("s_add_u32 s29, s24, s27")
    I(f"s_mul_i32 s29, s29, {SO2}")
    I(f"s_add_u32 s29, s29, {OM}")
    I("s_lshl_b32 s26, s25, 13")
    I(f"s_add_u32 s26, s26, {HP}")
    I("s_add_u32 s27, s26, 4096")
    I("v_lshlrev_b32 v15, 10, v0")
    I("s_movk_i32 s56, 0xff")
    I("s_mov_b32 s57, 0")
    poll(["buffer_load_dwordx4 v[128:131], v15, s[12:15], s26 offen offset:1008 sc1"], tp(128, 1), sleep=16, live="s[56:57]")
    I("s_mov_b64 exec, -1")
    poll([f"buffer_load_dwordx4 v[{128+4*k}:{131+4*k}], v12, s[12:15], s{26+(k>>2)} offen offset:{1024*(k&3)} sc1" for k in range(8)],
         tp(128, 8), sleep=16)
    sum8(128)
    I("v_cvt_pk_bf16_f32 v32, v128, v130")
    unpack(32, 36, 1)
    unpack(62, 40, 1)
    for r in range(2):
        I(f"v_add_f32 v{36+r}, v{36+r}, v{40+r}")
    I("v_cvt_pk_bf16_f32 v32, v36, v37")
    unpack(32, 36, 1)
    kk = -2.0 * math.sqrt(2.0 / math.pi) * LOG2E
    I(f"s_mov_b32 s26, {f32(kk * 0.044715)}")
    I(f"v_mov_b32 v44, {f32(kk)}")
    for r in range(2):
        I(f"v_mul_f32 v{40+r}, v{36+r}, v{36+r}")
    for r in range(2):
        I(f"v_fma_f32 v{40+r}, v{40+r}, s26, v44")
    for r in range(2):
        I(f"v_mul_f32 v{40+r}, v{40+r}, v{36+r}")
    for r in range(2):
        I(f"v_exp_f32 v{40+r}, v{40+r}")
    for r in range(2):
        I(f"v_add_f32 v{40+r}, 1.0, v{40+r}")
    for r in range(2):
        I(f"v_rcp_f32 v{40+r}, v{40+r}")
    for r in range(2):
        I(f"v_mul_f32 v{40+r}, v{40+r}, v{36+r}")
    I("v_cvt_pk_bf16_f32 v32, v40, v40")
    I("v_cvt_pk_bf16_f32 v33, v41, v41")
    I(f"ds_write_b64 v13, v[32:33] offset:{L_HL}")
    I("s_waitcnt lgkmcnt(0)")
    I(f"ds_read_b128 v[96:99], v14 offset:{L_HL}")
    I(f"ds_read_b128 v[100:103], v14 offset:{L_HL + 16}")
    for r in range(4):
        I(f"v_mov_b32 v{37+2*r}, s21")
    I("s_waitcnt lgkmcnt(0)")
    for t in range(8):
        for r in range(4):
            I(f"v_and_b32 v{160+4*t+r}, v{96+t}, v{4+r}")
    for t in range(8):
        I(f"v_mfma_f32_16x16x32_bf16 v[32:35], v[{160+4*t}:{163+4*t}], v[{64+4*t}:{67+4*t}], {'0' if t == 0 else 'v[32:35]'}")
    for r in range(4):
        I(f"v_mov_b32 v{36+2*r}, v{32+r}")
    I("buffer_store_dwordx4 v[36:39], v12, s[12:15], s29 offen sc1")
    I("buffer_store_dwordx4 v[40:43], v12, s[12:15], s29 offen offset:1024 sc1")
    stamp(3)
    I("s_branch L_tail")

    a.raw('.section .rodata,"a"')
    a.raw(".p2align 6")
    a.raw(f".amdhsa_kernel {NAME}")
    a.raw("  .amdhsa_next_free_vgpr 256")
    a.raw("  .amdhsa_next_free_sgpr 102")
    a.raw("  .amdhsa_accum_offset 256")
    a.raw("  .amdhsa_group_segment_fixed_size 0")
    a.raw("  .amdhsa_kernarg_size 104")
    a.raw("  .amdhsa_user_sgpr_count 2")
    a.raw("  .amdhsa_user_sgpr_kernarg_segment_ptr 1")
    a.raw("  .amdhsa_system_sgpr_workgroup_id_x 1")
    a.raw(".end_amdhsa_kernel")
    return a.text()


if __name__ == "__main__":
    out = sys.argv[1]
    kw = eval("dict(" + (sys.argv[2] if len(sys.argv) > 2 else "") + ")")
    open(out, "w").write(gen(**kw))
```

```python
import sys, struct, math
sys.path.insert(0, "exp")
from asmlib import Asm

NAME = "recurrent_scan__gqa_block_cached__mixer_channel_mlp__decode_kernel"
REF = "recurrent_scan__gqa_block_cached__mixer_channel_mlp__decode.s.ref"


def f32(x):
    return "0x%08x" % struct.unpack("<I", struct.pack("<f", x))[0]


QP = 0x10000
HP = 0xA0000
O1 = 0x100000
ML = 0x280000
O2 = 0x300000
OM = 0x400000
TS = 0x700000
WSSZ = 0x800000
L_Q = 0
L_OL = 1024
L_ML = 9216
L_RL = 9728
L_HL = 12800
L_FL = 13312
LOG2E = 1.4426950408889634
DPPF = "row_mask:0xf bank_mask:0xf"
NST = 16


def gen(prof=False, ntkv="nt", budget=20000, SO1=1024, SO2=2048, drys=True, dryt=True,
        slp1=0, slp2=0, slpq=0, qd=32, pace=12, ntk=None, ntv=None):
    ntk = ntkv if ntk is None else ntk
    ntv = ntkv if ntv is None else ntv
    a = Asm()
    I = a.I
    hdr = [l for l in open(REF).read().split("\n") if l.startswith(";") and "@launch" not in l]
    for l in hdr:
        a.raw(l)
    a.raw("; @launch grid=(256,1,1) block=(512,1,1) lds=16384")
    a.raw('.amdgcn_target "amdgcn-amd-amdhsa--gfx950"')
    a.raw(".text")
    a.raw(f".globl {NAME}")
    a.raw(".p2align 8")
    a.raw(f".type {NAME},@function")
    a.raw(f"{NAME}:")

    def stamp(i):
        if prof:
            I(f"s_memrealtime s[{64+2*i}:{65+2*i}]")

    def stamps_out(wavereg):
        if not prof:
            return
        I("s_mov_b64 exec, 1")
        I("s_lshl_b32 s30, s2, 3")
        I(f"s_add_u32 s30, s30, {wavereg}")
        I("s_lshl_b32 s30, s30, 7")
        I(f"s_add_u32 s30, s30, {TS}")
        I("s_waitcnt lgkmcnt(0)")
        for i in range(2 * NST):
            I(f"v_mov_b32 v{64+i}, s{64+i}")
        I("v_mov_b32 v100, 0")
        for i in range(NST // 2):
            I(f"buffer_store_dwordx4 v[{64+4*i}:{67+4*i}], v100, s[12:15], s30 offen offset:{16*i}")

    def tagcalc(r=21):
        I(f"s_mul_i32 s{r}, s{r}, 0x9E3779B1")
        I(f"s_add_u32 s{r}, s{r}, 0x7F4A7C15")

    skipid = [0]

    def barrier():
        k = skipid[0]; skipid[0] += 1
        I(f"s_cbranch_execz L_sk{k}", flush=False)
        I("s_barrier")
        a.label(f"L_sk{k}", flush=False)

    def lanebits():
        I("v_bfe_u32 v1, v0, 3, 1")
        I("v_lshrrev_b32 v2, 4, v0")
        I("v_and_b32 v3, 15, v0")

    def masks():
        I("v_and_b32 v8, 1, v0")
        I("v_bfe_u32 v9, v0, 1, 2")
        I("v_lshlrev_b32 v8, 4, v8")
        I("v_mov_b32 v10, 0xffff")
        I("v_cmp_eq_u32 s[56:57], 0, v9")
        I("v_cmp_eq_u32 s[58:59], 1, v9")
        I("v_cmp_eq_u32 s[62:63], 2, v9")
        I("v_cmp_eq_u32 vcc, 3, v9")
        I("v_lshlrev_b32 v8, v8, v10")
        I("v_cndmask_b32 v4, 0, v8, s[56:57]")
        I("v_cndmask_b32 v5, 0, v8, s[58:59]")
        I("v_cndmask_b32 v6, 0, v8, s[62:63]")
        I("v_cndmask_b32 v7, 0, v8, vcc")

    I("s_cmp_ge_u32 s2, 0x100")
    I("s_cbranch_scc1 L_exit")
    I("s_load_dwordx16 s[32:47], s[0:1], 0")
    I("s_load_dwordx2 s[12:13], s[0:1], 96")
    I("s_load_dwordx8 s[48:55], s[0:1], 64")
    if prof:
        for i in range(2 * NST):
            I(f"s_mov_b32 s{64+i}, 0")
    stamp(0)
    I("v_lshrrev_b32 v1, 6, v0")
    I("v_and_b32 v0, 63, v0")
    I("v_readfirstlane_b32 s3, v1")
    I("s_and_b32 s20, s2, 7")
    I("s_lshl_b32 s20, s20, 5")
    I("s_lshr_b32 s25, s2, 3")
    I("s_add_u32 s20, s20, s25")
    I(f"s_mov_b32 s14, {WSSZ}")
    I("s_mov_b32 s15, 0x00020000")
    I("s_mov_b32 s7, 0x00020000")
    I("s_mov_b32 s11, 0x00020000")
    I("s_sub_u32 s24, s3, 4")
    I(f"s_cmp_ge_u32 s24, {3 if drys else 4}")
    I("s_cbranch_scc1 L_stream")
    I("s_setprio 3")
    I("s_cmp_eq_u32 s3, 4")
    I("s_cbranch_scc1 L_h0a")
    I("v_mov_b32 v8, 0")
    I(f"v_mov_b32 v9, {L_FL}")
    I("ds_write_b32 v9, v8")
    I("s_waitcnt lgkmcnt(0)")
    I("s_barrier")
    I("s_branch L_hinit")
    a.label("L_h0a")
    lanebits()
    I("v_and_b32 v12, 7, v0")
    I("v_lshl_or_b32 v12, v2, 3, v12")
    I("v_lshlrev_b32 v12, 5, v12")
    I("v_lshl_or_b32 v12, v1, 10, v12")
    I("v_lshlrev_b32 v13, 5, v2")
    I("v_lshl_or_b32 v13, v1, 10, v13")
    I("v_lshlrev_b32 v14, 4, v3")
    I("v_lshl_or_b32 v14, v2, 17, v14")
    I("s_and_b32 s24, s2, 7")
    I("s_lshl_b32 s26, s24, 19")
    I("s_lshl_b32 s27, s25, 8")
    I("s_add_u32 s26, s26, s27")
    I("s_lshl_b32 s27, s24, 7")
    I("s_mov_b32 s6, 2048")
    I(f"s_mov_b32 s10, {63*8192+256}")
    I("s_mov_b32 s28, 0")
    I("s_waitcnt lgkmcnt(0)")
    stamp(8)
    I("s_mov_b32 s4, s32")
    I("s_mov_b32 s5, s33")
    I("s_add_u32 s8, s38, s26")
    I("s_addc_u32 s9, s39, 0")
    a.vm_reset()
    I("buffer_load_dwordx4 v[32:35], v12, s[4:7], 0 offen", vmid="x")
    I("buffer_load_dwordx4 v[36:39], v12, s[4:7], 0 offen offset:16", vmid="x")
    I("buffer_load_dwordx4 v[40:43], v13, s[4:7], s27 offen", vmid="xa")
    I("buffer_load_dwordx4 v[44:47], v13, s[4:7], s27 offen offset:16", vmid="xa")
    for t in range(16):
        I(f"buffer_load_dwordx4 v[{64+4*t}:{67+4*t}], v14, s[8:11], s28 offen nt", vmid=f"wq{t}")
        if t < 15:
            I("s_add_u32 s28, s28, 0x2000")
    I("s_barrier")
    I("s_load_dword s31, s[12:13], 0")
    I("s_branch L_h0b")
    vm_h0 = list(a.vm)

    a.label("L_stream")
    a.c("stream wave")
    I("s_lshl_b32 s24, s3, 12")
    I("v_and_b32 v2, 3, v0")
    I("v_lshlrev_b32 v2, 10, v2")
    I("v_bfe_u32 v1, v0, 2, 2")
    I("v_lshl_or_b32 v2, v1, 8, v2")
    I("v_lshrrev_b32 v1, 4, v0")
    I("v_lshl_or_b32 v2, v1, 4, v2")
    I("v_add_u32 v2, s24, v2")
    I("v_lshl_add_u32 v3, v0, 4, s24")
    I("s_lshl_b32 s29, s20, 19")
    I("s_mov_b32 s6, 0x80000")
    I("s_mov_b32 s10, 0x80000")
    I("s_mov_b32 s23, 0")
    I("s_cmp_eq_u32 s3, 7")
    I("s_cselect_b64 exec, 0, -1")
    def kreg(s, c): return f"v[{64+32*s+4*c}:{67+32*s+4*c}]"
    def vreg(s, r): return f"v[{80+32*s+4*r}:{83+32*s+4*r}]"

    def issueK(s, sk=True):
        k = skipid[0]; skipid[0] += 1
        if drys and sk:
            I(f"s_cbranch_execz L_sk{k}", flush=False)
        for c in range(4):
            I(f"buffer_load_dwordx4 {kreg(s, c)}, v2, s[4:7], s23 offen offset:{64*c} {ntk}")
        if drys and sk:
            a.label(f"L_sk{k}", flush=False)

    def issueV(s, sk=True):
        k = skipid[0]; skipid[0] += 1
        if drys and sk:
            I(f"s_cbranch_execz L_sk{k}", flush=False)
        for r in range(4):
            I(f"buffer_load_dwordx4 {vreg(s, r)}, v3, s[8:11], s23 offen offset:{1024*r} {ntv}")
        if drys and sk:
            a.label(f"L_sk{k}", flush=False)
        I("s_add_u32 s23, s23, 0x4000")

    for r in (36, 37, 40, 41, 44, 45, 48, 49, 52, 53, 25, 28, 29, 30, 31, 32, 33, 34, 35):
        I(f"v_mov_b32 v{r}, 0")
    I("v_mov_b32 v24, 0xff7fffff")
    I(f"s_mov_b32 s25, {f32(128 ** -0.5 * LOG2E)}")
    I("v_and_b32 v26, 1, v0")
    I("v_cmp_eq_u32 vcc, 1, v26")
    I("v_mov_b32 v54, 0x0c0c0100")
    I("v_mov_b32 v27, 0x01000c0c")
    I("v_cndmask_b32 v54, v54, v27, vcc")
    I("v_mov_b32 v55, 0x0c0c0302")
    I("v_mov_b32 v27, 0x03020c0c")
    I("v_cndmask_b32 v55, v55, v27, vcc")
    I("v_and_b32 v26, 2, v0")
    I("v_cmp_eq_u32 vcc, 2, v26")
    I("v_mov_b32 v27, 0x0c0c0c0c")
    I("v_bfe_u32 v26, v0, 2, 2")
    I("v_cndmask_b32 v56, v27, v54, vcc")
    I("v_cndmask_b32 v57, v27, v55, vcc")
    I("v_cndmask_b32 v54, v54, v27, vcc")
    I("v_cndmask_b32 v55, v55, v27, vcc")
    I("v_lshrrev_b32 v27, 4, v0")
    I("v_lshlrev_b32 v62, 8, v26")
    I("v_lshl_or_b32 v62, v27, 4, v62")
    I("v_lshlrev_b32 v63, 4, v0")
    I("s_lshl_b32 s24, s3, 9")
    I(f"s_add_u32 s24, s24, {L_OL}")
    I("v_lshl_add_u32 v59, v0, 3, s24")
    I("s_lshl_b32 s24, s3, 3")
    I(f"s_add_u32 s24, s24, {L_ML}")
    I("v_lshl_add_u32 v1, v26, 5, s24")
    I("s_lshl_b32 s24, s3, 11")
    I(f"s_add_u32 s24, s24, {L_OL}")
    I("v_and_b32 v0, 15, v0")
    I("v_lshlrev_b32 v0, 5, v0")
    I("v_lshl_or_b32 v0, v27, 9, v0")
    I("v_add_u32 v0, s24, v0")
    I("s_lshr_b32 s24, s20, 4")
    I("s_lshl_b32 s24, s24, 2")
    I("s_add_u32 s24, s24, s3")
    I("s_lshl_b32 s24, s24, 4")
    I("s_and_b32 s26, s20, 15")
    I("s_add_u32 s24, s24, s26")
    I(f"s_mul_i32 s27, s24, {SO1}")
    I(f"s_add_u32 s27, s27, {O1}")
    I("s_lshl_b32 s28, s24, 4")
    I(f"s_add_u32 s28, s28, {ML}")
    I("s_waitcnt lgkmcnt(0)")
    I("s_add_u32 s4, s34, s29")
    I("s_addc_u32 s5, s35, 0")
    I("s_add_u32 s8, s36, s29")
    I("s_addc_u32 s9, s37, 0")

    I("s_load_dword s21, s[12:13], 0")
    I("s_barrier")
    if drys:
        I("s_cbranch_execz L_pro", flush=False)
    issueK(0, False); issueV(0, False)
    stamp(6)
    issueK(1, False); issueV(1, False)
    stamp(7)
    for s in range(2, 6):
        I(f"s_waitcnt vmcnt({pace})")
        issueK(s, False)
        I(f"s_waitcnt vmcnt({pace})")
        issueV(s, False)
    I("s_waitcnt lgkmcnt(0)")
    tagcalc()
    stamp(1)
    I("s_barrier")
    stamp(2)
    a.label("L_pro", flush=False)
    for c in range(4):
        I(f"ds_read_b128 v[{4+4*c}:{7+4*c}], v62 offset:{L_Q + 64*c}")
    I("s_cmp_eq_u32 s3, 7")
    I("s_cselect_b32 s26, 1, 8")
    I("s_waitcnt lgkmcnt(0)")

    def proc(s, wk=None, wv=None, iss=None, vearly=True):
        a.c(f"unit in slot {s}")
        if wk is not None:
            I(f"s_waitcnt vmcnt({wk})")
        for c in range(4):
            I(f"v_mfma_f32_16x16x32_bf16 v[20:23], {kreg(s, c)}, v[{4+4*c}:{7+4*c}], {'0' if c == 0 else 'v[20:23]'}")
        if iss is not None:
            issueK(iss)
        I("v_max3_f32 v26, v20, v21, v22")
        I("v_max_f32 v26, v26, v23")
        I("v_mov_b32 v27, v26")
        I("v_permlane32_swap_b32 v26, v27")
        I("v_max_f32 v26, v26, v27")
        I("v_mov_b32 v27, v26")
        I("v_permlane16_swap_b32 v26, v27")
        I("v_max_f32 v26, v26, v27")
        I("v_mul_f32 v26, s25, v26")
        I("v_max_f32 v26, v24, v26")
        I("v_sub_f32 v62, v24, v26")
        for r in range(4):
            I(f"v_fma_f32 v{20+r}, v{20+r}, s25, -v26")
        I("v_exp_f32 v62, v62")
        I("v_exp_f32 v20, v20")
        I("v_exp_f32 v21, v21")
        I("v_mov_b32_dpp v58, v62 row_newbcast:0 row_mask:0x1 bank_mask:0xf")
        I("v_exp_f32 v22, v22")
        I("v_exp_f32 v23, v23")
        I("v_mov_b32_dpp v58, v62 row_newbcast:4 row_mask:0x2 bank_mask:0xf")
        I("v_mov_b32 v24, v26")
        I("v_cvt_pk_bf16_f32 v60, v20, v21")
        I("v_mov_b32_dpp v58, v62 row_newbcast:8 row_mask:0x4 bank_mask:0xf")
        I("v_cvt_pk_bf16_f32 v61, v22, v23")
        I("v_add_f32 v27, v20, v21")
        I("v_mov_b32_dpp v58, v62 row_newbcast:12 row_mask:0x8 bank_mask:0xf")
        I("v_add_f32 v26, v22, v23")
        for r in range(4):
            u = 60 + (r >> 1)
            I(f"v_perm_b32 v{38+4*r}, v{u}, v{u}, v{54 + (r & 1)}")
            I(f"v_perm_b32 v{39+4*r}, v{u}, v{u}, v{56 + (r & 1)}")
        I("v_add_f32 v27, v27, v26")
        for r in range(4):
            I(f"v_pk_mul_f32 v[{28+2*r}:{29+2*r}], v[{28+2*r}:{29+2*r}], v[58:59] op_sel_hi:[1,0]")
        I("v_fma_f32 v25, v25, v62, v27")
        if wv is not None:
            I(f"s_waitcnt vmcnt({wv})")
        if iss is not None and vearly:
            issueV(iss)
        for r in range(4):
            I(f"v_mfma_f32_16x16x32_bf16 v[28:31], v[{38+4*r}:{41+4*r}], {vreg(s, r)}, v[28:31]")
            I(f"v_mfma_f32_16x16x32_bf16 v[32:35], v[{36+4*r}:{39+4*r}], {vreg(s, r)}, v[32:35]")
        if iss is not None and not vearly:
            issueV(iss)

    proc(0, iss=0, vearly=False)
    proc(1, iss=1, vearly=False)
    proc(2)
    proc(3)
    proc(4, 28, 24)
    proc(5, 20, 16)
    stamp(3)
    a.label("L_loop")
    I("s_cmp_eq_u32 s26, 0")
    I("s_cselect_b32 s6, 0, s6")
    I("s_cselect_b32 s10, 0, s10")
    proc(0, 12, 12, iss=2)
    proc(1, 12, 12, iss=0)
    I("s_cmp_eq_u32 s26, 0")
    I("s_cbranch_scc1 L_epi")
    proc(2, 12, 12, iss=1)
    I("s_sub_u32 s26, s26, 1")
    I("s_branch L_loop")
    a.label("L_epi")
    stamp(4)
    I("v_mov_b32 v27, v25")
    I("ds_write_b128 v0, v[28:31]")
    I("v_permlane32_swap_b32 v25, v27")
    I("ds_write_b128 v0, v[32:35] offset:16")
    I("v_add_f32 v25, v25, v27")
    I("v_mov_b32 v27, v25")
    I("s_lshl_b32 s24, s3, 5")
    I(f"s_add_u32 s24, s24, {L_ML}")
    I("v_permlane16_swap_b32 v25, v27")
    I("v_add_f32 v25, v25, v27")
    I("v_mov_b32 v26, s24")
    I("ds_write_b64 v1, v[24:25]")
    I("v_mov_b32 v21, s21")
    I("v_mov_b32 v23, s21")
    I("v_mov_b32 v45, s21")
    I("v_mov_b32 v47, s21")
    I("s_waitcnt lgkmcnt(0)")
    barrier()
    I("ds_read_b128 v[4:7], v26")
    I("ds_read_b128 v[8:11], v26 offset:16")
    for w in range(4):
        I(f"ds_read_b64 v[{12+2*w}:{13+2*w}], v59 offset:{2048*w}")
    I("s_waitcnt lgkmcnt(4)")
    I("v_max3_f32 v44, v4, v6, v8")
    I("v_max_f32 v44, v44, v10")
    for w in range(4):
        I(f"v_sub_f32 v{4+2*w}, v{4+2*w}, v44")
    for w in range(4):
        I(f"v_exp_f32 v{4+2*w}, v{4+2*w}")
    I("v_mul_f32 v46, v4, v5")
    I("s_waitcnt lgkmcnt(0)")
    I("v_mul_f32 v20, v4, v12")
    I("v_mul_f32 v22, v4, v13")
    for w in range(1, 4):
        I(f"v_fmac_f32 v20, v{4+2*w}, v{12+2*w}")
        I(f"v_fmac_f32 v22, v{4+2*w}, v{13+2*w}")
        I(f"v_fmac_f32 v46, v{4+2*w}, v{5+2*w}")
    if drys:
        I("s_cbranch_execz L_hinit", flush=False)
    I("buffer_store_dwordx4 v[20:23], v63, s[12:15], s27 offen sc1")
    I("s_mov_b64 exec, 1")
    I("buffer_store_dwordx4 v[44:47], off, s[12:15], s28 sc1")
    stamp(5)
    stamps_out("s3")
    a.label("L_exit", flush=False)
    I("s_endpgm")

    def red_b(v, t, op="v_add_f32"):
        I(f"{op}_dpp v{v}, v{v}, v{v} quad_perm:[1,0,3,2] {DPPF}")
        I(f"{op}_dpp v{v}, v{v}, v{v} quad_perm:[2,3,0,1] {DPPF}")
        I(f"{op}_dpp v{v}, v{v}, v{v} row_half_mirror {DPPF}")
        I(f"v_mov_b32 v{t}, v{v}")
        I(f"v_permlane16_swap_b32 v{v}, v{t}")
        I(f"{op} v{v}, v{v}, v{t}")
        I(f"v_mov_b32 v{t}, v{v}")
        I(f"v_permlane32_swap_b32 v{v}, v{t}")
        I(f"{op} v{v}, v{v}, v{t}")

    def unpack(src, f, n=8):
        for i in range(n):
            I(f"v_lshlrev_b32 v{f+2*i}, 16, v{src+i}")
            I(f"v_and_b32 v{f+2*i+1}, 0xffff0000, v{src+i}")

    def ln_stats(src, f, t):
        unpack(src, f)
        I(f"v_pk_add_f32 v[{t}:{t+1}], v[{f}:{f+1}], v[{f+2}:{f+3}]")
        I(f"v_pk_add_f32 v[{t+2}:{t+3}], v[{f+4}:{f+5}], v[{f+6}:{f+7}]")
        I(f"v_pk_add_f32 v[{t}:{t+1}], v[{t}:{t+1}], v[{f+8}:{f+9}]")
        I(f"v_pk_add_f32 v[{t+2}:{t+3}], v[{t+2}:{t+3}], v[{f+10}:{f+11}]")
        I(f"v_pk_add_f32 v[{t}:{t+1}], v[{t}:{t+1}], v[{f+12}:{f+13}]")
        I(f"v_pk_add_f32 v[{t+2}:{t+3}], v[{t+2}:{t+3}], v[{f+14}:{f+15}]")
        I(f"v_pk_add_f32 v[{t}:{t+1}], v[{t}:{t+1}], v[{t+2}:{t+3}]")
        I(f"v_add_f32 v{t}, v{t}, v{t+1}")
        red_b(t, t + 1)
        I(f"v_mul_f32 v{t}, {f32(1/512)}, v{t}")
        for i in range(8):
            I(f"v_pk_add_f32 v[{f+2*i}:{f+2*i+1}], v[{f+2*i}:{f+2*i+1}], v[{t}:{t+1}] op_sel_hi:[1,0] neg_lo:[0,1] neg_hi:[0,1]")
        I(f"v_pk_mul_f32 v[{t+2}:{t+3}], v[{f}:{f+1}], v[{f}:{f+1}]")
        I(f"v_pk_mul_f32 v[{t+4}:{t+5}], v[{f+2}:{f+3}], v[{f+2}:{f+3}]")
        for i in range(2, 8):
            d = t + 2 + 2 * (i & 1)
            I(f"v_pk_fma_f32 v[{d}:{d+1}], v[{f+2*i}:{f+2*i+1}], v[{f+2*i}:{f+2*i+1}], v[{d}:{d+1}]")
        I(f"v_pk_add_f32 v[{t+2}:{t+3}], v[{t+2}:{t+3}], v[{t+4}:{t+5}]")
        I(f"v_add_f32 v{t+2}, v{t+2}, v{t+3}")
        red_b(t + 2, t + 3)
        I(f"v_mul_f32 v{t+2}, {f32(1/512)}, v{t+2}")
        I(f"v_cvt_pk_bf16_f32 v{t+1}, v{t}, v{t+2}")
        I(f"v_lshlrev_b32 v{t}, 16, v{t+1}")
        I(f"v_and_b32 v{t+2}, 0xffff0000, v{t+1}")
        I(f"v_add_f32 v{t+2}, {f32(1e-5)}, v{t+2}")
        I(f"v_cvt_pk_bf16_f32 v{t+2}, v{t+2}, v{t+2}")
        I(f"v_and_b32 v{t+2}, 0xffff0000, v{t+2}")
        I(f"v_sqrt_f32 v{t+2}, v{t+2}")
        I(f"v_cvt_pk_bf16_f32 v{t+2}, v{t+2}, v{t+2}")
        I(f"v_and_b32 v{t+2}, 0xffff0000, v{t+2}")
        I(f"v_rcp_f32 v{t+2}, v{t+2}")

    def ln_apply(src, f, t, n=8, dup=None):
        unpack(src, f, n)
        for i in range(n):
            I(f"v_pk_add_f32 v[{f+2*i}:{f+2*i+1}], v[{f+2*i}:{f+2*i+1}], v[{t}:{t+1}] op_sel_hi:[1,0] neg_lo:[0,1] neg_hi:[0,1]")
        for i in range(n):
            I(f"v_cvt_pk_bf16_f32 v{src+i}, v{f+2*i}, v{f+2*i+1}")
        unpack(src, f, n)
        for i in range(n):
            I(f"v_pk_mul_f32 v[{f+2*i}:{f+2*i+1}], v[{f+2*i}:{f+2*i+1}], v[{t+2}:{t+3}] op_sel_hi:[1,0]")
        if dup is None:
            for i in range(n):
                I(f"v_cvt_pk_bf16_f32 v{src+i}, v{f+2*i}, v{f+2*i+1}")
        else:
            for i in range(2 * n):
                I(f"v_cvt_pk_bf16_f32 v{dup+i}, v{f+i}, v{f+i}")

    a.raw(".p2align 6")
    a.label("L_h0b")
    stamp(9)
    masks()
    I("v_lshrrev_b32 v13, 5, v0")
    I("v_lshlrev_b32 v13, 13, v13")
    I("v_and_b32 v14, 31, v0")
    I("v_lshl_or_b32 v13, v14, 4, v13")
    I("s_lshl_b32 s29, s25, 14")
    I("s_lshl_b32 s30, s24, 10")
    I("s_add_u32 s29, s29, s30")
    I(f"s_add_u32 s29, s29, {QP}")
    I("s_waitcnt lgkmcnt(0)")
    tagcalc(31)
    I("v_mov_b32 v57, s31")
    I("v_mov_b32 v59, s31")
    I("v_mov_b32 v61, s31")
    I("v_mov_b32 v63, s31")
    a.c("q producer")
    a.vm_reset(vm_h0)
    a.vm_wait("x")
    stamp(10)
    ln_stats(32, 128, 48)
    a.vm_wait("xa")
    ln_apply(40, 128, 48, dup=144)
    for t in range(16):
        for r in range(4):
            I(f"v_and_b32 v{160+4*t+r}, v{144+t}, v{4+r}")
    stamp(11)
    for t in range(16):
        ab = 160 + 4 * t
        a.vm_wait(f"wq{t}")
        if t == 0:
            stamp(12)
        I(f"v_mfma_f32_16x16x32_bf16 v[48:51], v[{ab}:{ab+3}], v[{64+4*t}:{67+4*t}], {'0' if t == 0 else 'v[48:51]'}")
    I("v_mov_b32 v56, v48")
    I("v_mov_b32 v58, v49")
    I("v_mov_b32 v60, v50")
    I("v_mov_b32 v62, v51")
    I("buffer_store_dwordx4 v[56:59], v13, s[12:15], s29 offen sc1")
    I("buffer_store_dwordx4 v[60:63], v13, s[12:15], s29 offen offset:512 sc1")
    I("v_mov_b32 v8, 1")
    I(f"v_mov_b32 v9, {L_FL}")
    I("ds_write_b32 v9, v8")
    stamp(1)

    a.label("L_hinit")
    I("s_mov_b64 exec, -1")
    I("s_setprio 3")
    I("s_sub_u32 s3, s3, 4")
    I("s_waitcnt lgkmcnt(0)")
    I("s_load_dword s21, s[12:13], 0")
    I(f"s_mov_b32 s22, {budget}")
    lanebits()
    I("v_lshlrev_b32 v12, 4, v0")
    I("s_and_b32 s24, s2, 7")
    I("s_lshr_b32 s25, s2, 3")
    I("s_lshr_b32 s23, s2, 5")
    I("s_lshl_b32 s23, s23, 3")
    I("s_add_u32 s23, s23, s24")
    I("s_lshl_b32 s28, s23, 2")
    I("s_add_u32 s28, s28, s3")
    I("s_lshl_b32 s29, s28, 14")
    I("s_and_b32 s30, s25, 3")
    I("s_lshl_b32 s31, s30, 8")
    I("s_add_u32 s29, s29, s31")
    I("s_add_u32 s16, s40, s29")
    I("s_addc_u32 s17, s41, 0")
    I(f"s_mov_b32 s18, {15*1024+256}")
    I("s_mov_b32 s19, 0x00020000")
    I("v_and_b32 v15, 1, v2")
    I("v_lshlrev_b32 v15, 13, v15")
    I("v_lshrrev_b32 v14, 1, v2")
    I("v_lshl_or_b32 v15, v14, 10, v15")
    I("v_lshl_or_b32 v15, v3, 4, v15")
    I("s_movk_i32 s26, 0x1000")
    for t in range(4):
        I(f"buffer_load_dwordx4 v[{16+4*t}:{19+4*t}], v15, s[16:19], {'s26' if t >= 2 else '0'} offen offset:{2048*(t&1)} nt")
    I("s_mov_b32 s4, s32")
    I("s_mov_b32 s5, s33")
    I("s_mov_b32 s6, 2048")
    I("s_mov_b32 s54, 2048")
    I("s_mov_b32 s55, 0x00020000")
    I("v_mov_b32 v61, 0")
    I("s_cmp_eq_u32 s3, 0")
    I("s_cbranch_scc1 L_igate")
    I("s_cmp_eq_u32 s3, 3")
    I("s_cbranch_scc1 L_qw")
    I("s_cmp_ge_u32 s2, 224")
    I("s_cbranch_scc1 L_qw")
    I("s_cmp_eq_u32 s3, 1")
    I("s_cbranch_scc1 L_imlp1")
    I("s_lshr_b32 s26, s24, 2")
    I("s_lshl_b32 s27, s25, 1")
    I("s_add_u32 s27, s27, s26")
    I("s_lshl_b32 s29, s27, 15")
    I("s_and_b32 s26, s24, 3")
    I("s_lshl_b32 s26, s26, 8")
    I("s_add_u32 s29, s29, s26")
    I("s_add_u32 s8, s48, s29")
    I("s_addc_u32 s9, s49, 0")
    I(f"s_mov_b32 s10, {31*1024+256}")
    I("v_lshlrev_b32 v14, 4, v3")
    I("v_lshl_or_b32 v14, v2, 13, v14")
    I("s_movk_i32 s29, 0x1000")
    for t in range(8):
        I(f"buffer_load_dwordx4 v[{64+4*t}:{67+4*t}], v14, s[8:11], {'s29' if t >= 4 else '0'} offen offset:{1024*(t&3)} nt")
    I("s_lshl_b32 s29, s25, 7")
    I("s_add_u32 s16, s46, s29")
    I("s_addc_u32 s17, s47, 0")
    I("s_mov_b32 s18, 128")
    I("v_and_b32 v47, 7, v0")
    I("v_lshlrev_b32 v47, 4, v47")
    I("v_lshl_or_b32 v47, v1, 3, v47")
    I("v_lshrrev_b32 v14, 5, v0")
    I("v_lshl_or_b32 v47, v14, 2, v47")
    I("buffer_load_dword v62, v47, s[16:19], 0 offen")
    I("s_branch L_qw")
    a.label("L_imlp1")
    I("v_and_b32 v13, 7, v0")
    I("v_lshl_or_b32 v14, v2, 3, v13")
    I("v_lshlrev_b32 v14, 5, v14")
    I("v_lshl_or_b32 v14, v1, 10, v14")
    I("buffer_load_dwordx4 v[32:35], v14, s[4:7], 0 offen")
    I("buffer_load_dwordx4 v[36:39], v14, s[4:7], 0 offen offset:16")
    I("v_bfe_u32 v14, v0, 2, 1")
    I("v_lshl_or_b32 v14, v2, 1, v14")
    I("v_lshlrev_b32 v14, 4, v14")
    I("v_lshl_or_b32 v14, v1, 10, v14")
    I("s_lshl_b32 s26, s24, 7")
    I("buffer_load_dwordx4 v[40:43], v14, s[4:7], s26 offen")
    I(f"s_mul_i32 s26, s24, {64*3584}")
    I("s_lshl_b32 s27, s25, 7")
    I("s_add_u32 s26, s26, s27")
    I("s_add_u32 s8, s44, s26")
    I("s_addc_u32 s9, s45, 0")
    I(f"s_mov_b32 s10, {63*3584+128}")
    I("v_lshl_or_b32 v14, v2, 1, v1")
    I(f"v_mul_u32_u24 v14, {8*3584}, v14")
    I("v_lshl_add_u32 v14, v13, 4, v14")
    I("s_mov_b32 s26, 0")
    for i in range(8):
        I(f"buffer_load_dwordx4 v[{64+4*i}:{67+4*i}], v14, s[8:11], s26 offen offset:{3584*(i & 1)} nt")
        if i & 1 and i < 7:
            I("s_add_u32 s26, s26, 7168")
    I("s_branch L_qw")
    a.label("L_igate")
    I("s_bfe_u32 s26, s2, 0x20001")
    I("s_lshl_b32 s26, s26, 7")
    I("s_and_b32 s27, s25, 7")
    I("s_lshl_b32 s27, s27, 4")
    I("s_add_u32 s26, s26, s27")
    I("s_bfe_u32 s27, s25, 0x10003")
    I("s_lshl_b32 s27, s27, 2")
    I("s_add_u32 s26, s26, s27")
    I("s_lshr_b32 s27, s25, 4")
    I("s_lshl_b32 s27, s27, 1")
    I("s_add_u32 s26, s26, s27")
    I("v_lshrrev_b32 v60, 5, v0")
    I("v_and_b32 v61, 1, v0")
    I("v_lshl_or_b32 v60, v61, 3, v60")
    I("v_add_u32 v60, s26, v60")
    I("v_lshlrev_b32 v60, 1, v60")
    I("s_and_b32 s27, s2, 1")
    I("s_lshl_b32 s27, s27, 10")
    I("v_add_u32 v61, s27, v60")
    I("s_mov_b32 s8, s50")
    I("s_mov_b32 s9, s51")
    I("s_mov_b32 s10, 1024")
    I("buffer_load_ushort v62, v61, s[4:7], 0 offen")
    I("buffer_load_ushort v63, v60, s[8:11], 0 offen")

    a.label("L_qw")
    I("s_lshr_b32 s26, s20, 4")
    I("s_and_b32 s27, s26, 7")
    I("s_lshl_b32 s27, s27, 2")
    I("s_add_u32 s27, s27, s3")
    I("s_lshl_b32 s27, s27, 14")
    I("s_lshr_b32 s26, s26, 3")
    I("s_lshl_b32 s26, s26, 13")
    I("s_add_u32 s26, s26, s27")
    I(f"s_add_u32 s26, s26, {QP}")
    I("s_add_u32 s27, s26, 4096")
    I("v_lshlrev_b32 v13, 4, v3")
    I("v_bfe_u32 v14, v0, 4, 1")
    I("v_lshl_or_b32 v13, v14, 3, v13")
    I("v_lshrrev_b32 v14, 5, v0")
    I("v_lshl_or_b32 v13, v14, 2, v13")
    I("s_lshl_b32 s29, s3, 8")
    I("v_add_u32 v13, s29, v13")
    masks()
    I("s_waitcnt lgkmcnt(0)")
    tagcalc()
    stamp(13)
    I("s_cmp_eq_u32 s3, 0")
    I("s_cbranch_scc1 L_qpoll")
    I(f"v_mov_b32 v14, {L_FL}")
    a.label("L_fw")
    I("ds_read_b32 v15, v14")
    I("s_waitcnt lgkmcnt(0)")
    I("v_readfirstlane_b32 s29, v15")
    I("s_cmp_lg_u32 s29, 0")
    I("s_cbranch_scc1 L_fok")
    I("s_sleep 2")
    I("s_sub_u32 s22, s22, 1")
    I("s_cbranch_scc0 L_fw")
    I("s_mov_b32 s22, 0")
    a.label("L_fok")
    if qd:
        I(f"s_sleep {qd}")
    a.label("L_qpoll")

    pollid = [0]

    def poll(loads, tags, sleep=0, live="-1"):
        k = pollid[0]; pollid[0] += 1
        M = [f"s[{32+2*i}:{33+2*i}]" for i in range(len(loads))]
        for m in M:
            I(f"s_mov_b64 {m}, {live}")
        a.label(f"L_poll{k}")
        for l, m in zip(loads, M):
            I(f"s_mov_b64 exec, {m}")
            I(l)
        I("s_mov_b32 s58, 0")
        I("s_waitcnt vmcnt(0)")
        for (t1, t2), m in zip(tags, M):
            I(f"s_mov_b64 exec, {m}")
            I(f"v_cmpx_eq_u32 vcc, s21, v{t1}")
            I(f"v_cmpx_eq_u32 vcc, s21, v{t2}")
            I(f"s_andn2_b64 {m}, {m}, exec")
            I("s_addc_u32 s58, s58, 0")
        I(f"s_mov_b64 exec, {live}")
        I("s_cmp_eq_u32 s58, 0")
        I(f"s_cbranch_scc1 L_pok{k}", flush=False)
        p0 = a.pos
        h0 = list(a.hist)
        if sleep:
            I(f"s_sleep {sleep}")
        I("s_sub_u32 s22, s22, 1")
        I(f"s_cbranch_scc0 L_poll{k}", flush=False)
        I("s_mov_b32 s22, 0")
        a.label(f"L_pok{k}", flush=False)
        a.pos = p0
        a.hist = h0
        a.vm_reset()

    def tp(base, n):
        return [(base + 4 * i + 1, base + 4 * i + 3) for i in range(n)]

    def sum8(base):
        for k in (0, 2, 4, 6):
            I(f"v_add_f32 v{base+4*k}, v{base+4*k}, v{base+4+4*k}")
            I(f"v_add_f32 v{base+2+4*k}, v{base+2+4*k}, v{base+6+4*k}")
        for k in (0, 4):
            I(f"v_add_f32 v{base+4*k}, v{base+4*k}, v{base+8+4*k}")
            I(f"v_add_f32 v{base+2+4*k}, v{base+2+4*k}, v{base+10+4*k}")
        I(f"v_add_f32 v{base}, v{base}, v{base+16}")
        I(f"v_add_f32 v{base+2}, v{base+2}, v{base+18}")

    a.c("q consumer")
    stamp(15)
    poll([f"buffer_load_dwordx4 v[{128+4*k}:{131+4*k}], v12, s[12:15], s{26+(k>>2)} offen offset:{1024*(k&3)} sc1" for k in range(8)],
         tp(128, 8), sleep=slpq)
    sum8(128)
    I("v_cvt_pk_bf16_f32 v128, v128, v130")
    I(f"ds_write_b32 v13, v128 offset:{L_Q}")
    I("s_waitcnt lgkmcnt(0)")
    stamp(2)
    I("s_barrier")
    I("v_lshrrev_b32 v46, 1, v0")
    I(f"v_mul_u32_u24 v46, {SO2}, v46")
    I("v_and_b32 v14, 1, v0")
    I("v_lshl_add_u32 v46, v14, 4, v46")
    I("s_bfe_u32 s26, s2, 0x20001")
    I(f"s_mul_i32 s31, s26, {64*SO2}")
    I("s_lshr_b32 s27, s25, 4")
    I("s_lshl_b32 s27, s27, 10")
    I("s_add_u32 s31, s31, s27")
    I("s_and_b32 s27, s2, 1")
    I("s_lshl_b32 s27, s27, 9")
    I("s_add_u32 s31, s31, s27")
    I("s_and_b32 s27, s25, 15")
    I("s_lshl_b32 s27, s27, 5")
    I("s_add_u32 s31, s31, s27")
    I("s_mov_b32 s62, 3")
    I("s_mov_b32 s63, 3")
    I(f"s_cmp_eq_u32 s3, {3 if dryt else 99}")
    I("s_cselect_b64 s[60:61], 0, -1")
    I("s_cmp_eq_u32 s3, 0")
    I("s_cbranch_scc1 L_gate")
    I("s_cmp_eq_u32 s3, 3")
    I("s_cbranch_scc1 L_tail")
    I("s_cmp_ge_u32 s2, 224")
    I("s_cbranch_scc1 L_tail")
    I("s_cmp_eq_u32 s3, 1")
    I("s_cbranch_scc1 L_mlp1")
    I("s_branch L_mlp2")

    def rbf(v):
        I(f"v_cvt_pk_bf16_f32 v{v}, v{v}, v{v}")
        I(f"v_and_b32 v{v}, 0xffff0000, v{v}")

    def reduce2(x0, x1):
        I(f"v_permlane32_swap_b32 v{x0}, v{x1}")
        I(f"v_add_f32 v{x0}, v{x0}, v{x1}")
        I(f"v_mov_b32 v{x1}, v{x0}")
        I(f"v_permlane16_swap_b32 v{x0}, v{x1}")
        I(f"v_add_f32 v{x0}, v{x0}, v{x1}")
        I(f"v_add_f32_dpp v{x0}, v{x0}, v{x0} row_ror:8 {DPPF}")
        I(f"v_add_f32_dpp v{x0}, v{x0}, v{x0} row_ror:4 {DPPF}")
        I(f"v_add_f32_dpp v{x0}, v{x0}, v{x0} quad_perm:[2,3,0,1] {DPPF}")

    a.raw(".p2align 6")
    a.label("L_tail")
    I(f"v_mul_u32_u24 v13, {512*SO1}, v1")
    I(f"v_mul_u32_u24 v14, {4*SO1}, v2")
    I("v_add_u32 v13, v13, v14")
    I("v_and_b32 v14, 7, v0")
    I("v_lshl_add_u32 v13, v14, 4, v13")
    I("v_and_b32 v14, 3, v0")
    I("v_lshlrev_b32 v14, 4, v14")
    I("v_lshl_or_b32 v14, v2, 6, v14")
    I("v_lshl_or_b32 v14, v1, 13, v14")
    I("s_lshr_b32 s27, s28, 3")
    I(f"s_mul_i32 s26, s27, {16*SO1}")
    I("s_and_b32 s29, s28, 7")
    I("s_lshl_b32 s29, s29, 7")
    I("s_add_u32 s26, s26, s29")
    I(f"s_add_u32 s26, s26, {O1}")
    I("s_lshl_b32 s27, s27, 8")
    I(f"s_add_u32 s27, s27, {ML}")
    I("s_lshl_b32 s29, s3, 10")
    I(f"s_add_u32 s29, s29, {L_RL - 1024}")
    I("v_add_u32 v15, s29, v12")
    I("s_lshl_b32 s29, s30, 6")
    I("s_add_u32 s29, s29, s23")
    I(f"s_mul_i32 s29, s29, {SO2}")
    I(f"s_add_u32 s29, s29, {O2}")
    I(f"s_add_u32 s24, s31, {O2}")
    I(f"s_add_u32 s25, s31, {O2 + 32*SO2}")
    I("v_mov_b32 v53, s21")
    I("v_mov_b32 v55, s21")
    I("v_mov_b32 v57, s21")
    I("v_mov_b32 v59, s21")
    a.label("L_tail2")
    I("s_mov_b64 exec, s[60:61]")
    I("s_waitcnt vmcnt(0)")
    barrier()
    stamp(4)
    lds_ = [f"buffer_load_dwordx4 v[80:83], v14, s[12:15], s27 offen sc1"]
    for i in range(4):
        lds_.append(f"buffer_load_dwordx4 v[{64+4*i}:{67+4*i}], v13, s[12:15], s26 offen offset:{SO1*i} sc1")
    poll(lds_, tp(80, 1) + tp(64, 4), sleep=slp1, live="s[60:61]")
    stamp(5)
    I(f"v_max_f32_dpp v84, v80, v80 quad_perm:[1,0,3,2] {DPPF}")
    I(f"v_max_f32_dpp v84, v84, v84 quad_perm:[2,3,0,1] {DPPF}")
    I("v_mov_b32 v85, v84")
    I("v_permlane16_swap_b32 v84, v85")
    I("v_max_f32 v84, v84, v85")
    I("v_mov_b32 v85, v84")
    I("v_permlane32_swap_b32 v84, v85")
    I("v_max_f32 v84, v84, v85")
    I("v_sub_f32 v80, v80, v84")
    I("v_exp_f32 v80, v80")
    I("v_mul_f32 v82, v80, v82")
    I(f"v_mul_f32_dpp v64, v80, v64 quad_perm:[0,0,0,0] {DPPF}")
    I(f"v_mul_f32_dpp v66, v80, v66 quad_perm:[0,0,0,0] {DPPF}")
    I(f"v_add_f32_dpp v82, v82, v82 quad_perm:[1,0,3,2] {DPPF}")
    for i in range(1, 4):
        I(f"v_fmac_f32_dpp v64, v80, v{64+4*i} quad_perm:[{i},{i},{i},{i}] {DPPF}")
        I(f"v_fmac_f32_dpp v66, v80, v{66+4*i} quad_perm:[{i},{i},{i},{i}] {DPPF}")
        if i == 1:
            I(f"v_add_f32_dpp v82, v82, v82 quad_perm:[2,3,0,1] {DPPF}")
        if i == 2:
            I("v_mov_b32 v83, v82")
    I("v_permlane32_swap_b32 v82, v83")
    I("v_permlane32_swap_b32 v64, v66")
    I("v_add_f32 v82, v82, v83")
    I("v_add_f32 v64, v64, v66")
    I("v_permlane16_swap_b32 v64, v82")
    I("v_add_f32 v64, v64, v82")
    I("v_mov_b32 v82, v64")
    I("v_permlane16_swap_b32 v64, v82")
    I("v_rcp_f32 v82, v82")
    I("v_mul_f32 v64, v64, v82")
    I("v_cvt_pk_bf16_f32 v64, v64, v64")
    I("v_mov_b32_dpp v64, v64 row_shr:4 row_mask:0x5 bank_mask:0xa")
    I("v_mov_b32_dpp v64, v64 row_shl:4 row_mask:0xa bank_mask:0x5")
    for t in range(4):
        for r in range(4):
            I(f"v_and_b32_dpp v{96+4*t+r}, v64, v{4+r} quad_perm:[{t},{t},{t},{t}] {DPPF}")
    for t in range(4):
        I(f"v_mfma_f32_16x16x32_bf16 v[48:51], v[{96+4*t}:{99+4*t}], v[{16+4*t}:{19+4*t}], {'0' if t == 0 else 'v[48:51]'}")
    I("s_cbranch_execz L_fin", flush=False)
    I("s_cmp_eq_u32 s3, 0")
    I("s_cbranch_scc1 L_fin", flush=False)
    I("ds_write_b128 v15, v[48:51]")
    I("s_waitcnt lgkmcnt(0)")
    I("s_barrier")
    if prof:
        I("s_add_u32 s3, s3, 4")
        stamps_out("s3")
    I("s_endpgm")
    a.label("L_fin")
    barrier()
    for w in range(3):
        I(f"ds_read_b128 v[{64+4*w}:{67+4*w}], v12 offset:{L_RL + 1024*w}")
    I("s_waitcnt lgkmcnt(1)")
    for r in range(4):
        I(f"v_add_f32 v{48+r}, v{48+r}, v{64+r}")
    for r in range(4):
        I(f"v_add_f32 v{48+r}, v{48+r}, v{68+r}")
    I("s_waitcnt lgkmcnt(0)")
    for r in range(4):
        I(f"v_add_f32 v{52+2*r}, v{48+r}, v{72+r}")
    I("buffer_store_dwordx4 v[52:55], v12, s[12:15], s29 offen sc1")
    I("buffer_store_dwordx4 v[56:59], v12, s[12:15], s29 offen offset:1024 sc1")
    stamp(6)
    poll([f"buffer_load_dwordx4 v[{64+4*e}:{67+4*e}], v46, s[12:15], s{24+e} offen sc1" for e in range(2)],
         tp(64, 2), sleep=slp2, live="s[60:61]")
    stamp(14)
    I("v_add_f32 v64, v64, v68")
    I("v_add_f32 v66, v66, v70")
    reduce2(64, 66)
    rbf(64)
    I("v_mul_f32 v64, v64, v63")
    rbf(64)
    I("v_add_f32 v64, v64, v62")
    I("v_cvt_pk_bf16_f32 v64, v64, v64")
    I("s_and_b64 exec, exec, s[62:63]")
    I("buffer_store_short v64, v61, s[52:55], 0 offen")
    I("s_cbranch_execz L_dry2", flush=False)
    I("s_cmp_lg_u32 s2, 0")
    I("s_cbranch_scc1 L_end2", flush=False)
    I("s_mov_b64 exec, 1")
    I("buffer_store_dword v53, off, s[12:15], 0 sc1")
    a.label("L_end2")
    stamp(7)
    stamps_out("4")
    I("s_endpgm")
    a.label("L_dry2")
    I("s_mov_b64 s[60:61], -1")
    stamp(3)
    I("s_branch L_tail2")

    a.raw(".p2align 6")
    a.label("L_gate")
    a.c("gate value for this workgroup's 4 outputs")
    I(f"s_add_u32 s26, s31, {OM}")
    I("v_cmp_gt_u32 s[56:57], 48, v0")
    I(f"v_add_u32 v47, {32*SO2}, v46")
    I("v_cndmask_b32 v47, v46, v47, s[56:57]")
    poll([f"buffer_load_dwordx4 v[{128+4*e}:{131+4*e}], v{46+e}, s[12:15], s26 offen sc1" for e in range(2)],
         tp(128, 2), sleep=64)
    I("v_cndmask_b32 v132, 0, v132, s[56:57]")
    I("v_cndmask_b32 v134, 0, v134, s[56:57]")
    I("v_add_f32 v128, v128, v132")
    I("v_add_f32 v130, v130, v134")
    reduce2(128, 130)
    rbf(128)
    I("v_lshlrev_b32 v63, 16, v63")
    I("v_lshlrev_b32 v62, 16, v62")
    I("v_add_f32 v128, v128, v63")
    rbf(128)
    I(f"v_mul_f32 v63, {f32(-LOG2E)}, v128")
    I("v_exp_f32 v63, v63")
    I("v_add_f32 v63, 1.0, v63")
    I("v_rcp_f32 v63, v63")
    I("v_mul_f32 v63, v63, v128")
    rbf(63)
    stamp(3)
    I("s_branch L_tail")

    a.raw(".p2align 6")
    a.label("L_mlp1")
    a.c("channel MLP layer 1: 64 hidden columns x 64 rows")
    I("v_and_b32 v13, 7, v0")
    I("v_or_b32 v116, v4, v6")
    I("v_or_b32 v117, v5, v7")
    for i in range(9):
        I(f"v_mov_b32 v{120+4*i}, 0")
        I(f"v_mov_b32 v{121+4*i}, 0")
    I("v_lshlrev_b32 v13, 4, v13")
    I("v_lshl_or_b32 v13, v2, 7, v13")
    I("s_lshl_b32 s26, s2, 10")
    I(f"s_add_u32 s26, s26, {HP}")
    ln_stats(32, 96, 48)
    ln_apply(32, 96, 48)
    ln_stats(32, 96, 54)
    ln_apply(40, 96, 48, n=4)
    ln_apply(40, 96, 54, n=4, dup=104)
    for i in range(8):
        I(f"v_and_b32 v{122+4*i}, v{104+i}, v116")
        I(f"v_and_b32 v{123+4*i}, v{104+i}, v117")
    for i in range(8):
        cx = '0' if i == 0 else 'v[32:35]'
        cy = '0' if i == 0 else 'v[36:39]'
        I(f"v_mfma_f32_16x16x32_bf16 v[32:35], v[{122+4*i}:{125+4*i}], v[{64+4*i}:{67+4*i}], {cx}")
        I(f"v_mfma_f32_16x16x32_bf16 v[36:39], v[{120+4*i}:{123+4*i}], v[{64+4*i}:{67+4*i}], {cy}")
    for r in range(4):
        I(f"v_mov_b32 v{65+2*r}, s21")
    for r in range(4):
        I(f"v_permlane16_swap_b32 v{32+r}, v{36+r}")
    for r in range(4):
        I(f"v_add_f32_dpp v{64+2*r}, v{36+r}, v{32+r} row_ror:8 {DPPF}")
    I("s_mov_b32 exec_lo, 0x00ff00ff")
    I("s_mov_b32 exec_hi, 0x00ff00ff")
    I("buffer_store_dwordx4 v[64:67], v13, s[12:15], s26 offen sc1")
    I("buffer_store_dwordx4 v[68:71], v13, s[12:15], s26 offen offset:512 sc1")
    I("s_mov_b64 exec, -1")
    stamp(3)
    I("s_branch L_tail")

    a.raw(".p2align 6")
    a.label("L_mlp2")
    a.c("channel MLP layer 2: 32 hidden rows x 128 columns")
    I("s_lshr_b32 s26, s24, 2")
    I("s_lshl_b32 s27, s25, 1")
    I("s_add_u32 s27, s27, s26")
    I("s_and_b32 s24, s24, 3")
    I("v_lshlrev_b32 v13, 1, v47")
    I("v_and_b32 v14, 1, v2")
    I("v_lshl_or_b32 v13, v14, 8, v13")
    I("s_lshl_b32 s26, s26, 7")
    I("v_lshlrev_b32 v14, 5, v2")
    I("v_lshl_or_b32 v14, v1, 8, v14")
    I("v_add_u32 v14, s26, v14")
    I("s_lshl_b32 s24, s24, 6")
    I("s_add_u32 s29, s24, s27")
    I(f"s_mul_i32 s29, s29, {SO2}")
    I(f"s_add_u32 s29, s29, {OM}")
    I("s_lshl_b32 s26, s25, 13")
    I(f"s_add_u32 s26, s26, {HP}")
    I("s_add_u32 s27, s26, 4096")
    I("v_lshlrev_b32 v15, 10, v0")
    I("s_movk_i32 s56, 0xff")
    I("s_mov_b32 s57, 0")
    poll(["buffer_load_dwordx4 v[128:131], v15, s[12:15], s26 offen offset:1008 sc1"], tp(128, 1), sleep=16, live="s[56:57]")
    I("s_mov_b64 exec, -1")
    poll([f"buffer_load_dwordx4 v[{128+4*k}:{131+4*k}], v12, s[12:15], s{26+(k>>2)} offen offset:{1024*(k&3)} sc1" for k in range(8)],
         tp(128, 8), sleep=16)
    sum8(128)
    I("v_cvt_pk_bf16_f32 v32, v128, v130")
    unpack(32, 36, 1)
    unpack(62, 40, 1)
    for r in range(2):
        I(f"v_add_f32 v{36+r}, v{36+r}, v{40+r}")
    I("v_cvt_pk_bf16_f32 v32, v36, v37")
    unpack(32, 36, 1)
    kk = -2.0 * math.sqrt(2.0 / math.pi) * LOG2E
    I(f"s_mov_b32 s26, {f32(kk * 0.044715)}")
    I(f"v_mov_b32 v44, {f32(kk)}")
    for r in range(2):
        I(f"v_mul_f32 v{40+r}, v{36+r}, v{36+r}")
    for r in range(2):
        I(f"v_fma_f32 v{40+r}, v{40+r}, s26, v44")
    for r in range(2):
        I(f"v_mul_f32 v{40+r}, v{40+r}, v{36+r}")
    for r in range(2):
        I(f"v_exp_f32 v{40+r}, v{40+r}")
    for r in range(2):
        I(f"v_add_f32 v{40+r}, 1.0, v{40+r}")
    for r in range(2):
        I(f"v_rcp_f32 v{40+r}, v{40+r}")
    for r in range(2):
        I(f"v_mul_f32 v{40+r}, v{40+r}, v{36+r}")
    I("v_cvt_pk_bf16_f32 v32, v40, v40")
    I("v_cvt_pk_bf16_f32 v33, v41, v41")
    I(f"ds_write_b64 v13, v[32:33] offset:{L_HL}")
    I("s_waitcnt lgkmcnt(0)")
    I(f"ds_read_b128 v[96:99], v14 offset:{L_HL}")
    I(f"ds_read_b128 v[100:103], v14 offset:{L_HL + 16}")
    for r in range(4):
        I(f"v_mov_b32 v{37+2*r}, s21")
    I("s_waitcnt lgkmcnt(0)")
    for t in range(8):
        for r in range(4):
            I(f"v_and_b32 v{160+4*t+r}, v{96+t}, v{4+r}")
    for t in range(8):
        I(f"v_mfma_f32_16x16x32_bf16 v[32:35], v[{160+4*t}:{163+4*t}], v[{64+4*t}:{67+4*t}], {'0' if t == 0 else 'v[32:35]'}")
    for r in range(4):
        I(f"v_mov_b32 v{36+2*r}, v{32+r}")
    I("buffer_store_dwordx4 v[36:39], v12, s[12:15], s29 offen sc1")
    I("buffer_store_dwordx4 v[40:43], v12, s[12:15], s29 offen offset:1024 sc1")
    stamp(3)
    I("s_branch L_tail")

    a.raw('.section .rodata,"a"')
    a.raw(".p2align 6")
    a.raw(f".amdhsa_kernel {NAME}")
    a.raw("  .amdhsa_next_free_vgpr 256")
    a.raw("  .amdhsa_next_free_sgpr 102")
    a.raw("  .amdhsa_accum_offset 256")
    a.raw("  .amdhsa_group_segment_fixed_size 0")
    a.raw("  .amdhsa_kernarg_size 104")
    a.raw("  .amdhsa_user_sgpr_count 2")
    a.raw("  .amdhsa_user_sgpr_kernarg_segment_ptr 1")
    a.raw("  .amdhsa_system_sgpr_workgroup_id_x 1")
    a.raw(".end_amdhsa_kernel")
    return a.text()


if __name__ == "__main__":
    out = sys.argv[1]
    kw = eval("dict(" + (sys.argv[2] if len(sys.argv) > 2 else "") + ")")
    open(out, "w").write(gen(**kw))
```

```python
import sys, struct, math
sys.path.insert(0, "exp")
from asmlib import Asm

NAME = "recurrent_scan__gqa_block_cached__mixer_channel_mlp__decode_kernel"
REF = "recurrent_scan__gqa_block_cached__mixer_channel_mlp__decode.s.ref"


def f32(x):
    return "0x%08x" % struct.unpack("<I", struct.pack("<f", x))[0]


QP = 0x10000
HP = 0xA0000
O1 = 0x100000
ML = 0x280000
O2 = 0x300000
OM = 0x400000
TS = 0x700000
WSSZ = 0x800000
L_Q = 0
L_OL = 1024
L_ML = 9216
L_RL = 9728
L_HL = 12800
L_FL = 13312
LOG2E = 1.4426950408889634
DPPF = "row_mask:0xf bank_mask:0xf"
NST = 16


def gen(prof=False, ntkv="nt", budget=20000, SO1=1024, SO2=2048, drys=True, dryt=True,
        slp1=0, slp2=0, slpq=0, qd=32, pace=12, ntk=None, ntv=None, diag=None):
    ntk = ntkv if ntk is None else ntk
    ntv = ntkv if ntv is None else ntv
    a = Asm()
    I = a.I
    hdr = [l for l in open(REF).read().split("\n") if l.startswith(";") and "@launch" not in l]
    for l in hdr:
        a.raw(l)
    a.raw("; @launch grid=(256,1,1) block=(512,1,1) lds=16384")
    a.raw('.amdgcn_target "amdgcn-amd-amdhsa--gfx950"')
    a.raw(".text")
    a.raw(f".globl {NAME}")
    a.raw(".p2align 8")
    a.raw(f".type {NAME},@function")
    a.raw(f"{NAME}:")

    def stamp(i):
        if prof:
            I(f"s_memrealtime s[{64+2*i}:{65+2*i}]")

    def stamps_out(wavereg):
        if not prof:
            return
        I("s_mov_b64 exec, 1")
        I("s_lshl_b32 s30, s2, 3")
        I(f"s_add_u32 s30, s30, {wavereg}")
        I("s_lshl_b32 s30, s30, 7")
        I(f"s_add_u32 s30, s30, {TS}")
        I("s_waitcnt lgkmcnt(0)")
        for i in range(2 * NST):
            I(f"v_mov_b32 v{64+i}, s{64+i}")
        I("v_mov_b32 v100, 0")
        for i in range(NST // 2):
            I(f"buffer_store_dwordx4 v[{64+4*i}:{67+4*i}], v100, s[12:15], s30 offen offset:{16*i}")

    def diag_spin(role):
        if diag is None or diag[0] != role:
            return
        _, idx, wg, base = diag
        if wg is not None:
            I(f"s_cmp_lg_u32 s2, {wg}")
            I(f"s_cbranch_scc1 L_dg_end")
        I("s_waitcnt lgkmcnt(0)")
        I(f"s_cmp_eq_u32 s{64+2*idx}, 0")
        I(f"s_cbranch_scc1 L_dg_end")
        I(f"s_add_u32 s56, s{64+2*idx}, {base*100}")
        I("s_mov_b32 s57, 20000")
        a.label("L_dg")
        I("s_sleep 4")
        I("s_memrealtime s[58:59]")
        I("s_sub_u32 s57, s57, 1")
        I("s_cbranch_scc1 L_dg_end")
        I("s_waitcnt lgkmcnt(0)")
        I("s_sub_u32 s58, s58, s56")
        I("s_cmp_lt_i32 s58, 0")
        I("s_cbranch_scc1 L_dg")
        a.label("L_dg_end")

    def tagcalc(r=21):
        I(f"s_mul_i32 s{r}, s{r}, 0x9E3779B1")
        I(f"s_add_u32 s{r}, s{r}, 0x7F4A7C15")

    skipid = [0]

    def barrier():
        k = skipid[0]; skipid[0] += 1
        I(f"s_cbranch_execz L_sk{k}", flush=False)
        I("s_barrier")
        a.label(f"L_sk{k}", flush=False)

    def lanebits():
        I("v_bfe_u32 v1, v0, 3, 1")
        I("v_lshrrev_b32 v2, 4, v0")
        I("v_and_b32 v3, 15, v0")

    def masks():
        I("v_and_b32 v8, 1, v0")
        I("v_bfe_u32 v9, v0, 1, 2")
        I("v_lshlrev_b32 v8, 4, v8")
        I("v_mov_b32 v10, 0xffff")
        I("v_cmp_eq_u32 s[56:57], 0, v9")
        I("v_cmp_eq_u32 s[58:59], 1, v9")
        I("v_cmp_eq_u32 s[62:63], 2, v9")
        I("v_cmp_eq_u32 vcc, 3, v9")
        I("v_lshlrev_b32 v8, v8, v10")
        I("v_cndmask_b32 v4, 0, v8, s[56:57]")
        I("v_cndmask_b32 v5, 0, v8, s[58:59]")
        I("v_cndmask_b32 v6, 0, v8, s[62:63]")
        I("v_cndmask_b32 v7, 0, v8, vcc")

    I("s_cmp_ge_u32 s2, 0x100")
    I("s_cbranch_scc1 L_exit")
    I("s_load_dwordx16 s[32:47], s[0:1], 0")
    I("s_load_dwordx2 s[12:13], s[0:1], 96")
    I("s_load_dwordx8 s[48:55], s[0:1], 64")
    if prof:
        for i in range(2 * NST):
            I(f"s_mov_b32 s{64+i}, 0")
    stamp(0)
    I("v_lshrrev_b32 v1, 6, v0")
    I("v_and_b32 v0, 63, v0")
    I("v_readfirstlane_b32 s3, v1")
    I("s_and_b32 s20, s2, 7")
    I("s_lshl_b32 s20, s20, 5")
    I("s_lshr_b32 s25, s2, 3")
    I("s_add_u32 s20, s20, s25")
    I(f"s_mov_b32 s14, {WSSZ}")
    I("s_mov_b32 s15, 0x00020000")
    I("s_mov_b32 s7, 0x00020000")
    I("s_mov_b32 s11, 0x00020000")
    I("s_sub_u32 s24, s3, 4")
    I(f"s_cmp_ge_u32 s24, {3 if drys else 4}")
    I("s_cbranch_scc1 L_stream")
    I("s_setprio 3")
    I("s_cmp_eq_u32 s3, 4")
    I("s_cbranch_scc1 L_h0a")
    I("v_mov_b32 v8, 0")
    I(f"v_mov_b32 v9, {L_FL}")
    I("ds_write_b32 v9, v8")
    I("s_waitcnt lgkmcnt(0)")
    I("s_barrier")
    I("s_branch L_hinit")
    a.label("L_h0a")
    lanebits()
    I("v_and_b32 v12, 7, v0")
    I("v_lshl_or_b32 v12, v2, 3, v12")
    I("v_lshlrev_b32 v12, 5, v12")
    I("v_lshl_or_b32 v12, v1, 10, v12")
    I("v_lshlrev_b32 v13, 5, v2")
    I("v_lshl_or_b32 v13, v1, 10, v13")
    I("v_lshlrev_b32 v14, 4, v3")
    I("v_lshl_or_b32 v14, v2, 17, v14")
    I("s_and_b32 s24, s2, 7")
    I("s_lshl_b32 s26, s24, 19")
    I("s_lshl_b32 s27, s25, 8")
    I("s_add_u32 s26, s26, s27")
    I("s_lshl_b32 s27, s24, 7")
    I("s_mov_b32 s6, 2048")
    I(f"s_mov_b32 s10, {63*8192+256}")
    I("s_mov_b32 s28, 0")
    I("s_waitcnt lgkmcnt(0)")
    stamp(8)
    I("s_mov_b32 s4, s32")
    I("s_mov_b32 s5, s33")
    I("s_add_u32 s8, s38, s26")
    I("s_addc_u32 s9, s39, 0")
    a.vm_reset()
    I("buffer_load_dwordx4 v[32:35], v12, s[4:7], 0 offen", vmid="x")
    I("buffer_load_dwordx4 v[36:39], v12, s[4:7], 0 offen offset:16", vmid="x")
    I("buffer_load_dwordx4 v[40:43], v13, s[4:7], s27 offen", vmid="xa")
    I("buffer_load_dwordx4 v[44:47], v13, s[4:7], s27 offen offset:16", vmid="xa")
    for t in range(16):
        I(f"buffer_load_dwordx4 v[{64+4*t}:{67+4*t}], v14, s[8:11], s28 offen nt", vmid=f"wq{t}")
        if t < 15:
            I("s_add_u32 s28, s28, 0x2000")
    I("s_barrier")
    I("s_load_dword s31, s[12:13], 0")
    I("s_branch L_h0b")
    vm_h0 = list(a.vm)

    a.label("L_stream")
    a.c("stream wave")
    I("s_lshl_b32 s24, s3, 12")
    I("v_and_b32 v2, 3, v0")
    I("v_lshlrev_b32 v2, 10, v2")
    I("v_bfe_u32 v1, v0, 2, 2")
    I("v_lshl_or_b32 v2, v1, 8, v2")
    I("v_lshrrev_b32 v1, 4, v0")
    I("v_lshl_or_b32 v2, v1, 4, v2")
    I("v_add_u32 v2, s24, v2")
    I("v_lshl_add_u32 v3, v0, 4, s24")
    I("s_lshl_b32 s29, s20, 19")
    I("s_mov_b32 s6, 0x80000")
    I("s_mov_b32 s10, 0x80000")
    I("s_mov_b32 s23, 0")
    I("s_cmp_eq_u32 s3, 7")
    I("s_cselect_b64 exec, 0, -1")
    def kreg(s, c): return f"v[{64+32*s+4*c}:{67+32*s+4*c}]"
    def vreg(s, r): return f"v[{80+32*s+4*r}:{83+32*s+4*r}]"

    def issueK(s, sk=True):
        k = skipid[0]; skipid[0] += 1
        if drys and sk:
            I(f"s_cbranch_execz L_sk{k}", flush=False)
        for c in range(4):
            I(f"buffer_load_dwordx4 {kreg(s, c)}, v2, s[4:7], s23 offen offset:{64*c} {ntk}")
        if drys and sk:
            a.label(f"L_sk{k}", flush=False)

    def issueV(s, sk=True):
        k = skipid[0]; skipid[0] += 1
        if drys and sk:
            I(f"s_cbranch_execz L_sk{k}", flush=False)
        for r in range(4):
            I(f"buffer_load_dwordx4 {vreg(s, r)}, v3, s[8:11], s23 offen offset:{1024*r} {ntv}")
        if drys and sk:
            a.label(f"L_sk{k}", flush=False)
        I("s_add_u32 s23, s23, 0x4000")

    for r in (36, 37, 40, 41, 44, 45, 48, 49, 52, 53, 25, 28, 29, 30, 31, 32, 33, 34, 35):
        I(f"v_mov_b32 v{r}, 0")
    I("v_mov_b32 v24, 0xff7fffff")
    I(f"s_mov_b32 s25, {f32(128 ** -0.5 * LOG2E)}")
    I("v_and_b32 v26, 1, v0")
    I("v_cmp_eq_u32 vcc, 1, v26")
    I("v_mov_b32 v54, 0x0c0c0100")
    I("v_mov_b32 v27, 0x01000c0c")
    I("v_cndmask_b32 v54, v54, v27, vcc")
    I("v_mov_b32 v55, 0x0c0c0302")
    I("v_mov_b32 v27, 0x03020c0c")
    I("v_cndmask_b32 v55, v55, v27, vcc")
    I("v_and_b32 v26, 2, v0")
    I("v_cmp_eq_u32 vcc, 2, v26")
    I("v_mov_b32 v27, 0x0c0c0c0c")
    I("v_bfe_u32 v26, v0, 2, 2")
    I("v_cndmask_b32 v56, v27, v54, vcc")
    I("v_cndmask_b32 v57, v27, v55, vcc")
    I("v_cndmask_b32 v54, v54, v27, vcc")
    I("v_cndmask_b32 v55, v55, v27, vcc")
    I("v_lshrrev_b32 v27, 4, v0")
    I("v_lshlrev_b32 v62, 8, v26")
    I("v_lshl_or_b32 v62, v27, 4, v62")
    I("v_lshlrev_b32 v63, 4, v0")
    I("s_lshl_b32 s24, s3, 9")
    I(f"s_add_u32 s24, s24, {L_OL}")
    I("v_lshl_add_u32 v59, v0, 3, s24")
    I("s_lshl_b32 s24, s3, 3")
    I(f"s_add_u32 s24, s24, {L_ML}")
    I("v_lshl_add_u32 v1, v26, 5, s24")
    I("s_lshl_b32 s24, s3, 11")
    I(f"s_add_u32 s24, s24, {L_OL}")
    I("v_and_b32 v0, 15, v0")
    I("v_lshlrev_b32 v0, 5, v0")
    I("v_lshl_or_b32 v0, v27, 9, v0")
    I("v_add_u32 v0, s24, v0")
    I("s_lshr_b32 s24, s20, 4")
    I("s_lshl_b32 s24, s24, 2")
    I("s_add_u32 s24, s24, s3")
    I("s_lshl_b32 s24, s24, 4")
    I("s_and_b32 s26, s20, 15")
    I("s_add_u32 s24, s24, s26")
    I(f"s_mul_i32 s27, s24, {SO1}")
    I(f"s_add_u32 s27, s27, {O1}")
    I("s_lshl_b32 s28, s24, 4")
    I(f"s_add_u32 s28, s28, {ML}")
    I("s_waitcnt lgkmcnt(0)")
    I("s_add_u32 s4, s34, s29")
    I("s_addc_u32 s5, s35, 0")
    I("s_add_u32 s8, s36, s29")
    I("s_addc_u32 s9, s37, 0")

    I("s_load_dword s21, s[12:13], 0")
    I("s_barrier")
    if drys:
        I("s_cbranch_execz L_pro", flush=False)
    issueK(0, False); issueV(0, False)
    stamp(6)
    issueK(1, False); issueV(1, False)
    stamp(7)
    for s in range(2, 6):
        I(f"s_waitcnt vmcnt({pace})")
        issueK(s, False)
        I(f"s_waitcnt vmcnt({pace})")
        issueV(s, False)
    I("s_waitcnt lgkmcnt(0)")
    tagcalc()
    stamp(1)
    I("s_barrier")
    stamp(2)
    a.label("L_pro", flush=False)
    for c in range(4):
        I(f"ds_read_b128 v[{4+4*c}:{7+4*c}], v62 offset:{L_Q + 64*c}")
    I("s_cmp_eq_u32 s3, 7")
    I("s_cselect_b32 s26, 1, 8")
    I("s_waitcnt lgkmcnt(0)")

    def proc(s, wk=None, wv=None, iss=None, vearly=True):
        a.c(f"unit in slot {s}")
        if wk is not None:
            I(f"s_waitcnt vmcnt({wk})")
        for c in range(4):
            I(f"v_mfma_f32_16x16x32_bf16 v[20:23], {kreg(s, c)}, v[{4+4*c}:{7+4*c}], {'0' if c == 0 else 'v[20:23]'}")
        if iss is not None:
            issueK(iss)
        I("v_max3_f32 v26, v20, v21, v22")
        I("v_max_f32 v26, v26, v23")
        I("v_mov_b32 v27, v26")
        I("v_permlane32_swap_b32 v26, v27")
        I("v_max_f32 v26, v26, v27")
        I("v_mov_b32 v27, v26")
        I("v_permlane16_swap_b32 v26, v27")
        I("v_max_f32 v26, v26, v27")
        I("v_mul_f32 v26, s25, v26")
        I("v_max_f32 v26, v24, v26")
        I("v_sub_f32 v62, v24, v26")
        for r in range(4):
            I(f"v_fma_f32 v{20+r}, v{20+r}, s25, -v26")
        I("v_exp_f32 v62, v62")
        I("v_exp_f32 v20, v20")
        I("v_exp_f32 v21, v21")
        I("v_mov_b32_dpp v58, v62 row_newbcast:0 row_mask:0x1 bank_mask:0xf")
        I("v_exp_f32 v22, v22")
        I("v_exp_f32 v23, v23")
        I("v_mov_b32_dpp v58, v62 row_newbcast:4 row_mask:0x2 bank_mask:0xf")
        I("v_mov_b32 v24, v26")
        I("v_cvt_pk_bf16_f32 v60, v20, v21")
        I("v_mov_b32_dpp v58, v62 row_newbcast:8 row_mask:0x4 bank_mask:0xf")
        I("v_cvt_pk_bf16_f32 v61, v22, v23")
        I("v_add_f32 v27, v20, v21")
        I("v_mov_b32_dpp v58, v62 row_newbcast:12 row_mask:0x8 bank_mask:0xf")
        I("v_add_f32 v26, v22, v23")
        for r in range(4):
            u = 60 + (r >> 1)
            I(f"v_perm_b32 v{38+4*r}, v{u}, v{u}, v{54 + (r & 1)}")
            I(f"v_perm_b32 v{39+4*r}, v{u}, v{u}, v{56 + (r & 1)}")
        I("v_add_f32 v27, v27, v26")
        for r in range(4):
            I(f"v_pk_mul_f32 v[{28+2*r}:{29+2*r}], v[{28+2*r}:{29+2*r}], v[58:59] op_sel_hi:[1,0]")
        I("v_fma_f32 v25, v25, v62, v27")
        if wv is not None:
            I(f"s_waitcnt vmcnt({wv})")
        if iss is not None and vearly:
            issueV(iss)
        for r in range(4):
            I(f"v_mfma_f32_16x16x32_bf16 v[28:31], v[{38+4*r}:{41+4*r}], {vreg(s, r)}, v[28:31]")
            I(f"v_mfma_f32_16x16x32_bf16 v[32:35], v[{36+4*r}:{39+4*r}], {vreg(s, r)}, v[32:35]")
        if iss is not None and not vearly:
            issueV(iss)

    proc(0, iss=0, vearly=False)
    proc(1, iss=1, vearly=False)
    proc(2)
    proc(3)
    proc(4, 28, 24)
    proc(5, 20, 16)
    stamp(3)
    a.label("L_loop")
    I("s_cmp_eq_u32 s26, 0")
    I("s_cselect_b32 s6, 0, s6")
    I("s_cselect_b32 s10, 0, s10")
    proc(0, 12, 12, iss=2)
    proc(1, 12, 12, iss=0)
    I("s_cmp_eq_u32 s26, 0")
    I("s_cbranch_scc1 L_epi")
    proc(2, 12, 12, iss=1)
    I("s_sub_u32 s26, s26, 1")
    I("s_branch L_loop")
    a.label("L_epi")
    stamp(4)
    I("v_mov_b32 v27, v25")
    I("ds_write_b128 v0, v[28:31]")
    I("v_permlane32_swap_b32 v25, v27")
    I("ds_write_b128 v0, v[32:35] offset:16")
    I("v_add_f32 v25, v25, v27")
    I("v_mov_b32 v27, v25")
    I("s_lshl_b32 s24, s3, 5")
    I(f"s_add_u32 s24, s24, {L_ML}")
    I("v_permlane16_swap_b32 v25, v27")
    I("v_add_f32 v25, v25, v27")
    I("v_mov_b32 v26, s24")
    I("ds_write_b64 v1, v[24:25]")
    I("v_mov_b32 v21, s21")
    I("v_mov_b32 v23, s21")
    I("v_mov_b32 v45, s21")
    I("v_mov_b32 v47, s21")
    I("s_waitcnt lgkmcnt(0)")
    barrier()
    I("ds_read_b128 v[4:7], v26")
    I("ds_read_b128 v[8:11], v26 offset:16")
    for w in range(4):
        I(f"ds_read_b64 v[{12+2*w}:{13+2*w}], v59 offset:{2048*w}")
    I("s_waitcnt lgkmcnt(4)")
    I("v_max3_f32 v44, v4, v6, v8")
    I("v_max_f32 v44, v44, v10")
    for w in range(4):
        I(f"v_sub_f32 v{4+2*w}, v{4+2*w}, v44")
    for w in range(4):
        I(f"v_exp_f32 v{4+2*w}, v{4+2*w}")
    I("v_mul_f32 v46, v4, v5")
    I("s_waitcnt lgkmcnt(0)")
    I("v_mul_f32 v20, v4, v12")
    I("v_mul_f32 v22, v4, v13")
    for w in range(1, 4):
        I(f"v_fmac_f32 v20, v{4+2*w}, v{12+2*w}")
        I(f"v_fmac_f32 v22, v{4+2*w}, v{13+2*w}")
        I(f"v_fmac_f32 v46, v{4+2*w}, v{5+2*w}")
    if drys:
        I("s_cbranch_execz L_hinit", flush=False)
    I("buffer_store_dwordx4 v[20:23], v63, s[12:15], s27 offen sc1")
    I("s_mov_b64 exec, 1")
    I("buffer_store_dwordx4 v[44:47], off, s[12:15], s28 sc1")
    stamp(5)
    stamps_out("s3")
    diag_spin('S')
    a.label("L_exit", flush=False)
    I("s_endpgm")

    def red_b(v, t, op="v_add_f32"):
        I(f"{op}_dpp v{v}, v{v}, v{v} quad_perm:[1,0,3,2] {DPPF}")
        I(f"{op}_dpp v{v}, v{v}, v{v} quad_perm:[2,3,0,1] {DPPF}")
        I(f"{op}_dpp v{v}, v{v}, v{v} row_half_mirror {DPPF}")
        I(f"v_mov_b32 v{t}, v{v}")
        I(f"v_permlane16_swap_b32 v{v}, v{t}")
        I(f"{op} v{v}, v{v}, v{t}")
        I(f"v_mov_b32 v{t}, v{v}")
        I(f"v_permlane32_swap_b32 v{v}, v{t}")
        I(f"{op} v{v}, v{v}, v{t}")

    def unpack(src, f, n=8):
        for i in range(n):
            I(f"v_lshlrev_b32 v{f+2*i}, 16, v{src+i}")
            I(f"v_and_b32 v{f+2*i+1}, 0xffff0000, v{src+i}")

    def ln_stats(src, f, t):
        unpack(src, f)
        I(f"v_pk_add_f32 v[{t}:{t+1}], v[{f}:{f+1}], v[{f+2}:{f+3}]")
        I(f"v_pk_add_f32 v[{t+2}:{t+3}], v[{f+4}:{f+5}], v[{f+6}:{f+7}]")
        I(f"v_pk_add_f32 v[{t}:{t+1}], v[{t}:{t+1}], v[{f+8}:{f+9}]")
        I(f"v_pk_add_f32 v[{t+2}:{t+3}], v[{t+2}:{t+3}], v[{f+10}:{f+11}]")
        I(f"v_pk_add_f32 v[{t}:{t+1}], v[{t}:{t+1}], v[{f+12}:{f+13}]")
        I(f"v_pk_add_f32 v[{t+2}:{t+3}], v[{t+2}:{t+3}], v[{f+14}:{f+15}]")
        I(f"v_pk_add_f32 v[{t}:{t+1}], v[{t}:{t+1}], v[{t+2}:{t+3}]")
        I(f"v_add_f32 v{t}, v{t}, v{t+1}")
        red_b(t, t + 1)
        I(f"v_mul_f32 v{t}, {f32(1/512)}, v{t}")
        for i in range(8):
            I(f"v_pk_add_f32 v[{f+2*i}:{f+2*i+1}], v[{f+2*i}:{f+2*i+1}], v[{t}:{t+1}] op_sel_hi:[1,0] neg_lo:[0,1] neg_hi:[0,1]")
        I(f"v_pk_mul_f32 v[{t+2}:{t+3}], v[{f}:{f+1}], v[{f}:{f+1}]")
        I(f"v_pk_mul_f32 v[{t+4}:{t+5}], v[{f+2}:{f+3}], v[{f+2}:{f+3}]")
        for i in range(2, 8):
            d = t + 2 + 2 * (i & 1)
            I(f"v_pk_fma_f32 v[{d}:{d+1}], v[{f+2*i}:{f+2*i+1}], v[{f+2*i}:{f+2*i+1}], v[{d}:{d+1}]")
        I(f"v_pk_add_f32 v[{t+2}:{t+3}], v[{t+2}:{t+3}], v[{t+4}:{t+5}]")
        I(f"v_add_f32 v{t+2}, v{t+2}, v{t+3}")
        red_b(t + 2, t + 3)
        I(f"v_mul_f32 v{t+2}, {f32(1/512)}, v{t+2}")
        I(f"v_cvt_pk_bf16_f32 v{t+1}, v{t}, v{t+2}")
        I(f"v_lshlrev_b32 v{t}, 16, v{t+1}")
        I(f"v_and_b32 v{t+2}, 0xffff0000, v{t+1}")
        I(f"v_add_f32 v{t+2}, {f32(1e-5)}, v{t+2}")
        I(f"v_cvt_pk_bf16_f32 v{t+2}, v{t+2}, v{t+2}")
        I(f"v_and_b32 v{t+2}, 0xffff0000, v{t+2}")
        I(f"v_sqrt_f32 v{t+2}, v{t+2}")
        I(f"v_cvt_pk_bf16_f32 v{t+2}, v{t+2}, v{t+2}")
        I(f"v_and_b32 v{t+2}, 0xffff0000, v{t+2}")
        I(f"v_rcp_f32 v{t+2}, v{t+2}")

    def ln_apply(src, f, t, n=8, dup=None):
        unpack(src, f, n)
        for i in range(n):
            I(f"v_pk_add_f32 v[{f+2*i}:{f+2*i+1}], v[{f+2*i}:{f+2*i+1}], v[{t}:{t+1}] op_sel_hi:[1,0] neg_lo:[0,1] neg_hi:[0,1]")
        for i in range(n):
            I(f"v_cvt_pk_bf16_f32 v{src+i}, v{f+2*i}, v{f+2*i+1}")
        unpack(src, f, n)
        for i in range(n):
            I(f"v_pk_mul_f32 v[{f+2*i}:{f+2*i+1}], v[{f+2*i}:{f+2*i+1}], v[{t+2}:{t+3}] op_sel_hi:[1,0]")
        if dup is None:
            for i in range(n):
                I(f"v_cvt_pk_bf16_f32 v{src+i}, v{f+2*i}, v{f+2*i+1}")
        else:
            for i in range(2 * n):
                I(f"v_cvt_pk_bf16_f32 v{dup+i}, v{f+i}, v{f+i}")

    a.raw(".p2align 6")
    a.label("L_h0b")
    stamp(9)
    masks()
    I("v_lshrrev_b32 v13, 5, v0")
    I("v_lshlrev_b32 v13, 13, v13")
    I("v_and_b32 v14, 31, v0")
    I("v_lshl_or_b32 v13, v14, 4, v13")
    I("s_lshl_b32 s29, s25, 14")
    I("s_lshl_b32 s30, s24, 10")
    I("s_add_u32 s29, s29, s30")
    I(f"s_add_u32 s29, s29, {QP}")
    I("s_waitcnt lgkmcnt(0)")
    tagcalc(31)
    I("v_mov_b32 v57, s31")
    I("v_mov_b32 v59, s31")
    I("v_mov_b32 v61, s31")
    I("v_mov_b32 v63, s31")
    a.c("q producer")
    a.vm_reset(vm_h0)
    a.vm_wait("x")
    stamp(10)
    ln_stats(32, 128, 48)
    a.vm_wait("xa")
    ln_apply(40, 128, 48, dup=144)
    for t in range(16):
        for r in range(4):
            I(f"v_and_b32 v{160+4*t+r}, v{144+t}, v{4+r}")
    stamp(11)
    for t in range(16):
        ab = 160 + 4 * t
        a.vm_wait(f"wq{t}")
        if t == 0:
            stamp(12)
        I(f"v_mfma_f32_16x16x32_bf16 v[48:51], v[{ab}:{ab+3}], v[{64+4*t}:{67+4*t}], {'0' if t == 0 else 'v[48:51]'}")
    I("v_mov_b32 v56, v48")
    I("v_mov_b32 v58, v49")
    I("v_mov_b32 v60, v50")
    I("v_mov_b32 v62, v51")
    I("buffer_store_dwordx4 v[56:59], v13, s[12:15], s29 offen sc1")
    I("buffer_store_dwordx4 v[60:63], v13, s[12:15], s29 offen offset:512 sc1")
    I("v_mov_b32 v8, 1")
    I(f"v_mov_b32 v9, {L_FL}")
    I("ds_write_b32 v9, v8")
    stamp(1)

    a.label("L_hinit")
    I("s_mov_b64 exec, -1")
    I("s_setprio 3")
    I("s_sub_u32 s3, s3, 4")
    I("s_waitcnt lgkmcnt(0)")
    I("s_load_dword s21, s[12:13], 0")
    I(f"s_mov_b32 s22, {budget}")
    lanebits()
    I("v_lshlrev_b32 v12, 4, v0")
    I("s_and_b32 s24, s2, 7")
    I("s_lshr_b32 s25, s2, 3")
    I("s_lshr_b32 s23, s2, 5")
    I("s_lshl_b32 s23, s23, 3")
    I("s_add_u32 s23, s23, s24")
    I("s_lshl_b32 s28, s23, 2")
    I("s_add_u32 s28, s28, s3")
    I("s_lshl_b32 s29, s28, 14")
    I("s_and_b32 s30, s25, 3")
    I("s_lshl_b32 s31, s30, 8")
    I("s_add_u32 s29, s29, s31")
    I("s_add_u32 s16, s40, s29")
    I("s_addc_u32 s17, s41, 0")
    I(f"s_mov_b32 s18, {15*1024+256}")
    I("s_mov_b32 s19, 0x00020000")
    I("v_and_b32 v15, 1, v2")
    I("v_lshlrev_b32 v15, 13, v15")
    I("v_lshrrev_b32 v14, 1, v2")
    I("v_lshl_or_b32 v15, v14, 10, v15")
    I("v_lshl_or_b32 v15, v3, 4, v15")
    I("s_movk_i32 s26, 0x1000")
    for t in range(4):
        I(f"buffer_load_dwordx4 v[{16+4*t}:{19+4*t}], v15, s[16:19], {'s26' if t >= 2 else '0'} offen offset:{2048*(t&1)} nt")
    I("s_mov_b32 s4, s32")
    I("s_mov_b32 s5, s33")
    I("s_mov_b32 s6, 2048")
    I("s_mov_b32 s54, 2048")
    I("s_mov_b32 s55, 0x00020000")
    I("v_mov_b32 v61, 0")
    I("s_cmp_eq_u32 s3, 0")
    I("s_cbranch_scc1 L_igate")
    I("s_cmp_eq_u32 s3, 3")
    I("s_cbranch_scc1 L_qw")
    I("s_cmp_ge_u32 s2, 224")
    I("s_cbranch_scc1 L_qw")
    I("s_cmp_eq_u32 s3, 1")
    I("s_cbranch_scc1 L_imlp1")
    I("s_lshr_b32 s26, s24, 2")
    I("s_lshl_b32 s27, s25, 1")
    I("s_add_u32 s27, s27, s26")
    I("s_lshl_b32 s29, s27, 15")
    I("s_and_b32 s26, s24, 3")
    I("s_lshl_b32 s26, s26, 8")
    I("s_add_u32 s29, s29, s26")
    I("s_add_u32 s8, s48, s29")
    I("s_addc_u32 s9, s49, 0")
    I(f"s_mov_b32 s10, {31*1024+256}")
    I("v_lshlrev_b32 v14, 4, v3")
    I("v_lshl_or_b32 v14, v2, 13, v14")
    I("s_movk_i32 s29, 0x1000")
    for t in range(8):
        I(f"buffer_load_dwordx4 v[{64+4*t}:{67+4*t}], v14, s[8:11], {'s29' if t >= 4 else '0'} offen offset:{1024*(t&3)} nt")
    I("s_lshl_b32 s29, s25, 7")
    I("s_add_u32 s16, s46, s29")
    I("s_addc_u32 s17, s47, 0")
    I("s_mov_b32 s18, 128")
    I("v_and_b32 v47, 7, v0")
    I("v_lshlrev_b32 v47, 4, v47")
    I("v_lshl_or_b32 v47, v1, 3, v47")
    I("v_lshrrev_b32 v14, 5, v0")
    I("v_lshl_or_b32 v47, v14, 2, v47")
    I("buffer_load_dword v62, v47, s[16:19], 0 offen")
    I("s_branch L_qw")
    a.label("L_imlp1")
    I("v_and_b32 v13, 7, v0")
    I("v_lshl_or_b32 v14, v2, 3, v13")
    I("v_lshlrev_b32 v14, 5, v14")
    I("v_lshl_or_b32 v14, v1, 10, v14")
    I("buffer_load_dwordx4 v[32:35], v14, s[4:7], 0 offen")
    I("buffer_load_dwordx4 v[36:39], v14, s[4:7], 0 offen offset:16")
    I("v_bfe_u32 v14, v0, 2, 1")
    I("v_lshl_or_b32 v14, v2, 1, v14")
    I("v_lshlrev_b32 v14, 4, v14")
    I("v_lshl_or_b32 v14, v1, 10, v14")
    I("s_lshl_b32 s26, s24, 7")
    I("buffer_load_dwordx4 v[40:43], v14, s[4:7], s26 offen")
    I(f"s_mul_i32 s26, s24, {64*3584}")
    I("s_lshl_b32 s27, s25, 7")
    I("s_add_u32 s26, s26, s27")
    I("s_add_u32 s8, s44, s26")
    I("s_addc_u32 s9, s45, 0")
    I(f"s_mov_b32 s10, {63*3584+128}")
    I("v_lshl_or_b32 v14, v2, 1, v1")
    I(f"v_mul_u32_u24 v14, {8*3584}, v14")
    I("v_lshl_add_u32 v14, v13, 4, v14")
    I("s_mov_b32 s26, 0")
    for i in range(8):
        I(f"buffer_load_dwordx4 v[{64+4*i}:{67+4*i}], v14, s[8:11], s26 offen offset:{3584*(i & 1)} nt")
        if i & 1 and i < 7:
            I("s_add_u32 s26, s26, 7168")
    I("s_branch L_qw")
    a.label("L_igate")
    I("s_bfe_u32 s26, s2, 0x20001")
    I("s_lshl_b32 s26, s26, 7")
    I("s_and_b32 s27, s25, 7")
    I("s_lshl_b32 s27, s27, 4")
    I("s_add_u32 s26, s26, s27")
    I("s_bfe_u32 s27, s25, 0x10003")
    I("s_lshl_b32 s27, s27, 2")
    I("s_add_u32 s26, s26, s27")
    I("s_lshr_b32 s27, s25, 4")
    I("s_lshl_b32 s27, s27, 1")
    I("s_add_u32 s26, s26, s27")
    I("v_lshrrev_b32 v60, 5, v0")
    I("v_and_b32 v61, 1, v0")
    I("v_lshl_or_b32 v60, v61, 3, v60")
    I("v_add_u32 v60, s26, v60")
    I("v_lshlrev_b32 v60, 1, v60")
    I("s_and_b32 s27, s2, 1")
    I("s_lshl_b32 s27, s27, 10")
    I("v_add_u32 v61, s27, v60")
    I("s_mov_b32 s8, s50")
    I("s_mov_b32 s9, s51")
    I("s_mov_b32 s10, 1024")
    I("buffer_load_ushort v62, v61, s[4:7], 0 offen")
    I("buffer_load_ushort v63, v60, s[8:11], 0 offen")

    a.label("L_qw")
    I("s_lshr_b32 s26, s20, 4")
    I("s_and_b32 s27, s26, 7")
    I("s_lshl_b32 s27, s27, 2")
    I("s_add_u32 s27, s27, s3")
    I("s_lshl_b32 s27, s27, 14")
    I("s_lshr_b32 s26, s26, 3")
    I("s_lshl_b32 s26, s26, 13")
    I("s_add_u32 s26, s26, s27")
    I(f"s_add_u32 s26, s26, {QP}")
    I("s_add_u32 s27, s26, 4096")
    I("v_lshlrev_b32 v13, 4, v3")
    I("v_bfe_u32 v14, v0, 4, 1")
    I("v_lshl_or_b32 v13, v14, 3, v13")
    I("v_lshrrev_b32 v14, 5, v0")
    I("v_lshl_or_b32 v13, v14, 2, v13")
    I("s_lshl_b32 s29, s3, 8")
    I("v_add_u32 v13, s29, v13")
    masks()
    I("s_waitcnt lgkmcnt(0)")
    tagcalc()
    stamp(13)
    I("s_cmp_eq_u32 s3, 0")
    I("s_cbranch_scc1 L_qpoll")
    I(f"v_mov_b32 v14, {L_FL}")
    a.label("L_fw")
    I("ds_read_b32 v15, v14")
    I("s_waitcnt lgkmcnt(0)")
    I("v_readfirstlane_b32 s29, v15")
    I("s_cmp_lg_u32 s29, 0")
    I("s_cbranch_scc1 L_fok")
    I("s_sleep 2")
    I("s_sub_u32 s22, s22, 1")
    I("s_cbranch_scc0 L_fw")
    I("s_mov_b32 s22, 0")
    a.label("L_fok")
    if qd:
        I(f"s_sleep {qd}")
    a.label("L_qpoll")

    pollid = [0]

    def poll(loads, tags, sleep=0, live="-1"):
        k = pollid[0]; pollid[0] += 1
        M = [f"s[{32+2*i}:{33+2*i}]" for i in range(len(loads))]
        for m in M:
            I(f"s_mov_b64 {m}, {live}")
        a.label(f"L_poll{k}")
        for l, m in zip(loads, M):
            I(f"s_mov_b64 exec, {m}")
            I(l)
        I("s_mov_b32 s58, 0")
        I("s_waitcnt vmcnt(0)")
        for (t1, t2), m in zip(tags, M):
            I(f"s_mov_b64 exec, {m}")
            I(f"v_cmpx_eq_u32 vcc, s21, v{t1}")
            I(f"v_cmpx_eq_u32 vcc, s21, v{t2}")
            I(f"s_andn2_b64 {m}, {m}, exec")
            I("s_addc_u32 s58, s58, 0")
        I(f"s_mov_b64 exec, {live}")
        I("s_cmp_eq_u32 s58, 0")
        I(f"s_cbranch_scc1 L_pok{k}", flush=False)
        p0 = a.pos
        h0 = list(a.hist)
        if sleep:
            I(f"s_sleep {sleep}")
        I("s_sub_u32 s22, s22, 1")
        I(f"s_cbranch_scc0 L_poll{k}", flush=False)
        I("s_mov_b32 s22, 0")
        a.label(f"L_pok{k}", flush=False)
        a.pos = p0
        a.hist = h0
        a.vm_reset()

    def tp(base, n):
        return [(base + 4 * i + 1, base + 4 * i + 3) for i in range(n)]

    def sum8(base):
        for k in (0, 2, 4, 6):
            I(f"v_add_f32 v{base+4*k}, v{base+4*k}, v{base+4+4*k}")
            I(f"v_add_f32 v{base+2+4*k}, v{base+2+4*k}, v{base+6+4*k}")
        for k in (0, 4):
            I(f"v_add_f32 v{base+4*k}, v{base+4*k}, v{base+8+4*k}")
            I(f"v_add_f32 v{base+2+4*k}, v{base+2+4*k}, v{base+10+4*k}")
        I(f"v_add_f32 v{base}, v{base}, v{base+16}")
        I(f"v_add_f32 v{base+2}, v{base+2}, v{base+18}")

    a.c("q consumer")
    stamp(15)
    poll([f"buffer_load_dwordx4 v[{128+4*k}:{131+4*k}], v12, s[12:15], s{26+(k>>2)} offen offset:{1024*(k&3)} sc1" for k in range(8)],
         tp(128, 8), sleep=slpq)
    sum8(128)
    I("v_cvt_pk_bf16_f32 v128, v128, v130")
    I(f"ds_write_b32 v13, v128 offset:{L_Q}")
    I("s_waitcnt lgkmcnt(0)")
    stamp(2)
    I("s_barrier")
    I("v_lshrrev_b32 v46, 1, v0")
    I(f"v_mul_u32_u24 v46, {SO2}, v46")
    I("v_and_b32 v14, 1, v0")
    I("v_lshl_add_u32 v46, v14, 4, v46")
    I("s_bfe_u32 s26, s2, 0x20001")
    I(f"s_mul_i32 s31, s26, {64*SO2}")
    I("s_lshr_b32 s27, s25, 4")
    I("s_lshl_b32 s27, s27, 10")
    I("s_add_u32 s31, s31, s27")
    I("s_and_b32 s27, s2, 1")
    I("s_lshl_b32 s27, s27, 9")
    I("s_add_u32 s31, s31, s27")
    I("s_and_b32 s27, s25, 15")
    I("s_lshl_b32 s27, s27, 5")
    I("s_add_u32 s31, s31, s27")
    I("s_mov_b32 s62, 3")
    I("s_mov_b32 s63, 3")
    I(f"s_cmp_eq_u32 s3, {3 if dryt else 99}")
    I("s_cselect_b64 s[60:61], 0, -1")
    I("s_cmp_eq_u32 s3, 0")
    I("s_cbranch_scc1 L_gate")
    I("s_cmp_eq_u32 s3, 3")
    I("s_cbranch_scc1 L_tail")
    I("s_cmp_ge_u32 s2, 224")
    I("s_cbranch_scc1 L_tail")
    I("s_cmp_eq_u32 s3, 1")
    I("s_cbranch_scc1 L_mlp1")
    I("s_branch L_mlp2")

    def rbf(v):
        I(f"v_cvt_pk_bf16_f32 v{v}, v{v}, v{v}")
        I(f"v_and_b32 v{v}, 0xffff0000, v{v}")

    def reduce2(x0, x1):
        I(f"v_permlane32_swap_b32 v{x0}, v{x1}")
        I(f"v_add_f32 v{x0}, v{x0}, v{x1}")
        I(f"v_mov_b32 v{x1}, v{x0}")
        I(f"v_permlane16_swap_b32 v{x0}, v{x1}")
        I(f"v_add_f32 v{x0}, v{x0}, v{x1}")
        I(f"v_add_f32_dpp v{x0}, v{x0}, v{x0} row_ror:8 {DPPF}")
        I(f"v_add_f32_dpp v{x0}, v{x0}, v{x0} row_ror:4 {DPPF}")
        I(f"v_add_f32_dpp v{x0}, v{x0}, v{x0} quad_perm:[2,3,0,1] {DPPF}")

    a.raw(".p2align 6")
    a.label("L_tail")
    I(f"v_mul_u32_u24 v13, {512*SO1}, v1")
    I(f"v_mul_u32_u24 v14, {4*SO1}, v2")
    I("v_add_u32 v13, v13, v14")
    I("v_and_b32 v14, 7, v0")
    I("v_lshl_add_u32 v13, v14, 4, v13")
    I("v_and_b32 v14, 3, v0")
    I("v_lshlrev_b32 v14, 4, v14")
    I("v_lshl_or_b32 v14, v2, 6, v14")
    I("v_lshl_or_b32 v14, v1, 13, v14")
    I("s_lshr_b32 s27, s28, 3")
    I(f"s_mul_i32 s26, s27, {16*SO1}")
    I("s_and_b32 s29, s28, 7")
    I("s_lshl_b32 s29, s29, 7")
    I("s_add_u32 s26, s26, s29")
    I(f"s_add_u32 s26, s26, {O1}")
    I("s_lshl_b32 s27, s27, 8")
    I(f"s_add_u32 s27, s27, {ML}")
    I("s_lshl_b32 s29, s3, 10")
    I(f"s_add_u32 s29, s29, {L_RL - 1024}")
    I("v_add_u32 v15, s29, v12")
    I("s_lshl_b32 s29, s30, 6")
    I("s_add_u32 s29, s29, s23")
    I(f"s_mul_i32 s29, s29, {SO2}")
    I(f"s_add_u32 s29, s29, {O2}")
    I(f"s_add_u32 s24, s31, {O2}")
    I(f"s_add_u32 s25, s31, {O2 + 32*SO2}")
    I("v_mov_b32 v53, s21")
    I("v_mov_b32 v55, s21")
    I("v_mov_b32 v57, s21")
    I("v_mov_b32 v59, s21")
    a.label("L_tail2")
    I("s_mov_b64 exec, s[60:61]")
    I("s_waitcnt vmcnt(0)")
    barrier()
    stamp(4)
    lds_ = [f"buffer_load_dwordx4 v[80:83], v14, s[12:15], s27 offen sc1"]
    for i in range(4):
        lds_.append(f"buffer_load_dwordx4 v[{64+4*i}:{67+4*i}], v13, s[12:15], s26 offen offset:{SO1*i} sc1")
    poll(lds_, tp(80, 1) + tp(64, 4), sleep=slp1, live="s[60:61]")
    stamp(5)
    I(f"v_max_f32_dpp v84, v80, v80 quad_perm:[1,0,3,2] {DPPF}")
    I(f"v_max_f32_dpp v84, v84, v84 quad_perm:[2,3,0,1] {DPPF}")
    I("v_mov_b32 v85, v84")
    I("v_permlane16_swap_b32 v84, v85")
    I("v_max_f32 v84, v84, v85")
    I("v_mov_b32 v85, v84")
    I("v_permlane32_swap_b32 v84, v85")
    I("v_max_f32 v84, v84, v85")
    I("v_sub_f32 v80, v80, v84")
    I("v_exp_f32 v80, v80")
    I("v_mul_f32 v82, v80, v82")
    I(f"v_mul_f32_dpp v64, v80, v64 quad_perm:[0,0,0,0] {DPPF}")
    I(f"v_mul_f32_dpp v66, v80, v66 quad_perm:[0,0,0,0] {DPPF}")
    I(f"v_add_f32_dpp v82, v82, v82 quad_perm:[1,0,3,2] {DPPF}")
    for i in range(1, 4):
        I(f"v_fmac_f32_dpp v64, v80, v{64+4*i} quad_perm:[{i},{i},{i},{i}] {DPPF}")
        I(f"v_fmac_f32_dpp v66, v80, v{66+4*i} quad_perm:[{i},{i},{i},{i}] {DPPF}")
        if i == 1:
            I(f"v_add_f32_dpp v82, v82, v82 quad_perm:[2,3,0,1] {DPPF}")
        if i == 2:
            I("v_mov_b32 v83, v82")
    I("v_permlane32_swap_b32 v82, v83")
    I("v_permlane32_swap_b32 v64, v66")
    I("v_add_f32 v82, v82, v83")
    I("v_add_f32 v64, v64, v66")
    I("v_permlane16_swap_b32 v64, v82")
    I("v_add_f32 v64, v64, v82")
    I("v_mov_b32 v82, v64")
    I("v_permlane16_swap_b32 v64, v82")
    I("v_rcp_f32 v82, v82")
    I("v_mul_f32 v64, v64, v82")
    I("v_cvt_pk_bf16_f32 v64, v64, v64")
    I("v_mov_b32_dpp v64, v64 row_shr:4 row_mask:0x5 bank_mask:0xa")
    I("v_mov_b32_dpp v64, v64 row_shl:4 row_mask:0xa bank_mask:0x5")
    for t in range(4):
        for r in range(4):
            I(f"v_and_b32_dpp v{96+4*t+r}, v64, v{4+r} quad_perm:[{t},{t},{t},{t}] {DPPF}")
    for t in range(4):
        I(f"v_mfma_f32_16x16x32_bf16 v[48:51], v[{96+4*t}:{99+4*t}], v[{16+4*t}:{19+4*t}], {'0' if t == 0 else 'v[48:51]'}")
    I("s_cbranch_execz L_fin", flush=False)
    I("s_cmp_eq_u32 s3, 0")
    I("s_cbranch_scc1 L_fin", flush=False)
    I("ds_write_b128 v15, v[48:51]")
    I("s_waitcnt lgkmcnt(0)")
    I("s_barrier")
    if prof:
        I("s_add_u32 s3, s3, 4")
        stamps_out("s3")
    I("s_endpgm")
    a.label("L_fin")
    barrier()
    for w in range(3):
        I(f"ds_read_b128 v[{64+4*w}:{67+4*w}], v12 offset:{L_RL + 1024*w}")
    I("s_waitcnt lgkmcnt(1)")
    for r in range(4):
        I(f"v_add_f32 v{48+r}, v{48+r}, v{64+r}")
    for r in range(4):
        I(f"v_add_f32 v{48+r}, v{48+r}, v{68+r}")
    I("s_waitcnt lgkmcnt(0)")
    for r in range(4):
        I(f"v_add_f32 v{52+2*r}, v{48+r}, v{72+r}")
    I("buffer_store_dwordx4 v[52:55], v12, s[12:15], s29 offen sc1")
    I("buffer_store_dwordx4 v[56:59], v12, s[12:15], s29 offen offset:1024 sc1")
    stamp(6)
    poll([f"buffer_load_dwordx4 v[{64+4*e}:{67+4*e}], v46, s[12:15], s{24+e} offen sc1" for e in range(2)],
         tp(64, 2), sleep=slp2, live="s[60:61]")
    stamp(14)
    I("v_add_f32 v64, v64, v68")
    I("v_add_f32 v66, v66, v70")
    reduce2(64, 66)
    rbf(64)
    I("v_mul_f32 v64, v64, v63")
    rbf(64)
    I("v_add_f32 v64, v64, v62")
    I("v_cvt_pk_bf16_f32 v64, v64, v64")
    I("s_and_b64 exec, exec, s[62:63]")
    I("buffer_store_short v64, v61, s[52:55], 0 offen")
    I("s_cbranch_execz L_dry2", flush=False)
    I("s_cmp_lg_u32 s2, 0")
    I("s_cbranch_scc1 L_end2", flush=False)
    I("s_mov_b64 exec, 1")
    I("buffer_store_dword v53, off, s[12:15], 0 sc1")
    a.label("L_end2")
    stamp(7)
    stamps_out("4")
    diag_spin('H')
    I("s_endpgm")
    a.label("L_dry2")
    I("s_mov_b64 s[60:61], -1")
    stamp(3)
    I("s_branch L_tail2")

    a.raw(".p2align 6")
    a.label("L_gate")
    a.c("gate value for this workgroup's 4 outputs")
    I(f"s_add_u32 s26, s31, {OM}")
    I("v_cmp_gt_u32 s[56:57], 48, v0")
    I(f"v_add_u32 v47, {32*SO2}, v46")
    I("v_cndmask_b32 v47, v46, v47, s[56:57]")
    poll([f"buffer_load_dwordx4 v[{128+4*e}:{131+4*e}], v{46+e}, s[12:15], s26 offen sc1" for e in range(2)],
         tp(128, 2), sleep=64)
    I("v_cndmask_b32 v132, 0, v132, s[56:57]")
    I("v_cndmask_b32 v134, 0, v134, s[56:57]")
    I("v_add_f32 v128, v128, v132")
    I("v_add_f32 v130, v130, v134")
    reduce2(128, 130)
    rbf(128)
    I("v_lshlrev_b32 v63, 16, v63")
    I("v_lshlrev_b32 v62, 16, v62")
    I("v_add_f32 v128, v128, v63")
    rbf(128)
    I(f"v_mul_f32 v63, {f32(-LOG2E)}, v128")
    I("v_exp_f32 v63, v63")
    I("v_add_f32 v63, 1.0, v63")
    I("v_rcp_f32 v63, v63")
    I("v_mul_f32 v63, v63, v128")
    rbf(63)
    stamp(3)
    I("s_branch L_tail")

    a.raw(".p2align 6")
    a.label("L_mlp1")
    a.c("channel MLP layer 1: 64 hidden columns x 64 rows")
    I("v_and_b32 v13, 7, v0")
    I("v_or_b32 v116, v4, v6")
    I("v_or_b32 v117, v5, v7")
    for i in range(9):
        I(f"v_mov_b32 v{120+4*i}, 0")
        I(f"v_mov_b32 v{121+4*i}, 0")
    I("v_lshlrev_b32 v13, 4, v13")
    I("v_lshl_or_b32 v13, v2, 7, v13")
    I("s_lshl_b32 s26, s2, 10")
    I(f"s_add_u32 s26, s26, {HP}")
    ln_stats(32, 96, 48)
    ln_apply(32, 96, 48)
    ln_stats(32, 96, 54)
    ln_apply(40, 96, 48, n=4)
    ln_apply(40, 96, 54, n=4, dup=104)
    for i in range(8):
        I(f"v_and_b32 v{122+4*i}, v{104+i}, v116")
        I(f"v_and_b32 v{123+4*i}, v{104+i}, v117")
    for i in range(8):
        cx = '0' if i == 0 else 'v[32:35]'
        cy = '0' if i == 0 else 'v[36:39]'
        I(f"v_mfma_f32_16x16x32_bf16 v[32:35], v[{122+4*i}:{125+4*i}], v[{64+4*i}:{67+4*i}], {cx}")
        I(f"v_mfma_f32_16x16x32_bf16 v[36:39], v[{120+4*i}:{123+4*i}], v[{64+4*i}:{67+4*i}], {cy}")
    for r in range(4):
        I(f"v_mov_b32 v{65+2*r}, s21")
    for r in range(4):
        I(f"v_permlane16_swap_b32 v{32+r}, v{36+r}")
    for r in range(4):
        I(f"v_add_f32_dpp v{64+2*r}, v{36+r}, v{32+r} row_ror:8 {DPPF}")
    I("s_mov_b32 exec_lo, 0x00ff00ff")
    I("s_mov_b32 exec_hi, 0x00ff00ff")
    I("buffer_store_dwordx4 v[64:67], v13, s[12:15], s26 offen sc1")
    I("buffer_store_dwordx4 v[68:71], v13, s[12:15], s26 offen offset:512 sc1")
    I("s_mov_b64 exec, -1")
    stamp(3)
    I("s_branch L_tail")

    a.raw(".p2align 6")
    a.label("L_mlp2")
    a.c("channel MLP layer 2: 32 hidden rows x 128 columns")
    I("s_lshr_b32 s26, s24, 2")
    I("s_lshl_b32 s27, s25, 1")
    I("s_add_u32 s27, s27, s26")
    I("s_and_b32 s24, s24, 3")
    I("v_lshlrev_b32 v13, 1, v47")
    I("v_and_b32 v14, 1, v2")
    I("v_lshl_or_b32 v13, v14, 8, v13")
    I("s_lshl_b32 s26, s26, 7")
    I("v_lshlrev_b32 v14, 5, v2")
    I("v_lshl_or_b32 v14, v1, 8, v14")
    I("v_add_u32 v14, s26, v14")
    I("s_lshl_b32 s24, s24, 6")
    I("s_add_u32 s29, s24, s27")
    I(f"s_mul_i32 s29, s29, {SO2}")
    I(f"s_add_u32 s29, s29, {OM}")
    I("s_lshl_b32 s26, s25, 13")
    I(f"s_add_u32 s26, s26, {HP}")
    I("s_add_u32 s27, s26, 4096")
    I("v_lshlrev_b32 v15, 10, v0")
    I("s_movk_i32 s56, 0xff")
    I("s_mov_b32 s57, 0")
    poll(["buffer_load_dwordx4 v[128:131], v15, s[12:15], s26 offen offset:1008 sc1"], tp(128, 1), sleep=16, live="s[56:57]")
    I("s_mov_b64 exec, -1")
    poll([f"buffer_load_dwordx4 v[{128+4*k}:{131+4*k}], v12, s[12:15], s{26+(k>>2)} offen offset:{1024*(k&3)} sc1" for k in range(8)],
         tp(128, 8), sleep=16)
    sum8(128)
    I("v_cvt_pk_bf16_f32 v32, v128, v130")
    unpack(32, 36, 1)
    unpack(62, 40, 1)
    for r in range(2):
        I(f"v_add_f32 v{36+r}, v{36+r}, v{40+r}")
    I("v_cvt_pk_bf16_f32 v32, v36, v37")
    unpack(32, 36, 1)
    kk = -2.0 * math.sqrt(2.0 / math.pi) * LOG2E
    I(f"s_mov_b32 s26, {f32(kk * 0.044715)}")
    I(f"v_mov_b32 v44, {f32(kk)}")
    for r in range(2):
        I(f"v_mul_f32 v{40+r}, v{36+r}, v{36+r}")
    for r in range(2):
        I(f"v_fma_f32 v{40+r}, v{40+r}, s26, v44")
    for r in range(2):
        I(f"v_mul_f32 v{40+r}, v{40+r}, v{36+r}")
    for r in range(2):
        I(f"v_exp_f32 v{40+r}, v{40+r}")
    for r in range(2):
        I(f"v_add_f32 v{40+r}, 1.0, v{40+r}")
    for r in range(2):
        I(f"v_rcp_f32 v{40+r}, v{40+r}")
    for r in range(2):
        I(f"v_mul_f32 v{40+r}, v{40+r}, v{36+r}")
    I("v_cvt_pk_bf16_f32 v32, v40, v40")
    I("v_cvt_pk_bf16_f32 v33, v41, v41")
    I(f"ds_write_b64 v13, v[32:33] offset:{L_HL}")
    I("s_waitcnt lgkmcnt(0)")
    I(f"ds_read_b128 v[96:99], v14 offset:{L_HL}")
    I(f"ds_read_b128 v[100:103], v14 offset:{L_HL + 16}")
    for r in range(4):
        I(f"v_mov_b32 v{37+2*r}, s21")
    I("s_waitcnt lgkmcnt(0)")
    for t in range(8):
        for r in range(4):
            I(f"v_and_b32 v{160+4*t+r}, v{96+t}, v{4+r}")
    for t in range(8):
        I(f"v_mfma_f32_16x16x32_bf16 v[32:35], v[{160+4*t}:{163+4*t}], v[{64+4*t}:{67+4*t}], {'0' if t == 0 else 'v[32:35]'}")
    for r in range(4):
        I(f"v_mov_b32 v{36+2*r}, v{32+r}")
    I("buffer_store_dwordx4 v[36:39], v12, s[12:15], s29 offen sc1")
    I("buffer_store_dwordx4 v[40:43], v12, s[12:15], s29 offen offset:1024 sc1")
    stamp(3)
    I("s_branch L_tail")

    a.raw('.section .rodata,"a"')
    a.raw(".p2align 6")
    a.raw(f".amdhsa_kernel {NAME}")
    a.raw("  .amdhsa_next_free_vgpr 256")
    a.raw("  .amdhsa_next_free_sgpr 102")
    a.raw("  .amdhsa_accum_offset 256")
    a.raw("  .amdhsa_group_segment_fixed_size 0")
    a.raw("  .amdhsa_kernarg_size 104")
    a.raw("  .amdhsa_user_sgpr_count 2")
    a.raw("  .amdhsa_user_sgpr_kernarg_segment_ptr 1")
    a.raw("  .amdhsa_system_sgpr_workgroup_id_x 1")
    a.raw(".end_amdhsa_kernel")
    return a.text()


if __name__ == "__main__":
    out = sys.argv[1]
    kw = eval("dict(" + (sys.argv[2] if len(sys.argv) > 2 else "") + ")")
    open(out, "w").write(gen(**kw))
```

```python
import sys, struct, math
sys.path.insert(0, "exp")
from asmlib import Asm

NAME = "recurrent_scan__gqa_block_cached__mixer_channel_mlp__decode_kernel"
REF = "recurrent_scan__gqa_block_cached__mixer_channel_mlp__decode.s.ref"


def f32(x):
    return "0x%08x" % struct.unpack("<I", struct.pack("<f", x))[0]


QP = 0x10000
HP = 0xA0000
O1 = 0x100000
ML = 0x280000
O2 = 0x300000
OM = 0x400000
CTR = 0x500000
TS = 0x700000
WSSZ = 0x800000
L_Q = 0
L_OL = 1024
L_ML = 9216
L_RL = 9728
L_HL = 12800
L_FL = 13312
LOG2E = 1.4426950408889634
DPPF = "row_mask:0xf bank_mask:0xf"
NST = 16


def gen(prof=False, ntkv="nt", budget=20000, SO1=1024, SO2=2048, drys=True, dryt=True,
        slp1=0, slp2=0, slpq=0, qd=32, pace=12, ntk=None, ntv=None, diag=None, noq=False, nomlp=False, nowo=False, nowq=False, mlv=4, slpg=64, slpm=16, hprio=3, m2st=True, m2pl=True, gdef=True, m2sl=0, cmap=0, dyn=0, dlay=1, dmode=0, tlb=0, tlbpos=1, rot=0):
    if nomlp: mlv = 0
    ntk = ntkv if ntk is None else ntk
    ntv = ntkv if ntv is None else ntv
    a = Asm()
    I = a.I
    hdr = [l for l in open(REF).read().split("\n") if l.startswith(";") and "@launch" not in l]
    for l in hdr:
        a.raw(l)
    a.raw("; @launch grid=(256,1,1) block=(512,1,1) lds=16384")
    a.raw('.amdgcn_target "amdgcn-amd-amdhsa--gfx950"')
    a.raw(".text")
    a.raw(f".globl {NAME}")
    a.raw(".p2align 8")
    a.raw(f".type {NAME},@function")
    a.raw(f"{NAME}:")

    def stamp(i):
        if prof:
            I(f"s_memrealtime s[{64+2*i}:{65+2*i}]")

    def stamps_out(wavereg):
        if not prof:
            return
        I("s_mov_b64 exec, 1")
        I("s_lshl_b32 s30, s2, 3")
        I(f"s_add_u32 s30, s30, {wavereg}")
        I("s_lshl_b32 s30, s30, 7")
        I(f"s_add_u32 s30, s30, {TS}")
        I("s_waitcnt lgkmcnt(0)")
        for i in range(2 * NST):
            I(f"v_mov_b32 v{64+i}, s{64+i}")
        I("v_mov_b32 v100, 0")
        for i in range(NST // 2):
            I(f"buffer_store_dwordx4 v[{64+4*i}:{67+4*i}], v100, s[12:15], s30 offen offset:{16*i}")

    def diag_spin(role):
        if diag is None or diag[0] != role:
            return
        _, idx, wg, base = diag
        if wg is not None:
            I(f"s_cmp_lg_u32 s2, {wg}")
            I(f"s_cbranch_scc1 L_dg_end")
        I("s_waitcnt lgkmcnt(0)")
        I(f"s_cmp_eq_u32 s{64+2*idx}, 0")
        I(f"s_cbranch_scc1 L_dg_end")
        I(f"s_add_u32 s56, s{64+2*idx}, {base*100}")
        I("s_mov_b32 s57, 20000")
        a.label("L_dg")
        I("s_sleep 4")
        I("s_memrealtime s[58:59]")
        I("s_sub_u32 s57, s57, 1")
        I("s_cbranch_scc1 L_dg_end")
        I("s_waitcnt lgkmcnt(0)")
        I("s_sub_u32 s58, s58, s56")
        I("s_cmp_lt_i32 s58, 0")
        I("s_cbranch_scc1 L_dg")
        a.label("L_dg_end")

    def tagcalc(r=21):
        I(f"s_mul_i32 s{r}, s{r}, 0x9E3779B1")
        I(f"s_add_u32 s{r}, s{r}, 0x7F4A7C15")

    skipid = [0]

    def barrier():
        k = skipid[0]; skipid[0] += 1
        I(f"s_cbranch_execz L_sk{k}", flush=False)
        I("s_barrier")
        a.label(f"L_sk{k}", flush=False)

    def lanebits():
        I("v_bfe_u32 v1, v0, 3, 1")
        I("v_lshrrev_b32 v2, 4, v0")
        I("v_and_b32 v3, 15, v0")

    def masks():
        I("v_and_b32 v8, 1, v0")
        I("v_bfe_u32 v9, v0, 1, 2")
        I("v_lshlrev_b32 v8, 4, v8")
        I("v_mov_b32 v10, 0xffff")
        I("v_cmp_eq_u32 s[56:57], 0, v9")
        I("v_cmp_eq_u32 s[58:59], 1, v9")
        I("v_cmp_eq_u32 s[62:63], 2, v9")
        I("v_cmp_eq_u32 vcc, 3, v9")
        I("v_lshlrev_b32 v8, v8, v10")
        I("v_cndmask_b32 v4, 0, v8, s[56:57]")
        I("v_cndmask_b32 v5, 0, v8, s[58:59]")
        I("v_cndmask_b32 v6, 0, v8, s[62:63]")
        I("v_cndmask_b32 v7, 0, v8, vcc")

    I("s_cmp_ge_u32 s2, 0x100")
    I("s_cbranch_scc1 L_exit")
    I("s_load_dwordx16 s[32:47], s[0:1], 0")
    I("s_load_dwordx2 s[12:13], s[0:1], 96")
    I("s_load_dwordx8 s[48:55], s[0:1], 64")
    if prof:
        for i in range(2 * NST):
            I(f"s_mov_b32 s{64+i}, 0")
    stamp(0)
    I("v_lshrrev_b32 v1, 6, v0")
    I("v_and_b32 v0, 63, v0")
    I("v_readfirstlane_b32 s3, v1")
    I("s_and_b32 s20, s2, 7")
    I("s_lshl_b32 s20, s20, 5")
    I("s_lshr_b32 s25, s2, 3")
    I("s_add_u32 s20, s20, s25")
    if cmap == 1:
        I("s_mov_b32 s20, s2")
    I(f"s_mov_b32 s14, {WSSZ}")
    I("s_mov_b32 s15, 0x00020000")
    I("s_mov_b32 s7, 0x00020000")
    I("s_mov_b32 s11, 0x00020000")
    I("s_sub_u32 s24, s3, 4")
    I(f"s_cmp_ge_u32 s24, {3 if drys else 4}")
    I("s_cbranch_scc1 L_stream")
    I("s_setprio 3")
    I("s_cmp_eq_u32 s3, 4")
    I("s_cbranch_scc1 L_h0a")
    I("v_mov_b32 v8, 0")
    I(f"v_mov_b32 v9, {L_FL}")
    I("ds_write_b32 v9, v8")
    I("s_waitcnt lgkmcnt(0)")
    I("s_barrier")
    I("s_branch L_hinit")
    a.label("L_h0a")
    lanebits()
    I("v_and_b32 v12, 7, v0")
    I("v_lshl_or_b32 v12, v2, 3, v12")
    I("v_lshlrev_b32 v12, 5, v12")
    I("v_lshl_or_b32 v12, v1, 10, v12")
    I("v_lshlrev_b32 v13, 5, v2")
    I("v_lshl_or_b32 v13, v1, 10, v13")
    I("v_lshlrev_b32 v14, 4, v3")
    I("v_lshl_or_b32 v14, v2, 17, v14")
    I("v_mov_b32 v15, 0")
    I("s_and_b32 s24, s2, 7")
    I("s_lshl_b32 s26, s24, 19")
    I("s_lshl_b32 s27, s25, 8")
    I("s_add_u32 s26, s26, s27")
    I("s_lshl_b32 s27, s24, 7")
    I("s_mov_b32 s6, 2048")
    I(f"s_mov_b32 s10, {0 if nowq else 63*8192+256}")
    I("s_mov_b32 s28, 0")
    I("s_waitcnt lgkmcnt(0)")
    stamp(8)
    I("s_mov_b32 s4, s32")
    I("s_mov_b32 s5, s33")
    I("s_add_u32 s8, s38, s26")
    I("s_addc_u32 s9, s39, 0")
    a.vm_reset()
    if dyn:
        assert cmap == 1
        I("s_lshl_b32 s29, s24, 5")
        I("s_add_u32 s29, s29, s25")
        I("s_lshl_b32 s29, s29, 8")
        I(f"s_add_u32 s29, s29, {CTR}")
        I("s_cmp_lt_u32 s24, 2")
        I("s_cselect_b64 exec, 1, 0")
        I("s_cbranch_execz L_nz", flush=False)
        I("buffer_store_dword v15, off, s[12:15], s29 sc1")
        a.label("L_nz", flush=False)
        I("s_mov_b64 exec, -1")
    I("buffer_load_dwordx4 v[32:35], v12, s[4:7], 0 offen", vmid="x")
    I("buffer_load_dwordx4 v[36:39], v12, s[4:7], 0 offen offset:16", vmid="x")
    I("buffer_load_dwordx4 v[40:43], v13, s[4:7], s27 offen", vmid="xa")
    I("buffer_load_dwordx4 v[44:47], v13, s[4:7], s27 offen offset:16", vmid="xa")
    for t in range(16):
        I(f"buffer_load_dwordx4 v[{64+4*t}:{67+4*t}], v14, s[8:11], s28 offen nt", vmid=f"wq{t}")
        if t < 15:
            I("s_add_u32 s28, s28, 0x2000")
    I("s_barrier")
    I("s_load_dword s31, s[12:13], 0")
    I("s_branch L_h0b")
    vm_h0 = list(a.vm)

    a.label("L_stream")
    a.c("stream wave")
    I("s_lshl_b32 s24, s3, 12")
    I("v_and_b32 v2, 3, v0")
    I("v_lshlrev_b32 v2, 10, v2")
    I("v_bfe_u32 v1, v0, 2, 2")
    I("v_lshl_or_b32 v2, v1, 8, v2")
    I("v_lshrrev_b32 v1, 4, v0")
    I("v_lshl_or_b32 v2, v1, 4, v2")
    I("v_add_u32 v2, s24, v2")
    I("v_lshl_add_u32 v3, v0, 4, s24")
    if tlb:
        I(f"v_lshlrev_b32 v20, {tlb}, v0")
    if dyn:
        I("s_lshr_b32 s29, s20, 4")
        I("s_lshl_b32 s30, s29, 2")
        I("s_add_u32 s30, s30, s3")
        I("s_lshl_b32 s30, s30, 8")
        I(f"s_add_u32 s30, s30, {CTR}")
        I("s_lshl_b32 s29, s29, 23")
        I("s_mov_b32 s6, 0x800000")
        I("s_mov_b32 s10, 0x800000")
        I("s_and_b32 s23, s20, 15")
        I("s_mov_b32 s56, s23")
        I(f"s_mul_i32 s23, s23, {dyn * 0x4000 if dlay == 0 else 0x80000}")
        I("s_mov_b32 s18, 0")
        I("s_mov_b32 s19, 0x00020000")
    else:
        I("s_lshl_b32 s29, s20, 19")
        I("s_mov_b32 s6, 0x80000")
        I("s_mov_b32 s10, 0x80000")
        if rot == 0:
            I("s_mov_b32 s23, 0")
        elif rot == 1:
            I("s_lshr_b32 s23, s2, 6")
            I("s_lshl_b32 s23, s23, 17")
        elif rot == 2:
            I("s_lshr_b32 s23, s2, 3")
            I("s_lshl_b32 s23, s23, 14")
        elif rot == 3:
            I("s_mul_i32 s23, s2, 5")
            I("s_and_b32 s23, s23, 31")
            I("s_lshl_b32 s23, s23, 14")
        elif rot == 4:
            I("s_and_b32 s23, s2, 7")
            I("s_lshl_b32 s23, s23, 16")
        elif rot == 5:
            I("s_lshr_b32 s23, s2, 3")
            I("s_and_b32 s23, s23, 1")
            I("s_lshl_b32 s23, s23, 14")
    I("s_cmp_eq_u32 s3, 7")
    I("s_cselect_b64 exec, 0, -1")
    def kreg(s, c): return f"v[{64+32*s+4*c}:{67+32*s+4*c}]"
    def vreg(s, r): return f"v[{80+32*s+4*r}:{83+32*s+4*r}]"

    def issueK(s, sk=True, tk=None):
        k = skipid[0]; skipid[0] += 1
        if drys and sk:
            I(f"s_cbranch_execz L_sk{k}", flush=False)
        if tk is not None:
            I("s_mov_b64 exec, 1")
            I(f"buffer_atomic_add v{tk}, off, s[16:19], 0 sc0" if tk >= 160 else f"buffer_atomic_add v{tk}, off, s[16:19], 0")
            I("s_mov_b64 exec, -1")
        for c in range(4):
            I(f"buffer_load_dwordx4 {kreg(s, c)}, v2, s[4:7], s23 offen offset:{64*c} {ntk}")
        if drys and sk:
            a.label(f"L_sk{k}", flush=False)

    def issueV(s, sk=True):
        k = skipid[0]; skipid[0] += 1
        if drys and sk:
            I(f"s_cbranch_execz L_sk{k}", flush=False)
        for r in range(4):
            I(f"buffer_load_dwordx4 {vreg(s, r)}, v3, s[8:11], s23 offen offset:{1024*r} {ntv}")
        if drys and sk:
            a.label(f"L_sk{k}", flush=False)
        I("s_add_u32 s23, s23, 0x4000")
        if rot:
            I("s_and_b32 s23, s23, 0x7ffff")

    for r in (36, 37, 40, 41, 44, 45, 48, 49, 52, 53, 25, 28, 29, 30, 31, 32, 33, 34, 35):
        I(f"v_mov_b32 v{r}, 0")
    I("v_mov_b32 v24, 0xff7fffff")
    I(f"s_mov_b32 s25, {f32(128 ** -0.5 * LOG2E)}")
    I("v_and_b32 v26, 1, v0")
    I("v_cmp_eq_u32 vcc, 1, v26")
    I("v_mov_b32 v54, 0x0c0c0100")
    I("v_mov_b32 v27, 0x01000c0c")
    I("v_cndmask_b32 v54, v54, v27, vcc")
    I("v_mov_b32 v55, 0x0c0c0302")
    I("v_mov_b32 v27, 0x03020c0c")
    I("v_cndmask_b32 v55, v55, v27, vcc")
    I("v_and_b32 v26, 2, v0")
    I("v_cmp_eq_u32 vcc, 2, v26")
    I("v_mov_b32 v27, 0x0c0c0c0c")
    I("v_bfe_u32 v26, v0, 2, 2")
    I("v_cndmask_b32 v56, v27, v54, vcc")
    I("v_cndmask_b32 v57, v27, v55, vcc")
    I("v_cndmask_b32 v54, v54, v27, vcc")
    I("v_cndmask_b32 v55, v55, v27, vcc")
    I("v_lshrrev_b32 v27, 4, v0")
    I("v_lshlrev_b32 v62, 8, v26")
    I("v_lshl_or_b32 v62, v27, 4, v62")
    I("v_lshlrev_b32 v63, 4, v0")
    I("s_lshl_b32 s24, s3, 9")
    I(f"s_add_u32 s24, s24, {L_OL}")
    I("v_lshl_add_u32 v59, v0, 3, s24")
    I("s_lshl_b32 s24, s3, 3")
    I(f"s_add_u32 s24, s24, {L_ML}")
    I("v_lshl_add_u32 v1, v26, 5, s24")
    I("s_lshl_b32 s24, s3, 11")
    I(f"s_add_u32 s24, s24, {L_OL}")
    I("v_and_b32 v0, 15, v0")
    I("v_lshlrev_b32 v0, 5, v0")
    I("v_lshl_or_b32 v0, v27, 9, v0")
    I("v_add_u32 v0, s24, v0")
    I("s_lshr_b32 s24, s20, 4")
    I("s_lshl_b32 s24, s24, 2")
    I("s_add_u32 s24, s24, s3")
    I("s_lshl_b32 s24, s24, 4")
    I("s_and_b32 s26, s20, 15")
    I("s_add_u32 s24, s24, s26")
    I(f"s_mul_i32 s27, s24, {SO1}")
    I(f"s_add_u32 s27, s27, {O1}")
    I("s_lshl_b32 s28, s24, 4")
    I(f"s_add_u32 s28, s28, {ML}")
    I("s_waitcnt lgkmcnt(0)")
    I("s_add_u32 s4, s34, s29")
    I("s_addc_u32 s5, s35, 0")
    I("s_add_u32 s8, s36, s29")
    I("s_addc_u32 s9, s37, 0")
    if dyn:
        I("s_add_u32 s16, s12, s30")
        I("s_addc_u32 s17, s13, 0")

    I("s_load_dword s21, s[12:13], 0")
    I("s_barrier")
    if drys:
        I("s_cbranch_execz L_pro", flush=False)
    def tlbw():
        I("s_cmp_lg_u32 s3, 0")
        I("s_cbranch_scc1 L_notlb", flush=False)
        I("buffer_load_dword v21, v20, s[4:7], 0 offen nt")
        I("buffer_load_dword v22, v20, s[8:11], 0 offen nt")
        a.label("L_notlb", flush=False)
    if tlb and tlbpos == 0:
        tlbw()
    issueK(0, False); issueV(0, False)
    stamp(6)
    issueK(1, False); issueV(1, False)
    if tlb and tlbpos == 1:
        tlbw()
    stamp(7)
    for s in range(2, 6):
        I(f"s_waitcnt vmcnt({pace})")
        issueK(s, False)
        I(f"s_waitcnt vmcnt({pace})")
        issueV(s, False)
    I("s_waitcnt lgkmcnt(0)")
    tagcalc()
    stamp(1)
    I("s_barrier")
    stamp(2)
    a.label("L_pro", flush=False)
    for c in range(4):
        I(f"ds_read_b128 v[{4+4*c}:{7+4*c}], v62 offset:{L_Q + 64*c}")
    I("s_cmp_eq_u32 s3, 7")
    if dyn:
        I(f"s_cselect_b32 s26, 1, {dyn - 8}")
        I(f"s_cselect_b32 s30, 0, {16 * (32 - dyn)}")
    else:
        I("s_cselect_b32 s26, 1, 8")
    I("s_waitcnt lgkmcnt(0)")

    def proc(s, wk=None, wv=None, iss=None, vearly=True, tick=False):
        a.c(f"unit in slot {s}")
        if wk is not None:
            I(f"s_waitcnt vmcnt({wk})")
        if tick:
            I(f"v_readfirstlane_b32 s22, v{160 + (s + 2) % 3}")
        for c in range(4):
            I(f"v_mfma_f32_16x16x32_bf16 v[20:23], {kreg(s, c)}, v[{4+4*c}:{7+4*c}], {'0' if c == 0 else 'v[20:23]'}")
            if tick and c == 0:
                I("s_mov_b32 s31, s6")
                if dmode:
                    I("s_mov_b32 s22, s56")
                    I("s_cmp_gt_i32 s26, 0")
                    I("s_cselect_b32 s57, 0, 16")
                    I("s_add_u32 s56, s56, s57")
                I("s_cmp_lt_u32 s22, s30")
                I("s_cselect_b32 s24, s6, 0")
                if dlay == 0:
                    I("s_lshl_b32 s22, s22, 14")
                    I(f"s_add_u32 s22, s22, {16 * dyn * 0x4000}")
                else:
                    I("s_and_b32 s29, s22, 15")
                    I("s_lshl_b32 s29, s29, 19")
                    I("s_lshr_b32 s22, s22, 4")
                    I("s_lshl_b32 s22, s22, 14")
                    I("s_add_u32 s22, s22, s29")
                    I(f"s_add_u32 s22, s22, {dyn * 0x4000}")
            if tick and c == 1:
                I("s_cmp_gt_i32 s26, 0")
                I("s_cselect_b32 s23, s23, s22")
                I("s_cselect_b32 s6, s6, s24")
                I("s_mov_b32 s10, s6")
            if tick and c == 2:
                I("s_cmp_lt_i32 s26, 3")
                I(f"s_cselect_b32 s18, {'0' if dmode == 1 else 's6'}, 0")
                I("s_sub_u32 s26, s26, 1")
                I(f"v_mov_b32 v{160 + (s + 1) % 3}, 1")
        if iss is not None:
            issueK(iss, tk=(160 + (s + 1) % 3) if tick else (0 if dyn else None))
        I("v_max3_f32 v26, v20, v21, v22")
        I("v_max_f32 v26, v26, v23")
        I("v_mov_b32 v27, v26")
        I("v_permlane32_swap_b32 v26, v27")
        I("v_max_f32 v26, v26, v27")
        I("v_mov_b32 v27, v26")
        I("v_permlane16_swap_b32 v26, v27")
        I("v_max_f32 v26, v26, v27")
        I("v_mul_f32 v26, s25, v26")
        I("v_max_f32 v26, v24, v26")
        I("v_sub_f32 v62, v24, v26")
        for r in range(4):
            I(f"v_fma_f32 v{20+r}, v{20+r}, s25, -v26")
        I("v_exp_f32 v62, v62")
        I("v_exp_f32 v20, v20")
        I("v_exp_f32 v21, v21")
        I("v_mov_b32_dpp v58, v62 row_newbcast:0 row_mask:0x1 bank_mask:0xf")
        I("v_exp_f32 v22, v22")
        I("v_exp_f32 v23, v23")
        I("v_mov_b32_dpp v58, v62 row_newbcast:4 row_mask:0x2 bank_mask:0xf")
        I("v_mov_b32 v24, v26")
        I("v_cvt_pk_bf16_f32 v60, v20, v21")
        I("v_mov_b32_dpp v58, v62 row_newbcast:8 row_mask:0x4 bank_mask:0xf")
        I("v_cvt_pk_bf16_f32 v61, v22, v23")
        I("v_add_f32 v27, v20, v21")
        I("v_mov_b32_dpp v58, v62 row_newbcast:12 row_mask:0x8 bank_mask:0xf")
        I("v_add_f32 v26, v22, v23")
        for r in range(4):
            u = 60 + (r >> 1)
            I(f"v_perm_b32 v{38+4*r}, v{u}, v{u}, v{54 + (r & 1)}")
            I(f"v_perm_b32 v{39+4*r}, v{u}, v{u}, v{56 + (r & 1)}")
        I("v_add_f32 v27, v27, v26")
        for r in range(4):
            I(f"v_pk_mul_f32 v[{28+2*r}:{29+2*r}], v[{28+2*r}:{29+2*r}], v[58:59] op_sel_hi:[1,0]")
        I("v_fma_f32 v25, v25, v62, v27")
        if wv is not None:
            I(f"s_waitcnt vmcnt({wv})")
        if iss is not None and vearly:
            issueV(iss)
        for r in range(4):
            I(f"v_mfma_f32_16x16x32_bf16 v[28:31], v[{38+4*r}:{41+4*r}], {vreg(s, r)}, v[28:31]")
            I(f"v_mfma_f32_16x16x32_bf16 v[32:35], v[{36+4*r}:{39+4*r}], {vreg(s, r)}, v[32:35]")
        if iss is not None and not vearly:
            issueV(iss)

    proc(0, iss=0, vearly=False)
    proc(1, iss=1, vearly=False)
    proc(2)
    proc(3)
    if dyn:
        proc(4, 30, 26)
        proc(5, 22, 18)
        stamp(3)
        a.label("L_loop")
        proc(0, 13, 14, iss=2, tick=True)
        I("s_cmp_eq_u32 s31, 0")
        I("s_cbranch_scc1 L_epi")
        proc(1, 13, 14, iss=0, tick=True)
        I("s_cmp_eq_u32 s31, 0")
        I("s_cbranch_scc1 L_epi")
        proc(2, 13, 14, iss=1, tick=True)
        I("s_cmp_eq_u32 s31, 0")
        I("s_cbranch_scc1 L_epi")
        I("s_cmp_gt_i32 s26, -300")
        I("s_cbranch_scc1 L_loop")
    else:
        proc(4, 28, 24)
        proc(5, 20, 16)
        stamp(3)
        a.label("L_loop")
        I("s_cmp_eq_u32 s26, 0")
        I("s_cselect_b32 s6, 0, s6")
        I("s_cselect_b32 s10, 0, s10")
        proc(0, 12, 12, iss=2)
        proc(1, 12, 12, iss=0)
        I("s_cmp_eq_u32 s26, 0")
        I("s_cbranch_scc1 L_epi")
        proc(2, 12, 12, iss=1)
        I("s_sub_u32 s26, s26, 1")
        I("s_branch L_loop")
    a.label("L_epi")
    stamp(4)
    if prof and dyn:
        I(f"s_sub_u32 s80, {dyn - 2}, s26")
    I("v_mov_b32 v27, v25")
    I("ds_write_b128 v0, v[28:31]")
    I("v_permlane32_swap_b32 v25, v27")
    I("ds_write_b128 v0, v[32:35] offset:16")
    I("v_add_f32 v25, v25, v27")
    I("v_mov_b32 v27, v25")
    I("s_lshl_b32 s24, s3, 5")
    I(f"s_add_u32 s24, s24, {L_ML}")
    I("v_permlane16_swap_b32 v25, v27")
    I("v_add_f32 v25, v25, v27")
    I("v_mov_b32 v26, s24")
    I("ds_write_b64 v1, v[24:25]")
    I("v_mov_b32 v21, s21")
    I("v_mov_b32 v23, s21")
    I("v_mov_b32 v45, s21")
    I("v_mov_b32 v47, s21")
    I("s_waitcnt lgkmcnt(0)")
    barrier()
    I("ds_read_b128 v[4:7], v26")
    I("ds_read_b128 v[8:11], v26 offset:16")
    for w in range(4):
        I(f"ds_read_b64 v[{12+2*w}:{13+2*w}], v59 offset:{2048*w}")
    I("s_waitcnt lgkmcnt(4)")
    I("v_max3_f32 v44, v4, v6, v8")
    I("v_max_f32 v44, v44, v10")
    for w in range(4):
        I(f"v_sub_f32 v{4+2*w}, v{4+2*w}, v44")
    for w in range(4):
        I(f"v_exp_f32 v{4+2*w}, v{4+2*w}")
    I("v_mul_f32 v46, v4, v5")
    I("s_waitcnt lgkmcnt(0)")
    I("v_mul_f32 v20, v4, v12")
    I("v_mul_f32 v22, v4, v13")
    for w in range(1, 4):
        I(f"v_fmac_f32 v20, v{4+2*w}, v{12+2*w}")
        I(f"v_fmac_f32 v22, v{4+2*w}, v{13+2*w}")
        I(f"v_fmac_f32 v46, v{4+2*w}, v{5+2*w}")
    if drys:
        I("s_cbranch_execz L_hinit", flush=False)
    I("buffer_store_dwordx4 v[20:23], v63, s[12:15], s27 offen sc1")
    I("s_mov_b64 exec, 1")
    I("buffer_store_dwordx4 v[44:47], off, s[12:15], s28 sc1")
    stamp(5)
    stamps_out("s3")
    diag_spin('S')
    a.label("L_exit", flush=False)
    I("s_endpgm")

    def red_b(v, t, op="v_add_f32"):
        I(f"{op}_dpp v{v}, v{v}, v{v} quad_perm:[1,0,3,2] {DPPF}")
        I(f"{op}_dpp v{v}, v{v}, v{v} quad_perm:[2,3,0,1] {DPPF}")
        I(f"{op}_dpp v{v}, v{v}, v{v} row_half_mirror {DPPF}")
        I(f"v_mov_b32 v{t}, v{v}")
        I(f"v_permlane16_swap_b32 v{v}, v{t}")
        I(f"{op} v{v}, v{v}, v{t}")
        I(f"v_mov_b32 v{t}, v{v}")
        I(f"v_permlane32_swap_b32 v{v}, v{t}")
        I(f"{op} v{v}, v{v}, v{t}")

    def unpack(src, f, n=8):
        for i in range(n):
            I(f"v_lshlrev_b32 v{f+2*i}, 16, v{src+i}")
            I(f"v_and_b32 v{f+2*i+1}, 0xffff0000, v{src+i}")

    def ln_stats(src, f, t):
        unpack(src, f)
        I(f"v_pk_add_f32 v[{t}:{t+1}], v[{f}:{f+1}], v[{f+2}:{f+3}]")
        I(f"v_pk_add_f32 v[{t+2}:{t+3}], v[{f+4}:{f+5}], v[{f+6}:{f+7}]")
        I(f"v_pk_add_f32 v[{t}:{t+1}], v[{t}:{t+1}], v[{f+8}:{f+9}]")
        I(f"v_pk_add_f32 v[{t+2}:{t+3}], v[{t+2}:{t+3}], v[{f+10}:{f+11}]")
        I(f"v_pk_add_f32 v[{t}:{t+1}], v[{t}:{t+1}], v[{f+12}:{f+13}]")
        I(f"v_pk_add_f32 v[{t+2}:{t+3}], v[{t+2}:{t+3}], v[{f+14}:{f+15}]")
        I(f"v_pk_add_f32 v[{t}:{t+1}], v[{t}:{t+1}], v[{t+2}:{t+3}]")
        I(f"v_add_f32 v{t}, v{t}, v{t+1}")
        red_b(t, t + 1)
        I(f"v_mul_f32 v{t}, {f32(1/512)}, v{t}")
        for i in range(8):
            I(f"v_pk_add_f32 v[{f+2*i}:{f+2*i+1}], v[{f+2*i}:{f+2*i+1}], v[{t}:{t+1}] op_sel_hi:[1,0] neg_lo:[0,1] neg_hi:[0,1]")
        I(f"v_pk_mul_f32 v[{t+2}:{t+3}], v[{f}:{f+1}], v[{f}:{f+1}]")
        I(f"v_pk_mul_f32 v[{t+4}:{t+5}], v[{f+2}:{f+3}], v[{f+2}:{f+3}]")
        for i in range(2, 8):
            d = t + 2 + 2 * (i & 1)
            I(f"v_pk_fma_f32 v[{d}:{d+1}], v[{f+2*i}:{f+2*i+1}], v[{f+2*i}:{f+2*i+1}], v[{d}:{d+1}]")
        I(f"v_pk_add_f32 v[{t+2}:{t+3}], v[{t+2}:{t+3}], v[{t+4}:{t+5}]")
        I(f"v_add_f32 v{t+2}, v{t+2}, v{t+3}")
        red_b(t + 2, t + 3)
        I(f"v_mul_f32 v{t+2}, {f32(1/512)}, v{t+2}")
        I(f"v_cvt_pk_bf16_f32 v{t+1}, v{t}, v{t+2}")
        I(f"v_lshlrev_b32 v{t}, 16, v{t+1}")
        I(f"v_and_b32 v{t+2}, 0xffff0000, v{t+1}")
        I(f"v_add_f32 v{t+2}, {f32(1e-5)}, v{t+2}")
        I(f"v_cvt_pk_bf16_f32 v{t+2}, v{t+2}, v{t+2}")
        I(f"v_and_b32 v{t+2}, 0xffff0000, v{t+2}")
        I(f"v_sqrt_f32 v{t+2}, v{t+2}")
        I(f"v_cvt_pk_bf16_f32 v{t+2}, v{t+2}, v{t+2}")
        I(f"v_and_b32 v{t+2}, 0xffff0000, v{t+2}")
        I(f"v_rcp_f32 v{t+2}, v{t+2}")

    def ln_apply(src, f, t, n=8, dup=None):
        unpack(src, f, n)
        for i in range(n):
            I(f"v_pk_add_f32 v[{f+2*i}:{f+2*i+1}], v[{f+2*i}:{f+2*i+1}], v[{t}:{t+1}] op_sel_hi:[1,0] neg_lo:[0,1] neg_hi:[0,1]")
        for i in range(n):
            I(f"v_cvt_pk_bf16_f32 v{src+i}, v{f+2*i}, v{f+2*i+1}")
        unpack(src, f, n)
        for i in range(n):
            I(f"v_pk_mul_f32 v[{f+2*i}:{f+2*i+1}], v[{f+2*i}:{f+2*i+1}], v[{t+2}:{t+3}] op_sel_hi:[1,0]")
        if dup is None:
            for i in range(n):
                I(f"v_cvt_pk_bf16_f32 v{src+i}, v{f+2*i}, v{f+2*i+1}")
        else:
            for i in range(2 * n):
                I(f"v_cvt_pk_bf16_f32 v{dup+i}, v{f+i}, v{f+i}")

    a.raw(".p2align 6")
    a.label("L_h0b")
    stamp(9)
    masks()
    I("v_lshrrev_b32 v13, 5, v0")
    I("v_lshlrev_b32 v13, 13, v13")
    I("v_and_b32 v14, 31, v0")
    I("v_lshl_or_b32 v13, v14, 4, v13")
    I("s_lshl_b32 s29, s25, 14")
    I("s_lshl_b32 s30, s24, 10")
    I("s_add_u32 s29, s29, s30")
    I(f"s_add_u32 s29, s29, {QP}")
    I("s_waitcnt lgkmcnt(0)")
    tagcalc(31)
    I("v_mov_b32 v57, s31")
    I("v_mov_b32 v59, s31")
    I("v_mov_b32 v61, s31")
    I("v_mov_b32 v63, s31")
    a.c("q producer")
    a.vm_reset(vm_h0)
    a.vm_wait("x")
    stamp(10)
    ln_stats(32, 128, 48)
    a.vm_wait("xa")
    ln_apply(40, 128, 48, dup=144)
    for t in range(16):
        for r in range(4):
            I(f"v_and_b32 v{160+4*t+r}, v{144+t}, v{4+r}")
    stamp(11)
    for t in range(16):
        ab = 160 + 4 * t
        a.vm_wait(f"wq{t}")
        if t == 0:
            stamp(12)
        I(f"v_mfma_f32_16x16x32_bf16 v[48:51], v[{ab}:{ab+3}], v[{64+4*t}:{67+4*t}], {'0' if t == 0 else 'v[48:51]'}")
    I("v_mov_b32 v56, v48")
    I("v_mov_b32 v58, v49")
    I("v_mov_b32 v60, v50")
    I("v_mov_b32 v62, v51")
    I("buffer_store_dwordx4 v[56:59], v13, s[12:15], s29 offen sc1")
    I("buffer_store_dwordx4 v[60:63], v13, s[12:15], s29 offen offset:512 sc1")
    I("v_mov_b32 v8, 1")
    I(f"v_mov_b32 v9, {L_FL}")
    I("ds_write_b32 v9, v8")
    stamp(1)

    a.label("L_hinit")
    I("s_mov_b64 exec, -1")
    I("s_setprio 3")
    I("s_sub_u32 s3, s3, 4")
    I("s_waitcnt lgkmcnt(0)")
    I("s_load_dword s21, s[12:13], 0")
    I(f"s_mov_b32 s22, {budget}")
    lanebits()
    I("v_lshlrev_b32 v12, 4, v0")
    I("s_and_b32 s24, s2, 7")
    I("s_lshr_b32 s25, s2, 3")
    I("s_lshr_b32 s23, s2, 5")
    I("s_lshl_b32 s23, s23, 3")
    I("s_add_u32 s23, s23, s24")
    I("s_lshl_b32 s28, s23, 2")
    I("s_add_u32 s28, s28, s3")
    I("s_lshl_b32 s29, s28, 14")
    I("s_and_b32 s30, s25, 3")
    I("s_lshl_b32 s31, s30, 8")
    I("s_add_u32 s29, s29, s31")
    I("s_add_u32 s16, s40, s29")
    I("s_addc_u32 s17, s41, 0")
    I(f"s_mov_b32 s18, {15*1024+256}")
    I("s_mov_b32 s19, 0x00020000")
    I("v_and_b32 v15, 1, v2")
    I("v_lshlrev_b32 v15, 13, v15")
    I("v_lshrrev_b32 v14, 1, v2")
    I("v_lshl_or_b32 v15, v14, 10, v15")
    I("v_lshl_or_b32 v15, v3, 4, v15")
    I("s_movk_i32 s26, 0x1000")
    for t in range(0 if nowo else 4):
        I(f"buffer_load_dwordx4 v[{16+4*t}:{19+4*t}], v15, s[16:19], {'s26' if t >= 2 else '0'} offen offset:{2048*(t&1)} nt")
    I("s_mov_b32 s4, s32")
    I("s_mov_b32 s5, s33")
    I("s_mov_b32 s6, 2048")
    I("s_mov_b32 s54, 2048")
    I("s_mov_b32 s55, 0x00020000")
    I("v_mov_b32 v61, 0")
    I("s_cmp_eq_u32 s3, 0")
    I("s_cbranch_scc1 L_igate")
    I("s_cmp_eq_u32 s3, 3")
    I("s_cbranch_scc1 L_qw")
    I(f"s_cmp_ge_u32 s2, {0 if mlv < 1 else 224}")
    I("s_cbranch_scc1 L_qw")
    I("s_cmp_eq_u32 s3, 1")
    I("s_cbranch_scc1 L_imlp1")
    I("s_lshr_b32 s26, s24, 2")
    I("s_lshl_b32 s27, s25, 1")
    I("s_add_u32 s27, s27, s26")
    I("s_lshl_b32 s29, s27, 15")
    I("s_and_b32 s26, s24, 3")
    I("s_lshl_b32 s26, s26, 8")
    I("s_add_u32 s29, s29, s26")
    I("s_add_u32 s8, s48, s29")
    I("s_addc_u32 s9, s49, 0")
    I(f"s_mov_b32 s10, {31*1024+256}")
    I("v_lshlrev_b32 v14, 4, v3")
    I("v_lshl_or_b32 v14, v2, 13, v14")
    I("s_movk_i32 s29, 0x1000")
    for t in range(8):
        I(f"buffer_load_dwordx4 v[{64+4*t}:{67+4*t}], v14, s[8:11], {'s29' if t >= 4 else '0'} offen offset:{1024*(t&3)} nt")
    I("s_lshl_b32 s29, s25, 7")
    I("s_add_u32 s16, s46, s29")
    I("s_addc_u32 s17, s47, 0")
    I("s_mov_b32 s18, 128")
    I("v_and_b32 v47, 7, v0")
    I("v_lshlrev_b32 v47, 4, v47")
    I("v_lshl_or_b32 v47, v1, 3, v47")
    I("v_lshrrev_b32 v14, 5, v0")
    I("v_lshl_or_b32 v47, v14, 2, v47")
    I("buffer_load_dword v62, v47, s[16:19], 0 offen")
    I("s_branch L_qw")
    a.label("L_imlp1")
    I("v_and_b32 v13, 7, v0")
    I("v_lshl_or_b32 v14, v2, 3, v13")
    I("v_lshlrev_b32 v14, 5, v14")
    I("v_lshl_or_b32 v14, v1, 10, v14")
    I("buffer_load_dwordx4 v[32:35], v14, s[4:7], 0 offen")
    I("buffer_load_dwordx4 v[36:39], v14, s[4:7], 0 offen offset:16")
    I("v_bfe_u32 v14, v0, 2, 1")
    I("v_lshl_or_b32 v14, v2, 1, v14")
    I("v_lshlrev_b32 v14, 4, v14")
    I("v_lshl_or_b32 v14, v1, 10, v14")
    I("s_lshl_b32 s26, s24, 7")
    I("buffer_load_dwordx4 v[40:43], v14, s[4:7], s26 offen")
    I(f"s_mul_i32 s26, s24, {64*3584}")
    I("s_lshl_b32 s27, s25, 7")
    I("s_add_u32 s26, s26, s27")
    I("s_add_u32 s8, s44, s26")
    I("s_addc_u32 s9, s45, 0")
    I(f"s_mov_b32 s10, {63*3584+128}")
    I("v_lshl_or_b32 v14, v2, 1, v1")
    I(f"v_mul_u32_u24 v14, {8*3584}, v14")
    I("v_lshl_add_u32 v14, v13, 4, v14")
    I("s_mov_b32 s26, 0")
    for i in range(8):
        I(f"buffer_load_dwordx4 v[{64+4*i}:{67+4*i}], v14, s[8:11], s26 offen offset:{3584*(i & 1)} nt")
        if i & 1 and i < 7:
            I("s_add_u32 s26, s26, 7168")
    I("s_branch L_qw")
    a.label("L_igate")
    I("s_bfe_u32 s26, s2, 0x20001")
    I("s_lshl_b32 s26, s26, 7")
    I("s_and_b32 s27, s25, 7")
    I("s_lshl_b32 s27, s27, 4")
    I("s_add_u32 s26, s26, s27")
    I("s_bfe_u32 s27, s25, 0x10003")
    I("s_lshl_b32 s27, s27, 2")
    I("s_add_u32 s26, s26, s27")
    I("s_lshr_b32 s27, s25, 4")
    I("s_lshl_b32 s27, s27, 1")
    I("s_add_u32 s26, s26, s27")
    I("v_lshrrev_b32 v60, 5, v0")
    I("v_and_b32 v61, 1, v0")
    I("v_lshl_or_b32 v60, v61, 3, v60")
    I("v_add_u32 v60, s26, v60")
    I("v_lshlrev_b32 v60, 1, v60")
    I("s_and_b32 s27, s2, 1")
    I("s_lshl_b32 s27, s27, 10")
    I("v_add_u32 v61, s27, v60")
    I("s_mov_b32 s8, s50")
    I("s_mov_b32 s9, s51")
    I("s_mov_b32 s10, 1024")
    I("buffer_load_ushort v62, v61, s[4:7], 0 offen")
    I("buffer_load_ushort v63, v60, s[8:11], 0 offen")

    a.label("L_qw")
    I("s_lshr_b32 s26, s20, 4")
    I("s_and_b32 s27, s26, 7")
    I("s_lshl_b32 s27, s27, 2")
    I("s_add_u32 s27, s27, s3")
    I("s_lshl_b32 s27, s27, 14")
    I("s_lshr_b32 s26, s26, 3")
    I("s_lshl_b32 s26, s26, 13")
    I("s_add_u32 s26, s26, s27")
    I(f"s_add_u32 s26, s26, {QP}")
    I("s_add_u32 s27, s26, 4096")
    I("v_lshlrev_b32 v13, 4, v3")
    I("v_bfe_u32 v14, v0, 4, 1")
    I("v_lshl_or_b32 v13, v14, 3, v13")
    I("v_lshrrev_b32 v14, 5, v0")
    I("v_lshl_or_b32 v13, v14, 2, v13")
    I("s_lshl_b32 s29, s3, 8")
    I("v_add_u32 v13, s29, v13")
    masks()
    I("s_waitcnt lgkmcnt(0)")
    tagcalc()
    stamp(13)
    I("s_cmp_eq_u32 s3, 0")
    I("s_cbranch_scc1 L_qpoll")
    I(f"v_mov_b32 v14, {L_FL}")
    a.label("L_fw")
    I("ds_read_b32 v15, v14")
    I("s_waitcnt lgkmcnt(0)")
    I("v_readfirstlane_b32 s29, v15")
    I("s_cmp_lg_u32 s29, 0")
    I("s_cbranch_scc1 L_fok")
    I("s_sleep 2")
    I("s_sub_u32 s22, s22, 1")
    I("s_cbranch_scc0 L_fw")
    I("s_mov_b32 s22, 0")
    a.label("L_fok")
    if qd:
        I(f"s_sleep {qd}")
    a.label("L_qpoll")

    pollid = [0]

    def poll(loads, tags, sleep=0, live="-1", lives=None):
        k = pollid[0]; pollid[0] += 1
        M = [f"s[{32+2*i}:{33+2*i}]" for i in range(len(loads))]
        for i_, m in enumerate(M):
            I(f"s_mov_b64 {m}, {lives[i_] if lives else live}")
        a.label(f"L_poll{k}")
        for l, m in zip(loads, M):
            I(f"s_mov_b64 exec, {m}")
            I(l)
        I("s_mov_b32 s58, 0")
        I("s_waitcnt vmcnt(0)")
        for (t1, t2), m in zip(tags, M):
            I(f"s_mov_b64 exec, {m}")
            I(f"v_cmpx_eq_u32 vcc, s21, v{t1}")
            I(f"v_cmpx_eq_u32 vcc, s21, v{t2}")
            I(f"s_andn2_b64 {m}, {m}, exec")
            I("s_addc_u32 s58, s58, 0")
        I(f"s_mov_b64 exec, {live}")
        I("s_cmp_eq_u32 s58, 0")
        I(f"s_cbranch_scc1 L_pok{k}", flush=False)
        p0 = a.pos
        h0 = list(a.hist)
        if sleep:
            I(f"s_sleep {sleep}")
        I("s_sub_u32 s22, s22, 1")
        I(f"s_cbranch_scc0 L_poll{k}", flush=False)
        I("s_mov_b32 s22, 0")
        a.label(f"L_pok{k}", flush=False)
        a.pos = p0
        a.hist = h0
        a.vm_reset()

    def tp(base, n):
        return [(base + 4 * i + 1, base + 4 * i + 3) for i in range(n)]

    def sum8(base):
        for k in (0, 2, 4, 6):
            I(f"v_add_f32 v{base+4*k}, v{base+4*k}, v{base+4+4*k}")
            I(f"v_add_f32 v{base+2+4*k}, v{base+2+4*k}, v{base+6+4*k}")
        for k in (0, 4):
            I(f"v_add_f32 v{base+4*k}, v{base+4*k}, v{base+8+4*k}")
            I(f"v_add_f32 v{base+2+4*k}, v{base+2+4*k}, v{base+10+4*k}")
        I(f"v_add_f32 v{base}, v{base}, v{base+16}")
        I(f"v_add_f32 v{base+2}, v{base+2}, v{base+18}")

    a.c("q consumer")
    stamp(15)
    if not noq:
        poll([f"buffer_load_dwordx4 v[{128+4*k}:{131+4*k}], v12, s[12:15], s{26+(k>>2)} offen offset:{1024*(k&3)} sc1" for k in range(8)],
             tp(128, 8), sleep=slpq)
    sum8(128)
    I("v_cvt_pk_bf16_f32 v128, v128, v130")
    I(f"ds_write_b32 v13, v128 offset:{L_Q}")
    I("s_waitcnt lgkmcnt(0)")
    stamp(2)
    I("s_barrier")
    I("v_lshrrev_b32 v46, 1, v0")
    I(f"v_mul_u32_u24 v46, {SO2}, v46")
    I("v_and_b32 v14, 1, v0")
    I("v_lshl_add_u32 v46, v14, 4, v46")
    I("s_bfe_u32 s26, s2, 0x20001")
    I(f"s_mul_i32 s31, s26, {64*SO2}")
    I("s_lshr_b32 s27, s25, 4")
    I("s_lshl_b32 s27, s27, 10")
    I("s_add_u32 s31, s31, s27")
    I("s_and_b32 s27, s2, 1")
    I("s_lshl_b32 s27, s27, 9")
    I("s_add_u32 s31, s31, s27")
    I("s_and_b32 s27, s25, 15")
    I("s_lshl_b32 s27, s27, 5")
    I("s_add_u32 s31, s31, s27")
    I("s_mov_b32 s62, 3")
    I("s_mov_b32 s63, 3")
    I(f"s_cmp_eq_u32 s3, {3 if dryt else 99}")
    I("s_cselect_b64 s[60:61], 0, -1")
    if hprio != 3:
        I(f"s_setprio {hprio}")
    I(f"s_cmp_eq_u32 s3, {99 if (mlv < 4 or gdef) else 0}")
    I("s_cbranch_scc1 L_gate")
    I("s_cmp_eq_u32 s3, 0")
    I("s_cbranch_scc1 L_tail")
    I("s_cmp_eq_u32 s3, 3")
    I("s_cbranch_scc1 L_tail")
    I(f"s_cmp_ge_u32 s2, {0 if mlv < 2 else 224}")
    I("s_cbranch_scc1 L_tail")
    I("s_cmp_eq_u32 s3, 1")
    I("s_cbranch_scc1 L_mlp1")
    if mlv >= 3:
        I("s_branch L_mlp2")
    else:
        I("s_branch L_tail")

    def rbf(v):
        I(f"v_cvt_pk_bf16_f32 v{v}, v{v}, v{v}")
        I(f"v_and_b32 v{v}, 0xffff0000, v{v}")

    def reduce2(x0, x1):
        I(f"v_permlane32_swap_b32 v{x0}, v{x1}")
        I(f"v_add_f32 v{x0}, v{x0}, v{x1}")
        I(f"v_mov_b32 v{x1}, v{x0}")
        I(f"v_permlane16_swap_b32 v{x0}, v{x1}")
        I(f"v_add_f32 v{x0}, v{x0}, v{x1}")
        I(f"v_add_f32_dpp v{x0}, v{x0}, v{x0} row_ror:8 {DPPF}")
        I(f"v_add_f32_dpp v{x0}, v{x0}, v{x0} row_ror:4 {DPPF}")
        I(f"v_add_f32_dpp v{x0}, v{x0}, v{x0} quad_perm:[2,3,0,1] {DPPF}")

    def gate_calc():
        I("v_cndmask_b32 v132, 0, v132, s[56:57]")
        I("v_cndmask_b32 v134, 0, v134, s[56:57]")
        I("v_add_f32 v128, v128, v132")
        I("v_add_f32 v130, v130, v134")
        reduce2(128, 130)
        rbf(128)
        I("v_lshlrev_b32 v63, 16, v63")
        I("v_lshlrev_b32 v62, 16, v62")
        I("v_add_f32 v128, v128, v63")
        rbf(128)
        I(f"v_mul_f32 v63, {f32(-LOG2E)}, v128")
        I("v_exp_f32 v63, v63")
        I("v_add_f32 v63, 1.0, v63")
        I("v_rcp_f32 v63, v63")
        I("v_mul_f32 v63, v63, v128")
        rbf(63)

    a.raw(".p2align 6")
    a.label("L_tail")
    if hprio != 3:
        I("s_setprio 3")
    I(f"v_mul_u32_u24 v13, {512*SO1}, v1")
    I(f"v_mul_u32_u24 v14, {4*SO1}, v2")
    I("v_add_u32 v13, v13, v14")
    I("v_and_b32 v14, 7, v0")
    I("v_lshl_add_u32 v13, v14, 4, v13")
    I("v_and_b32 v14, 3, v0")
    I("v_lshlrev_b32 v14, 4, v14")
    I("v_lshl_or_b32 v14, v2, 6, v14")
    I("v_lshl_or_b32 v14, v1, 13, v14")
    I("s_lshr_b32 s27, s28, 3")
    I(f"s_mul_i32 s26, s27, {16*SO1}")
    I("s_and_b32 s29, s28, 7")
    I("s_lshl_b32 s29, s29, 7")
    I("s_add_u32 s26, s26, s29")
    I(f"s_add_u32 s26, s26, {O1}")
    I("s_lshl_b32 s27, s27, 8")
    I(f"s_add_u32 s27, s27, {ML}")
    I("s_lshl_b32 s29, s3, 10")
    I(f"s_add_u32 s29, s29, {L_RL - 1024}")
    I("v_add_u32 v15, s29, v12")
    I("s_lshl_b32 s29, s30, 6")
    I("s_add_u32 s29, s29, s23")
    I(f"s_mul_i32 s29, s29, {SO2}")
    I(f"s_add_u32 s29, s29, {O2}")
    I(f"s_add_u32 s24, s31, {O2}")
    I(f"s_add_u32 s25, s31, {O2 + 32*SO2}")
    I("v_mov_b32 v53, s21")
    I("v_mov_b32 v55, s21")
    I("v_mov_b32 v57, s21")
    I("v_mov_b32 v59, s21")
    if gdef:
        I(f"s_add_u32 s31, s31, {OM}")
        I("v_cmp_gt_u32 s[56:57], 48, v0")
        I(f"v_add_u32 v47, {32*SO2}, v46")
        I("v_cndmask_b32 v47, v46, v47, s[56:57]")
        I("s_cmp_eq_u32 s3, 0")
        I("s_cselect_b64 s[50:51], -1, 0")
    a.label("L_tail2")
    I("s_mov_b64 exec, s[60:61]")
    I("s_waitcnt vmcnt(0)")
    barrier()
    stamp(4)
    lds_ = [f"buffer_load_dwordx4 v[80:83], v14, s[12:15], s27 offen sc1"]
    for i in range(4):
        lds_.append(f"buffer_load_dwordx4 v[{64+4*i}:{67+4*i}], v13, s[12:15], s26 offen offset:{SO1*i} sc1")
    if gdef:
        lds_ += [f"buffer_load_dwordx4 v[{128+4*e}:{131+4*e}], v{46+e}, s[12:15], s31 offen sc1" for e in range(2)]
        poll(lds_, tp(80, 1) + tp(64, 4) + tp(128, 2), sleep=slp1, live="s[60:61]", lives=["s[60:61]"] * 5 + ["s[50:51]"] * 2)
    else:
        poll(lds_, tp(80, 1) + tp(64, 4), sleep=slp1, live="s[60:61]")
    stamp(5)
    I(f"v_max_f32_dpp v84, v80, v80 quad_perm:[1,0,3,2] {DPPF}")
    I(f"v_max_f32_dpp v84, v84, v84 quad_perm:[2,3,0,1] {DPPF}")
    I("v_mov_b32 v85, v84")
    I("v_permlane16_swap_b32 v84, v85")
    I("v_max_f32 v84, v84, v85")
    I("v_mov_b32 v85, v84")
    I("v_permlane32_swap_b32 v84, v85")
    I("v_max_f32 v84, v84, v85")
    I("v_sub_f32 v80, v80, v84")
    I("v_exp_f32 v80, v80")
    I("v_mul_f32 v82, v80, v82")
    I(f"v_mul_f32_dpp v64, v80, v64 quad_perm:[0,0,0,0] {DPPF}")
    I(f"v_mul_f32_dpp v66, v80, v66 quad_perm:[0,0,0,0] {DPPF}")
    I(f"v_add_f32_dpp v82, v82, v82 quad_perm:[1,0,3,2] {DPPF}")
    for i in range(1, 4):
        I(f"v_fmac_f32_dpp v64, v80, v{64+4*i} quad_perm:[{i},{i},{i},{i}] {DPPF}")
        I(f"v_fmac_f32_dpp v66, v80, v{66+4*i} quad_perm:[{i},{i},{i},{i}] {DPPF}")
        if i == 1:
            I(f"v_add_f32_dpp v82, v82, v82 quad_perm:[2,3,0,1] {DPPF}")
        if i == 2:
            I("v_mov_b32 v83, v82")
    I("v_permlane32_swap_b32 v82, v83")
    I("v_permlane32_swap_b32 v64, v66")
    I("v_add_f32 v82, v82, v83")
    I("v_add_f32 v64, v64, v66")
    I("v_permlane16_swap_b32 v64, v82")
    I("v_add_f32 v64, v64, v82")
    I("v_mov_b32 v82, v64")
    I("v_permlane16_swap_b32 v64, v82")
    I("v_rcp_f32 v82, v82")
    I("v_mul_f32 v64, v64, v82")
    I("v_cvt_pk_bf16_f32 v64, v64, v64")
    I("v_mov_b32_dpp v64, v64 row_shr:4 row_mask:0x5 bank_mask:0xa")
    I("v_mov_b32_dpp v64, v64 row_shl:4 row_mask:0xa bank_mask:0x5")
    for t in range(4):
        for r in range(4):
            I(f"v_and_b32_dpp v{96+4*t+r}, v64, v{4+r} quad_perm:[{t},{t},{t},{t}] {DPPF}")
    for t in range(4):
        I(f"v_mfma_f32_16x16x32_bf16 v[48:51], v[{96+4*t}:{99+4*t}], v[{16+4*t}:{19+4*t}], {'0' if t == 0 else 'v[48:51]'}")
    I("s_cbranch_execz L_fin", flush=False)
    I("s_cmp_eq_u32 s3, 0")
    I("s_cbranch_scc1 L_fin", flush=False)
    I("ds_write_b128 v15, v[48:51]")
    I("s_waitcnt lgkmcnt(0)")
    I("s_barrier")
    if prof:
        I("s_add_u32 s3, s3, 4")
        stamps_out("s3")
    I("s_endpgm")
    a.label("L_fin")
    barrier()
    for w in range(3):
        I(f"ds_read_b128 v[{64+4*w}:{67+4*w}], v12 offset:{L_RL + 1024*w}")
    I("s_waitcnt lgkmcnt(1)")
    for r in range(4):
        I(f"v_add_f32 v{48+r}, v{48+r}, v{64+r}")
    for r in range(4):
        I(f"v_add_f32 v{48+r}, v{48+r}, v{68+r}")
    I("s_waitcnt lgkmcnt(0)")
    for r in range(4):
        I(f"v_add_f32 v{52+2*r}, v{48+r}, v{72+r}")
    I("buffer_store_dwordx4 v[52:55], v12, s[12:15], s29 offen sc1")
    I("buffer_store_dwordx4 v[56:59], v12, s[12:15], s29 offen offset:1024 sc1")
    stamp(6)
    if gdef:
        gate_calc()
    poll([f"buffer_load_dwordx4 v[{64+4*e}:{67+4*e}], v46, s[12:15], s{24+e} offen sc1" for e in range(2)],
         tp(64, 2), sleep=slp2, live="s[60:61]")
    stamp(14)
    I("v_add_f32 v64, v64, v68")
    I("v_add_f32 v66, v66, v70")
    reduce2(64, 66)
    rbf(64)
    I("v_mul_f32 v64, v64, v63")
    rbf(64)
    I("v_add_f32 v64, v64, v62")
    I("v_cvt_pk_bf16_f32 v64, v64, v64")
    I("s_and_b64 exec, exec, s[62:63]")
    I("buffer_store_short v64, v61, s[52:55], 0 offen")
    I("s_cbranch_execz L_dry2", flush=False)
    I("s_cmp_lg_u32 s2, 0")
    I("s_cbranch_scc1 L_end2", flush=False)
    I("s_mov_b64 exec, 1")
    I("buffer_store_dword v53, off, s[12:15], 0 sc1")
    a.label("L_end2")
    stamp(7)
    stamps_out("4")
    diag_spin('H')
    I("s_endpgm")
    a.label("L_dry2")
    I("s_mov_b64 s[60:61], -1")
    stamp(3)
    I("s_branch L_tail2")

    a.raw(".p2align 6")
    a.label("L_gate")
    a.c("gate value for this workgroup's 4 outputs")
    I(f"s_add_u32 s26, s31, {OM}")
    I("v_cmp_gt_u32 s[56:57], 48, v0")
    I(f"v_add_u32 v47, {32*SO2}, v46")
    I("v_cndmask_b32 v47, v46, v47, s[56:57]")
    poll([f"buffer_load_dwordx4 v[{128+4*e}:{131+4*e}], v{46+e}, s[12:15], s26 offen sc1" for e in range(2)],
         tp(128, 2), sleep=slpg)
    gate_calc()
    stamp(3)
    I("s_branch L_tail")

    a.raw(".p2align 6")
    a.label("L_mlp1")
    a.c("channel MLP layer 1: 64 hidden columns x 64 rows")
    I("v_and_b32 v13, 7, v0")
    I("v_or_b32 v116, v4, v6")
    I("v_or_b32 v117, v5, v7")
    for i in range(9):
        I(f"v_mov_b32 v{120+4*i}, 0")
        I(f"v_mov_b32 v{121+4*i}, 0")
    I("v_lshlrev_b32 v13, 4, v13")
    I("v_lshl_or_b32 v13, v2, 7, v13")
    I("s_lshl_b32 s26, s2, 10")
    I(f"s_add_u32 s26, s26, {HP}")
    ln_stats(32, 96, 48)
    ln_apply(32, 96, 48)
    ln_stats(32, 96, 54)
    ln_apply(40, 96, 48, n=4)
    ln_apply(40, 96, 54, n=4, dup=104)
    for i in range(8):
        I(f"v_and_b32 v{122+4*i}, v{104+i}, v116")
        I(f"v_and_b32 v{123+4*i}, v{104+i}, v117")
    for i in range(8):
        cx = '0' if i == 0 else 'v[32:35]'
        cy = '0' if i == 0 else 'v[36:39]'
        I(f"v_mfma_f32_16x16x32_bf16 v[32:35], v[{122+4*i}:{125+4*i}], v[{64+4*i}:{67+4*i}], {cx}")
        I(f"v_mfma_f32_16x16x32_bf16 v[36:39], v[{120+4*i}:{123+4*i}], v[{64+4*i}:{67+4*i}], {cy}")
    for r in range(4):
        I(f"v_mov_b32 v{65+2*r}, s21")
    for r in range(4):
        I(f"v_permlane16_swap_b32 v{32+r}, v{36+r}")
    for r in range(4):
        I(f"v_add_f32_dpp v{64+2*r}, v{36+r}, v{32+r} row_ror:8 {DPPF}")
    I("s_mov_b32 exec_lo, 0x00ff00ff")
    I("s_mov_b32 exec_hi, 0x00ff00ff")
    I("buffer_store_dwordx4 v[64:67], v13, s[12:15], s26 offen sc1")
    I("buffer_store_dwordx4 v[68:71], v13, s[12:15], s26 offen offset:512 sc1")
    I("s_mov_b64 exec, -1")
    stamp(3)
    I("s_branch L_tail")

    a.raw(".p2align 6")
    a.label("L_mlp2")
    a.c("channel MLP layer 2: 32 hidden rows x 128 columns")
    I("s_lshr_b32 s26, s24, 2")
    I("s_lshl_b32 s27, s25, 1")
    I("s_add_u32 s27, s27, s26")
    I("s_and_b32 s24, s24, 3")
    I("v_lshlrev_b32 v13, 1, v47")
    I("v_and_b32 v14, 1, v2")
    I("v_lshl_or_b32 v13, v14, 8, v13")
    I("s_lshl_b32 s26, s26, 7")
    I("v_lshlrev_b32 v14, 5, v2")
    I("v_lshl_or_b32 v14, v1, 8, v14")
    I("v_add_u32 v14, s26, v14")
    I("s_lshl_b32 s24, s24, 6")
    I("s_add_u32 s29, s24, s27")
    I(f"s_mul_i32 s29, s29, {SO2}")
    I(f"s_add_u32 s29, s29, {OM}")
    I("s_lshl_b32 s26, s25, 13")
    I(f"s_add_u32 s26, s26, {HP}")
    I("s_add_u32 s27, s26, 4096")
    I("v_lshlrev_b32 v15, 10, v0")
    I("s_movk_i32 s56, 0xff")
    I("s_mov_b32 s57, 0")
    for _ in range(m2sl):
        I("s_sleep 127")
    if m2pl:
        if not m2sl:
            poll(["buffer_load_dwordx4 v[128:131], v15, s[12:15], s26 offen offset:1008 sc1"], tp(128, 1), sleep=slpm, live="s[56:57]")
        I("s_mov_b64 exec, -1")
        poll([f"buffer_load_dwordx4 v[{128+4*k}:{131+4*k}], v12, s[12:15], s{26+(k>>2)} offen offset:{1024*(k&3)} sc1" for k in range(8)],
             tp(128, 8), sleep=slpm)
    sum8(128)
    I("v_cvt_pk_bf16_f32 v32, v128, v130")
    unpack(32, 36, 1)
    unpack(62, 40, 1)
    for r in range(2):
        I(f"v_add_f32 v{36+r}, v{36+r}, v{40+r}")
    I("v_cvt_pk_bf16_f32 v32, v36, v37")
    unpack(32, 36, 1)
    kk = -2.0 * math.sqrt(2.0 / math.pi) * LOG2E
    I(f"s_mov_b32 s26, {f32(kk * 0.044715)}")
    I(f"v_mov_b32 v44, {f32(kk)}")
    for r in range(2):
        I(f"v_mul_f32 v{40+r}, v{36+r}, v{36+r}")
    for r in range(2):
        I(f"v_fma_f32 v{40+r}, v{40+r}, s26, v44")
    for r in range(2):
        I(f"v_mul_f32 v{40+r}, v{40+r}, v{36+r}")
    for r in range(2):
        I(f"v_exp_f32 v{40+r}, v{40+r}")
    for r in range(2):
        I(f"v_add_f32 v{40+r}, 1.0, v{40+r}")
    for r in range(2):
        I(f"v_rcp_f32 v{40+r}, v{40+r}")
    for r in range(2):
        I(f"v_mul_f32 v{40+r}, v{40+r}, v{36+r}")
    I("v_cvt_pk_bf16_f32 v32, v40, v40")
    I("v_cvt_pk_bf16_f32 v33, v41, v41")
    I(f"ds_write_b64 v13, v[32:33] offset:{L_HL}")
    I("s_waitcnt lgkmcnt(0)")
    I(f"ds_read_b128 v[96:99], v14 offset:{L_HL}")
    I(f"ds_read_b128 v[100:103], v14 offset:{L_HL + 16}")
    for r in range(4):
        I(f"v_mov_b32 v{37+2*r}, s21")
    I("s_waitcnt lgkmcnt(0)")
    for t in range(8):
        for r in range(4):
            I(f"v_and_b32 v{160+4*t+r}, v{96+t}, v{4+r}")
    for t in range(8):
        I(f"v_mfma_f32_16x16x32_bf16 v[32:35], v[{160+4*t}:{163+4*t}], v[{64+4*t}:{67+4*t}], {'0' if t == 0 else 'v[32:35]'}")
    for r in range(4):
        I(f"v_mov_b32 v{36+2*r}, v{32+r}")
    if m2st:
        I("buffer_store_dwordx4 v[36:39], v12, s[12:15], s29 offen sc1")
        I("buffer_store_dwordx4 v[40:43], v12, s[12:15], s29 offen offset:1024 sc1")
    stamp(3)
    I("s_branch L_tail")

    a.raw('.section .rodata,"a"')
    a.raw(".p2align 6")
    a.raw(f".amdhsa_kernel {NAME}")
    a.raw("  .amdhsa_next_free_vgpr 256")
    a.raw("  .amdhsa_next_free_sgpr 102")
    a.raw("  .amdhsa_accum_offset 256")
    a.raw("  .amdhsa_group_segment_fixed_size 0")
    a.raw("  .amdhsa_kernarg_size 104")
    a.raw("  .amdhsa_user_sgpr_count 2")
    a.raw("  .amdhsa_user_sgpr_kernarg_segment_ptr 1")
    a.raw("  .amdhsa_system_sgpr_workgroup_id_x 1")
    a.raw(".end_amdhsa_kernel")
    return a.text()


if __name__ == "__main__":
    out = sys.argv[1]
    kw = eval("dict(" + (sys.argv[2] if len(sys.argv) > 2 else "") + ")")
    open(out, "w").write(gen(**kw))
```

```python
import sys, struct, math
sys.path.insert(0, "exp")
from asmlib import Asm

NAME = "recurrent_scan__gqa_block_cached__mixer_channel_mlp__decode_kernel"
REF = "recurrent_scan__gqa_block_cached__mixer_channel_mlp__decode.s.ref"


def f32(x):
    return "0x%08x" % struct.unpack("<I", struct.pack("<f", x))[0]


QP = 0x10000
HP = 0xA0000
O1 = 0x100000
ML = 0x280000
O2 = 0x300000
OM = 0x400000
CTR = 0x500000
TS = 0x700000
WSSZ = 0x800000
L_Q = 0
L_OL = 1024
L_ML = 9216
L_RL = 9728
L_HL = 12800
L_FL = 13312
LOG2E = 1.4426950408889634
DPPF = "row_mask:0xf bank_mask:0xf"
NST = 16


def gen(prof=False, ntkv="nt", budget=20000, SO1=1024, SO2=2048, drys=True, dryt=True,
        slp1=0, slp2=0, slpq=0, qd=32, pace=12, ntk=None, ntv=None, diag=None, noq=False, nomlp=False, nowo=False, nowq=False, mlv=4, slpg=64, slpm=16, hprio=3, m2st=True, m2pl=True, gdef=True, m2sl=0, cmap=0, dyn=0, dlay=1, dmode=0, tlb=0, tlbpos=1, rot=0, m1e=2, hpm=0, fb1=0, pd1=1, pg1=8, pd2=1, pg2=8, eml=1, tdeep=0, osc=''):
    if nomlp: mlv = 0
    ntk = ntkv if ntk is None else ntk
    ntv = ntkv if ntv is None else ntv
    a = Asm()
    I = a.I
    hdr = [l for l in open(REF).read().split("\n") if l.startswith(";") and "@launch" not in l]
    for l in hdr:
        a.raw(l)
    a.raw("; @launch grid=(256,1,1) block=(512,1,1) lds=16384")
    a.raw('.amdgcn_target "amdgcn-amd-amdhsa--gfx950"')
    a.raw(".text")
    a.raw(f".globl {NAME}")
    a.raw(".p2align 8")
    a.raw(f".type {NAME},@function")
    a.raw(f"{NAME}:")

    def stamp(i):
        if prof:
            I(f"s_memrealtime s[{64+2*i}:{65+2*i}]")

    def stamps_out(wavereg):
        if not prof:
            return
        I("s_mov_b64 exec, 1")
        I("s_lshl_b32 s30, s2, 3")
        I(f"s_add_u32 s30, s30, {wavereg}")
        I("s_lshl_b32 s30, s30, 7")
        I(f"s_add_u32 s30, s30, {TS}")
        I("s_waitcnt lgkmcnt(0)")
        for i in range(2 * NST):
            I(f"v_mov_b32 v{64+i}, s{64+i}")
        I("v_mov_b32 v100, 0")
        for i in range(NST // 2):
            I(f"buffer_store_dwordx4 v[{64+4*i}:{67+4*i}], v100, s[12:15], s30 offen offset:{16*i}")

    def diag_spin(role):
        if diag is None or diag[0] != role:
            return
        _, idx, wg, base = diag
        if wg is not None:
            I(f"s_cmp_lg_u32 s2, {wg}")
            I(f"s_cbranch_scc1 L_dg_end")
        I("s_waitcnt lgkmcnt(0)")
        I(f"s_cmp_eq_u32 s{64+2*idx}, 0")
        I(f"s_cbranch_scc1 L_dg_end")
        I(f"s_add_u32 s56, s{64+2*idx}, {base*100}")
        I("s_mov_b32 s57, 20000")
        a.label("L_dg")
        I("s_sleep 4")
        I("s_memrealtime s[58:59]")
        I("s_sub_u32 s57, s57, 1")
        I("s_cbranch_scc1 L_dg_end")
        I("s_waitcnt lgkmcnt(0)")
        I("s_sub_u32 s58, s58, s56")
        I("s_cmp_lt_i32 s58, 0")
        I("s_cbranch_scc1 L_dg")
        a.label("L_dg_end")

    def tagcalc(r=21):
        I(f"s_mul_i32 s{r}, s{r}, 0x9E3779B1")
        I(f"s_add_u32 s{r}, s{r}, 0x7F4A7C15")

    skipid = [0]

    def barrier():
        k = skipid[0]; skipid[0] += 1
        I(f"s_cbranch_execz L_sk{k}", flush=False)
        I("s_barrier")
        a.label(f"L_sk{k}", flush=False)

    def lanebits():
        I("v_bfe_u32 v1, v0, 3, 1")
        I("v_lshrrev_b32 v2, 4, v0")
        I("v_and_b32 v3, 15, v0")

    def masks():
        I("v_and_b32 v8, 1, v0")
        I("v_bfe_u32 v9, v0, 1, 2")
        I("v_lshlrev_b32 v8, 4, v8")
        I("v_mov_b32 v10, 0xffff")
        I("v_cmp_eq_u32 s[56:57], 0, v9")
        I("v_cmp_eq_u32 s[58:59], 1, v9")
        I("v_cmp_eq_u32 s[62:63], 2, v9")
        I("v_cmp_eq_u32 vcc, 3, v9")
        I("v_lshlrev_b32 v8, v8, v10")
        I("v_cndmask_b32 v4, 0, v8, s[56:57]")
        I("v_cndmask_b32 v5, 0, v8, s[58:59]")
        I("v_cndmask_b32 v6, 0, v8, s[62:63]")
        I("v_cndmask_b32 v7, 0, v8, vcc")

    I("s_cmp_ge_u32 s2, 0x100")
    I("s_cbranch_scc1 L_exit")
    I("s_load_dwordx16 s[32:47], s[0:1], 0")
    I("s_load_dwordx2 s[12:13], s[0:1], 96")
    I("s_load_dwordx8 s[48:55], s[0:1], 64")
    if prof:
        for i in range(2 * NST):
            I(f"s_mov_b32 s{64+i}, 0")
    stamp(0)
    I("v_lshrrev_b32 v1, 6, v0")
    I("v_and_b32 v0, 63, v0")
    I("v_readfirstlane_b32 s3, v1")
    I("s_and_b32 s20, s2, 7")
    I("s_lshl_b32 s20, s20, 5")
    I("s_lshr_b32 s25, s2, 3")
    I("s_add_u32 s20, s20, s25")
    if cmap == 1:
        I("s_mov_b32 s20, s2")
    I(f"s_mov_b32 s14, {WSSZ}")
    I("s_mov_b32 s15, 0x00020000")
    I("s_mov_b32 s7, 0x00020000")
    I("s_mov_b32 s11, 0x00020000")
    I("s_sub_u32 s24, s3, 4")
    I(f"s_cmp_ge_u32 s24, {3 if drys else 4}")
    I("s_cbranch_scc1 L_stream")
    I("s_setprio 3")
    I("s_cmp_eq_u32 s3, 4")
    I("s_cbranch_scc1 L_h0a")
    if m1e:
        I("s_cmp_lt_u32 s2, 224")
        I("s_cselect_b32 s24, s24, 0")
        I("s_cmp_eq_u32 s24, 1")
        I("s_cbranch_scc1 L_h1a")
    I("v_mov_b32 v8, 0")
    I(f"v_mov_b32 v9, {L_FL}")
    I("ds_write_b32 v9, v8")
    if fb1:
        I("ds_write_b32 v9, v8 offset:4")
    I("s_waitcnt lgkmcnt(0)")
    I("s_barrier")
    I("s_branch L_hinit")
    a.label("L_h0a")
    lanebits()
    I("v_and_b32 v12, 7, v0")
    I("v_lshl_or_b32 v12, v2, 3, v12")
    I("v_lshlrev_b32 v12, 5, v12")
    I("v_lshl_or_b32 v12, v1, 10, v12")
    I("v_lshlrev_b32 v13, 5, v2")
    I("v_lshl_or_b32 v13, v1, 10, v13")
    I("v_lshlrev_b32 v14, 4, v3")
    I("v_lshl_or_b32 v14, v2, 17, v14")
    I("v_mov_b32 v15, 0")
    I("s_and_b32 s24, s2, 7")
    I("s_lshl_b32 s26, s24, 19")
    I("s_lshl_b32 s27, s25, 8")
    I("s_add_u32 s26, s26, s27")
    I("s_lshl_b32 s27, s24, 7")
    I("s_mov_b32 s6, 2048")
    I(f"s_mov_b32 s10, {0 if nowq else 63*8192+256}")
    I("s_mov_b32 s28, 0")
    I("s_waitcnt lgkmcnt(0)")
    stamp(8)
    I("s_mov_b32 s4, s32")
    I("s_mov_b32 s5, s33")
    I("s_add_u32 s8, s38, s26")
    I("s_addc_u32 s9, s39, 0")
    a.vm_reset()
    if dyn:
        assert cmap == 1
        I("s_lshl_b32 s29, s24, 5")
        I("s_add_u32 s29, s29, s25")
        I("s_lshl_b32 s29, s29, 8")
        I(f"s_add_u32 s29, s29, {CTR}")
        I("s_cmp_lt_u32 s24, 2")
        I("s_cselect_b64 exec, 1, 0")
        I("s_cbranch_execz L_nz", flush=False)
        I("buffer_store_dword v15, off, s[12:15], s29 sc1")
        a.label("L_nz", flush=False)
        I("s_mov_b64 exec, -1")
    I("buffer_load_dwordx4 v[32:35], v12, s[4:7], 0 offen", vmid="x")
    I("buffer_load_dwordx4 v[36:39], v12, s[4:7], 0 offen offset:16", vmid="x")
    I("buffer_load_dwordx4 v[40:43], v13, s[4:7], s27 offen", vmid="xa")
    I("buffer_load_dwordx4 v[44:47], v13, s[4:7], s27 offen offset:16", vmid="xa")
    for t in range(16):
        I(f"buffer_load_dwordx4 v[{64+4*t}:{67+4*t}], v14, s[8:11], s28 offen nt", vmid=f"wq{t}")
        if t < 15:
            I("s_add_u32 s28, s28, 0x2000")
    I("s_barrier")
    I("s_load_dword s31, s[12:13], 0")
    I("s_branch L_h0b")
    vm_h0 = list(a.vm)
    if m1e:
        a.label("L_h1a")
        a.c("channel MLP layer 1 (early): 64 hidden columns x 64 rows")
        lanebits()
        I("v_and_b32 v13, 7, v0")
        I("v_lshl_or_b32 v14, v2, 3, v13")
        I("v_lshlrev_b32 v14, 5, v14")
        I("v_lshl_or_b32 v14, v1, 10, v14")
        I("v_bfe_u32 v15, v0, 2, 1")
        I("v_lshl_or_b32 v15, v2, 1, v15")
        I("v_lshlrev_b32 v15, 4, v15")
        I("v_lshl_or_b32 v15, v1, 10, v15")
        I("v_lshl_or_b32 v16, v2, 1, v1")
        I(f"v_mul_u32_u24 v16, {8*3584}, v16")
        I("v_lshl_add_u32 v16, v13, 4, v16")
        I("s_and_b32 s24, s2, 7")
        I("s_lshl_b32 s26, s24, 7")
        I(f"s_mul_i32 s27, s24, {64*3584}")
        I("s_lshl_b32 s28, s25, 7")
        I("s_add_u32 s27, s27, s28")
        I("s_mov_b32 s6, 2048")
        I(f"s_mov_b32 s10, {63*3584+128}")
        I("s_mov_b32 s28, 0")
        I("s_waitcnt lgkmcnt(0)")
        I("s_mov_b32 s4, s32")
        I("s_mov_b32 s5, s33")
        I("s_add_u32 s8, s44, s27")
        I("s_addc_u32 s9, s45, 0")
        a.vm_reset()
        if m1e == 1:
            I("s_barrier")
        I("buffer_load_dwordx4 v[32:35], v14, s[4:7], 0 offen", vmid="x")
        I("buffer_load_dwordx4 v[36:39], v14, s[4:7], 0 offen offset:16", vmid="x")
        I("buffer_load_dwordx4 v[40:43], v15, s[4:7], s26 offen", vmid="xa")
        for i in range(8):
            I(f"buffer_load_dwordx4 v[{64+4*i}:{67+4*i}], v16, s[8:11], s28 offen offset:{3584*(i & 1)} nt", vmid=f"w{i}")
            if i & 1 and i < 7:
                I("s_add_u32 s28, s28, 7168")
        if m1e == 2:
            I("s_barrier")
        I("s_branch L_h1b")
        vm_h1 = list(a.vm)

    a.label("L_stream")
    a.c("stream wave")
    I("s_lshl_b32 s24, s3, 12")
    I("v_and_b32 v2, 3, v0")
    I("v_lshlrev_b32 v2, 10, v2")
    I("v_bfe_u32 v1, v0, 2, 2")
    I("v_lshl_or_b32 v2, v1, 8, v2")
    I("v_lshrrev_b32 v1, 4, v0")
    I("v_lshl_or_b32 v2, v1, 4, v2")
    I("v_add_u32 v2, s24, v2")
    I("v_lshl_add_u32 v3, v0, 4, s24")
    if tlb:
        I(f"v_lshlrev_b32 v20, {tlb}, v0")
    if dyn:
        I("s_lshr_b32 s29, s20, 4")
        I("s_lshl_b32 s30, s29, 2")
        I("s_add_u32 s30, s30, s3")
        I("s_lshl_b32 s30, s30, 8")
        I(f"s_add_u32 s30, s30, {CTR}")
        I("s_lshl_b32 s29, s29, 23")
        I("s_mov_b32 s6, 0x800000")
        I("s_mov_b32 s10, 0x800000")
        I("s_and_b32 s23, s20, 15")
        I("s_mov_b32 s56, s23")
        I(f"s_mul_i32 s23, s23, {dyn * 0x4000 if dlay == 0 else 0x80000}")
        I("s_mov_b32 s18, 0")
        I("s_mov_b32 s19, 0x00020000")
    else:
        I("s_lshl_b32 s29, s20, 19")
        I("s_mov_b32 s6, 0x80000")
        I("s_mov_b32 s10, 0x80000")
        if rot == 0:
            I("s_mov_b32 s23, 0")
        elif rot == 1:
            I("s_lshr_b32 s23, s2, 6")
            I("s_lshl_b32 s23, s23, 17")
        elif rot == 2:
            I("s_lshr_b32 s23, s2, 3")
            I("s_lshl_b32 s23, s23, 14")
        elif rot == 3:
            I("s_mul_i32 s23, s2, 5")
            I("s_and_b32 s23, s23, 31")
            I("s_lshl_b32 s23, s23, 14")
        elif rot == 4:
            I("s_and_b32 s23, s2, 7")
            I("s_lshl_b32 s23, s23, 16")
        elif rot == 5:
            I("s_lshr_b32 s23, s2, 3")
            I("s_and_b32 s23, s23, 1")
            I("s_lshl_b32 s23, s23, 14")
    I("s_cmp_eq_u32 s3, 7")
    I("s_cselect_b64 exec, 0, -1")
    def kreg(s, c): return f"v[{64+32*s+4*c}:{67+32*s+4*c}]"
    def vreg(s, r): return f"v[{80+32*s+4*r}:{83+32*s+4*r}]"

    def issueK(s, sk=True, tk=None, s2=None):
        k = skipid[0]; skipid[0] += 1
        if s2 is not None:
            I("s_add_u32 s24, s23, 0x4000")
        if drys and sk:
            I(f"s_cbranch_execz L_sk{k}", flush=False)
        if tk is not None:
            I("s_mov_b64 exec, 1")
            I(f"buffer_atomic_add v{tk}, off, s[16:19], 0 sc0" if tk >= 160 else f"buffer_atomic_add v{tk}, off, s[16:19], 0")
            I("s_mov_b64 exec, -1")
        for c in range(4):
            I(f"buffer_load_dwordx4 {kreg(s, c)}, v2, s[4:7], s23 offen offset:{64*c} {ntk}")
        if s2 is not None:
            for c in range(4):
                I(f"buffer_load_dwordx4 {kreg(s2, c)}, v2, s[4:7], s24 offen offset:{64*c} {ntk}")
        if drys and sk:
            a.label(f"L_sk{k}", flush=False)

    def issueV(s, sk=True, s2=None):
        k = skipid[0]; skipid[0] += 1
        if drys and sk:
            I(f"s_cbranch_execz L_sk{k}", flush=False)
        for r in range(4):
            I(f"buffer_load_dwordx4 {vreg(s, r)}, v3, s[8:11], s23 offen offset:{1024*r} {ntv}")
        if s2 is not None:
            for r in range(4):
                I(f"buffer_load_dwordx4 {vreg(s2, r)}, v3, s[8:11], s24 offen offset:{1024*r} {ntv}")
        if drys and sk:
            a.label(f"L_sk{k}", flush=False)
        I(f"s_add_u32 s23, s23, {0x4000 if s2 is None else 0x8000}")
        if rot:
            I("s_and_b32 s23, s23, 0x7ffff")

    for r in (36, 37, 40, 41, 44, 45, 48, 49, 52, 53, 25, 28, 29, 30, 31, 32, 33, 34, 35):
        I(f"v_mov_b32 v{r}, 0")
    I("v_mov_b32 v24, 0xff7fffff")
    I(f"s_mov_b32 s25, {f32(128 ** -0.5 * LOG2E)}")
    I("v_and_b32 v26, 1, v0")
    I("v_cmp_eq_u32 vcc, 1, v26")
    I("v_mov_b32 v54, 0x0c0c0100")
    I("v_mov_b32 v27, 0x01000c0c")
    I("v_cndmask_b32 v54, v54, v27, vcc")
    I("v_mov_b32 v55, 0x0c0c0302")
    I("v_mov_b32 v27, 0x03020c0c")
    I("v_cndmask_b32 v55, v55, v27, vcc")
    I("v_and_b32 v26, 2, v0")
    I("v_cmp_eq_u32 vcc, 2, v26")
    I("v_mov_b32 v27, 0x0c0c0c0c")
    I("v_bfe_u32 v26, v0, 2, 2")
    I("v_cndmask_b32 v56, v27, v54, vcc")
    I("v_cndmask_b32 v57, v27, v55, vcc")
    I("v_cndmask_b32 v54, v54, v27, vcc")
    I("v_cndmask_b32 v55, v55, v27, vcc")
    I("v_lshrrev_b32 v27, 4, v0")
    I("v_lshlrev_b32 v62, 8, v26")
    I("v_lshl_or_b32 v62, v27, 4, v62")
    I("v_lshlrev_b32 v63, 4, v0")
    I("s_lshl_b32 s24, s3, 9")
    I(f"s_add_u32 s24, s24, {L_OL}")
    I("v_lshl_add_u32 v59, v0, 3, s24")
    I("s_lshl_b32 s24, s3, 3")
    I(f"s_add_u32 s24, s24, {L_ML}")
    I("v_lshl_add_u32 v1, v26, 5, s24")
    I("s_lshl_b32 s24, s3, 11")
    I(f"s_add_u32 s24, s24, {L_OL}")
    I("v_and_b32 v0, 15, v0")
    I("v_lshlrev_b32 v0, 5, v0")
    I("v_lshl_or_b32 v0, v27, 9, v0")
    I("v_add_u32 v0, s24, v0")
    I("s_lshr_b32 s24, s20, 4")
    I("s_lshl_b32 s24, s24, 2")
    I("s_add_u32 s24, s24, s3")
    I("s_lshl_b32 s24, s24, 4")
    I("s_and_b32 s26, s20, 15")
    I("s_add_u32 s24, s24, s26")
    I(f"s_mul_i32 s27, s24, {SO1}")
    I(f"s_add_u32 s27, s27, {O1}")
    I("s_lshl_b32 s28, s24, 4")
    I(f"s_add_u32 s28, s28, {ML}")
    I("s_waitcnt lgkmcnt(0)")
    I("s_add_u32 s4, s34, s29")
    I("s_addc_u32 s5, s35, 0")
    I("s_add_u32 s8, s36, s29")
    I("s_addc_u32 s9, s37, 0")
    if dyn:
        I("s_add_u32 s16, s12, s30")
        I("s_addc_u32 s17, s13, 0")

    I("s_load_dword s21, s[12:13], 0")
    I("s_barrier")
    if drys:
        I("s_cbranch_execz L_pro", flush=False)
    def tlbw():
        I("s_cmp_lg_u32 s3, 0")
        I("s_cbranch_scc1 L_notlb", flush=False)
        I("buffer_load_dword v21, v20, s[4:7], 0 offen nt")
        I("buffer_load_dword v22, v20, s[8:11], 0 offen nt")
        a.label("L_notlb", flush=False)
    if tlb and tlbpos == 0:
        tlbw()
    issueK(0, False); issueV(0, False)
    stamp(6)
    issueK(1, False); issueV(1, False)
    if tlb and tlbpos == 1:
        tlbw()
    stamp(7)
    for s in range(2, 6):
        I(f"s_waitcnt vmcnt({pace})")
        issueK(s, False)
        I(f"s_waitcnt vmcnt({pace})")
        issueV(s, False)
    I("s_waitcnt lgkmcnt(0)")
    tagcalc()
    stamp(1)
    if fb1:
        I(f"v_mov_b32 v4, {L_FL}")
        I(f"s_mov_b32 s22, {budget * 8}")
        a.label("L_qf")
        I("ds_read_b32 v5, v4 offset:4")
        I("s_sub_u32 s22, s22, 1")
        I("s_cbranch_scc1 L_qfok")
        I("s_waitcnt lgkmcnt(0)")
        I("v_readfirstlane_b32 s24, v5")
        I("s_cmp_lt_u32 s24, 4")
        I("s_cbranch_scc1 L_qf")
        a.label("L_qfok")
    else:
        I("s_barrier")
    stamp(2)
    a.label("L_pro", flush=False)
    for c in range(4):
        I(f"ds_read_b128 v[{4+4*c}:{7+4*c}], v62 offset:{L_Q + 64*c}")
    I("s_cmp_eq_u32 s3, 7")
    if dyn:
        I(f"s_cselect_b32 s26, 1, {dyn - 8}")
        I(f"s_cselect_b32 s30, 0, {16 * (32 - dyn)}")
    else:
        I(f"s_cselect_b32 s26, 1, {6 if tdeep else 8}")
    I("s_waitcnt lgkmcnt(0)")

    def proc(s, wk=None, wv=None, iss=None, vearly=True, tick=False, iss2=None):
        a.c(f"unit in slot {s}")
        if wk is not None:
            I(f"s_waitcnt vmcnt({wk})")
        if tick:
            I(f"v_readfirstlane_b32 s22, v{160 + (s + 2) % 3}")
        for c in range(4):
            I(f"v_mfma_f32_16x16x32_bf16 v[20:23], {kreg(s, c)}, v[{4+4*c}:{7+4*c}], {'0' if c == 0 else 'v[20:23]'}")
            if tick and c == 0:
                I("s_mov_b32 s31, s6")
                if dmode:
                    I("s_mov_b32 s22, s56")
                    I("s_cmp_gt_i32 s26, 0")
                    I("s_cselect_b32 s57, 0, 16")
                    I("s_add_u32 s56, s56, s57")
                I("s_cmp_lt_u32 s22, s30")
                I("s_cselect_b32 s24, s6, 0")
                if dlay == 0:
                    I("s_lshl_b32 s22, s22, 14")
                    I(f"s_add_u32 s22, s22, {16 * dyn * 0x4000}")
                else:
                    I("s_and_b32 s29, s22, 15")
                    I("s_lshl_b32 s29, s29, 19")
                    I("s_lshr_b32 s22, s22, 4")
                    I("s_lshl_b32 s22, s22, 14")
                    I("s_add_u32 s22, s22, s29")
                    I(f"s_add_u32 s22, s22, {dyn * 0x4000}")
            if tick and c == 1:
                I("s_cmp_gt_i32 s26, 0")
                I("s_cselect_b32 s23, s23, s22")
                I("s_cselect_b32 s6, s6, s24")
                I("s_mov_b32 s10, s6")
            if tick and c == 2:
                I("s_cmp_lt_i32 s26, 3")
                I(f"s_cselect_b32 s18, {'0' if dmode == 1 else 's6'}, 0")
                I("s_sub_u32 s26, s26, 1")
                I(f"v_mov_b32 v{160 + (s + 1) % 3}, 1")
        if iss is not None:
            issueK(iss, tk=(160 + (s + 1) % 3) if tick else (0 if dyn else None), s2=iss2)
        I("v_max3_f32 v26, v20, v21, v22")
        I("v_max_f32 v26, v26, v23")
        I("v_mov_b32 v27, v26")
        I("v_permlane32_swap_b32 v26, v27")
        I("v_max_f32 v26, v26, v27")
        I("v_mov_b32 v27, v26")
        I("v_permlane16_swap_b32 v26, v27")
        I("v_max_f32 v26, v26, v27")
        I("v_mul_f32 v26, s25, v26")
        I("v_max_f32 v26, v24, v26")
        I("v_sub_f32 v62, v24, v26")
        for r in range(4):
            I(f"v_fma_f32 v{20+r}, v{20+r}, s25, -v26")
        I("v_exp_f32 v62, v62")
        I("v_exp_f32 v20, v20")
        I("v_exp_f32 v21, v21")
        I("v_mov_b32_dpp v58, v62 row_newbcast:0 row_mask:0x1 bank_mask:0xf")
        I("v_exp_f32 v22, v22")
        I("v_exp_f32 v23, v23")
        I("v_mov_b32_dpp v58, v62 row_newbcast:4 row_mask:0x2 bank_mask:0xf")
        I("v_mov_b32 v24, v26")
        I("v_cvt_pk_bf16_f32 v60, v20, v21")
        I("v_mov_b32_dpp v58, v62 row_newbcast:8 row_mask:0x4 bank_mask:0xf")
        I("v_cvt_pk_bf16_f32 v61, v22, v23")
        I("v_add_f32 v27, v20, v21")
        I("v_mov_b32_dpp v58, v62 row_newbcast:12 row_mask:0x8 bank_mask:0xf")
        I("v_add_f32 v26, v22, v23")
        for r in range(4):
            u = 60 + (r >> 1)
            I(f"v_perm_b32 v{38+4*r}, v{u}, v{u}, v{54 + (r & 1)}")
            I(f"v_perm_b32 v{39+4*r}, v{u}, v{u}, v{56 + (r & 1)}")
        I("v_add_f32 v27, v27, v26")
        for r in range(4):
            I(f"v_pk_mul_f32 v[{28+2*r}:{29+2*r}], v[{28+2*r}:{29+2*r}], v[58:59] op_sel_hi:[1,0]")
        I("v_fma_f32 v25, v25, v62, v27")
        if wv is not None:
            I(f"s_waitcnt vmcnt({wv})")
        if iss is not None and vearly:
            issueV(iss, s2=iss2)
        for r in range(4):
            I(f"v_mfma_f32_16x16x32_bf16 v[28:31], v[{38+4*r}:{41+4*r}], {vreg(s, r)}, v[28:31]")
            I(f"v_mfma_f32_16x16x32_bf16 v[32:35], v[{36+4*r}:{39+4*r}], {vreg(s, r)}, v[32:35]")
        if iss is not None and not vearly:
            issueV(iss)

    if pace > 12:
        assert not dyn
        proc(0, 44, 44, iss=0, vearly=False)
        proc(1, 44, 44, iss=1, vearly=False)
        proc(2, 44, 40)
        proc(3, 36, 32)
    else:
        proc(0, iss=0, vearly=False)
        proc(1, iss=1, vearly=False)
        proc(2)
        proc(3)
    if dyn:
        proc(4, 30, 26)
        proc(5, 22, 18)
        stamp(3)
        a.label("L_loop")
        proc(0, 13, 14, iss=2, tick=True)
        I("s_cmp_eq_u32 s31, 0")
        I("s_cbranch_scc1 L_epi")
        proc(1, 13, 14, iss=0, tick=True)
        I("s_cmp_eq_u32 s31, 0")
        I("s_cbranch_scc1 L_epi")
        proc(2, 13, 14, iss=1, tick=True)
        I("s_cmp_eq_u32 s31, 0")
        I("s_cbranch_scc1 L_epi")
        I("s_cmp_gt_i32 s26, -300")
        I("s_cbranch_scc1 L_loop")
    elif tdeep:
        proc(4, 28, 24)
        proc(5, 20, 16)
        stamp(3)
        a.label("L_loop")
        proc(0, 12, 12, iss=2)
        proc(1, 12, 12, iss=0)
        proc(2, 12, 12, iss=1)
        I("s_sub_u32 s26, s26, 1")
        I("s_cmp_lg_u32 s26, 0")
        I("s_cbranch_scc1 L_loop")
        if tdeep == 2:
            I("s_cbranch_execz L_epi")
        proc(0, 12, 16, iss=2, iss2=3)
        proc(1, 20, 24, iss=0, iss2=4)
        proc(2, 28, 28, iss=1, iss2=5)
        proc(3, None, 32)
        proc(0, 28, 20)
        proc(4, None, 16)
        proc(1, 12, 4)
        proc(5, None, 0)
    else:
        proc(4, 28, 24)
        proc(5, 20, 16)
        stamp(3)
        a.label("L_loop")
        I("s_cmp_eq_u32 s26, 0")
        I("s_cselect_b32 s6, 0, s6")
        I("s_cselect_b32 s10, 0, s10")
        proc(0, 12, 12, iss=2)
        proc(1, 12, 12, iss=0)
        I("s_cmp_eq_u32 s26, 0")
        I("s_cbranch_scc1 L_epi")
        proc(2, 12, 12, iss=1)
        I("s_sub_u32 s26, s26, 1")
        I("s_branch L_loop")
    a.label("L_epi")
    stamp(4)
    if prof and dyn:
        I(f"s_sub_u32 s80, {dyn - 2}, s26")
    I("v_mov_b32 v27, v25")
    I("ds_write_b128 v0, v[28:31]")
    I("v_permlane32_swap_b32 v25, v27")
    I("ds_write_b128 v0, v[32:35] offset:16")
    I("v_add_f32 v25, v25, v27")
    I("v_mov_b32 v27, v25")
    I("s_lshl_b32 s24, s3, 5")
    I(f"s_add_u32 s24, s24, {L_ML}")
    I("v_permlane16_swap_b32 v25, v27")
    I("v_add_f32 v25, v25, v27")
    I("v_mov_b32 v26, s24")
    I("ds_write_b64 v1, v[24:25]")
    if eml:
        I("v_mov_b32 v45, s21")
        I("s_mov_b32 s56, 0xaaaaaaaa")
        I("s_mov_b32 s57, 0xaaaaaaaa")
        I("s_mov_b32 s58, 0x07060302")
        I("s_mov_b32 s59, 0x05040100")
    else:
        I("v_mov_b32 v21, s21")
        I("v_mov_b32 v23, s21")
        I("v_mov_b32 v45, s21")
        I("v_mov_b32 v47, s21")
    I("s_waitcnt lgkmcnt(0)")
    barrier()
    I("ds_read_b128 v[4:7], v26")
    I("ds_read_b128 v[8:11], v26 offset:16")
    for w in range(4):
        I(f"ds_read_b64 v[{12+2*w}:{13+2*w}], v59 offset:{2048*w}")
    I("s_waitcnt lgkmcnt(4)")
    I("v_max3_f32 v44, v4, v6, v8")
    I("v_max_f32 v44, v44, v10")
    for w in range(4):
        I(f"v_sub_f32 v{4+2*w}, v{4+2*w}, v44")
    for w in range(4):
        I(f"v_exp_f32 v{4+2*w}, v{4+2*w}")
    I("v_mul_f32 v46, v4, v5")
    if eml:
        for w in range(1, 4):
            I(f"v_fmac_f32 v46, v{4+2*w}, v{5+2*w}")
        I("v_cndmask_b32 v44, v44, v46, s[56:57]")
        I("s_waitcnt lgkmcnt(0)")
        I("v_mul_f32 v20, v4, v12")
        I("v_mul_f32 v22, v4, v13")
        I("v_perm_b32 v21, v45, v44, s58")
        I("v_perm_b32 v23, v45, v44, s59")
        for w in range(1, 4):
            I(f"v_fmac_f32 v20, v{4+2*w}, v{12+2*w}")
            I(f"v_fmac_f32 v22, v{4+2*w}, v{13+2*w}")
    else:
        I("s_waitcnt lgkmcnt(0)")
        I("v_mul_f32 v20, v4, v12")
        I("v_mul_f32 v22, v4, v13")
        for w in range(1, 4):
            I(f"v_fmac_f32 v20, v{4+2*w}, v{12+2*w}")
            I(f"v_fmac_f32 v22, v{4+2*w}, v{13+2*w}")
            I(f"v_fmac_f32 v46, v{4+2*w}, v{5+2*w}")
    if drys:
        I("s_cbranch_execz L_hinit", flush=False)
    I("buffer_store_dwordx4 v[20:23], v63, s[12:15], s27 offen sc1")
    if not eml:
        I("s_mov_b64 exec, 1")
        I("buffer_store_dwordx4 v[44:47], off, s[12:15], s28 sc1")
    stamp(5)
    stamps_out("s3")
    diag_spin('S')
    a.label("L_exit", flush=False)
    I("s_endpgm")

    def red_b(v, t, op="v_add_f32"):
        I(f"{op}_dpp v{v}, v{v}, v{v} quad_perm:[1,0,3,2] {DPPF}")
        I(f"{op}_dpp v{v}, v{v}, v{v} quad_perm:[2,3,0,1] {DPPF}")
        I(f"{op}_dpp v{v}, v{v}, v{v} row_half_mirror {DPPF}")
        I(f"v_mov_b32 v{t}, v{v}")
        I(f"v_permlane16_swap_b32 v{v}, v{t}")
        I(f"{op} v{v}, v{v}, v{t}")
        I(f"v_mov_b32 v{t}, v{v}")
        I(f"v_permlane32_swap_b32 v{v}, v{t}")
        I(f"{op} v{v}, v{v}, v{t}")

    def unpack(src, f, n=8):
        for i in range(n):
            I(f"v_lshlrev_b32 v{f+2*i}, 16, v{src+i}")
            I(f"v_and_b32 v{f+2*i+1}, 0xffff0000, v{src+i}")

    def ln_stats(src, f, t):
        unpack(src, f)
        I(f"v_pk_add_f32 v[{t}:{t+1}], v[{f}:{f+1}], v[{f+2}:{f+3}]")
        I(f"v_pk_add_f32 v[{t+2}:{t+3}], v[{f+4}:{f+5}], v[{f+6}:{f+7}]")
        I(f"v_pk_add_f32 v[{t}:{t+1}], v[{t}:{t+1}], v[{f+8}:{f+9}]")
        I(f"v_pk_add_f32 v[{t+2}:{t+3}], v[{t+2}:{t+3}], v[{f+10}:{f+11}]")
        I(f"v_pk_add_f32 v[{t}:{t+1}], v[{t}:{t+1}], v[{f+12}:{f+13}]")
        I(f"v_pk_add_f32 v[{t+2}:{t+3}], v[{t+2}:{t+3}], v[{f+14}:{f+15}]")
        I(f"v_pk_add_f32 v[{t}:{t+1}], v[{t}:{t+1}], v[{t+2}:{t+3}]")
        I(f"v_add_f32 v{t}, v{t}, v{t+1}")
        red_b(t, t + 1)
        I(f"v_mul_f32 v{t}, {f32(1/512)}, v{t}")
        for i in range(8):
            I(f"v_pk_add_f32 v[{f+2*i}:{f+2*i+1}], v[{f+2*i}:{f+2*i+1}], v[{t}:{t+1}] op_sel_hi:[1,0] neg_lo:[0,1] neg_hi:[0,1]")
        I(f"v_pk_mul_f32 v[{t+2}:{t+3}], v[{f}:{f+1}], v[{f}:{f+1}]")
        I(f"v_pk_mul_f32 v[{t+4}:{t+5}], v[{f+2}:{f+3}], v[{f+2}:{f+3}]")
        for i in range(2, 8):
            d = t + 2 + 2 * (i & 1)
            I(f"v_pk_fma_f32 v[{d}:{d+1}], v[{f+2*i}:{f+2*i+1}], v[{f+2*i}:{f+2*i+1}], v[{d}:{d+1}]")
        I(f"v_pk_add_f32 v[{t+2}:{t+3}], v[{t+2}:{t+3}], v[{t+4}:{t+5}]")
        I(f"v_add_f32 v{t+2}, v{t+2}, v{t+3}")
        red_b(t + 2, t + 3)
        I(f"v_mul_f32 v{t+2}, {f32(1/512)}, v{t+2}")
        I(f"v_cvt_pk_bf16_f32 v{t+1}, v{t}, v{t+2}")
        I(f"v_lshlrev_b32 v{t}, 16, v{t+1}")
        I(f"v_and_b32 v{t+2}, 0xffff0000, v{t+1}")
        I(f"v_add_f32 v{t+2}, {f32(1e-5)}, v{t+2}")
        I(f"v_cvt_pk_bf16_f32 v{t+2}, v{t+2}, v{t+2}")
        I(f"v_and_b32 v{t+2}, 0xffff0000, v{t+2}")
        I(f"v_sqrt_f32 v{t+2}, v{t+2}")
        I(f"v_cvt_pk_bf16_f32 v{t+2}, v{t+2}, v{t+2}")
        I(f"v_and_b32 v{t+2}, 0xffff0000, v{t+2}")
        I(f"v_rcp_f32 v{t+2}, v{t+2}")

    def ln_apply(src, f, t, n=8, dup=None):
        unpack(src, f, n)
        for i in range(n):
            I(f"v_pk_add_f32 v[{f+2*i}:{f+2*i+1}], v[{f+2*i}:{f+2*i+1}], v[{t}:{t+1}] op_sel_hi:[1,0] neg_lo:[0,1] neg_hi:[0,1]")
        for i in range(n):
            I(f"v_cvt_pk_bf16_f32 v{src+i}, v{f+2*i}, v{f+2*i+1}")
        unpack(src, f, n)
        for i in range(n):
            I(f"v_pk_mul_f32 v[{f+2*i}:{f+2*i+1}], v[{f+2*i}:{f+2*i+1}], v[{t+2}:{t+3}] op_sel_hi:[1,0]")
        if dup is None:
            for i in range(n):
                I(f"v_cvt_pk_bf16_f32 v{src+i}, v{f+2*i}, v{f+2*i+1}")
        else:
            for i in range(2 * n):
                I(f"v_cvt_pk_bf16_f32 v{dup+i}, v{f+i}, v{f+i}")

    a.raw(".p2align 6")
    a.label("L_h0b")
    stamp(9)
    masks()
    I("v_lshrrev_b32 v13, 5, v0")
    I("v_lshlrev_b32 v13, 13, v13")
    I("v_and_b32 v14, 31, v0")
    I("v_lshl_or_b32 v13, v14, 4, v13")
    I("s_lshl_b32 s29, s25, 14")
    I("s_lshl_b32 s30, s24, 10")
    I("s_add_u32 s29, s29, s30")
    I(f"s_add_u32 s29, s29, {QP}")
    I("s_waitcnt lgkmcnt(0)")
    tagcalc(31)
    I("v_mov_b32 v57, s31")
    I("v_mov_b32 v59, s31")
    I("v_mov_b32 v61, s31")
    I("v_mov_b32 v63, s31")
    a.c("q producer")
    a.vm_reset(vm_h0)
    a.vm_wait("x")
    stamp(10)
    ln_stats(32, 128, 48)
    a.vm_wait("xa")
    ln_apply(40, 128, 48, dup=144)
    for t in range(16):
        for r in range(4):
            I(f"v_and_b32 v{160+4*t+r}, v{144+t}, v{4+r}")
    stamp(11)
    for t in range(16):
        ab = 160 + 4 * t
        a.vm_wait(f"wq{t}")
        if t == 0:
            stamp(12)
        I(f"v_mfma_f32_16x16x32_bf16 v[48:51], v[{ab}:{ab+3}], v[{64+4*t}:{67+4*t}], {'0' if t == 0 else 'v[48:51]'}")
    I("v_mov_b32 v56, v48")
    I("v_mov_b32 v58, v49")
    I("v_mov_b32 v60, v50")
    I("v_mov_b32 v62, v51")
    I("buffer_store_dwordx4 v[56:59], v13, s[12:15], s29 offen sc1")
    I("buffer_store_dwordx4 v[60:63], v13, s[12:15], s29 offen offset:512 sc1")
    I("v_mov_b32 v8, 1")
    I(f"v_mov_b32 v9, {L_FL}")
    I("ds_write_b32 v9, v8")
    stamp(1)

    a.label("L_hinit")
    I("s_mov_b64 exec, -1")
    I("s_setprio 3")
    I("s_sub_u32 s3, s3, 4")
    I("s_waitcnt lgkmcnt(0)")
    I("s_load_dword s21, s[12:13], 0")
    I(f"s_mov_b32 s22, {budget}")
    lanebits()
    I("v_lshlrev_b32 v12, 4, v0")
    I("s_and_b32 s24, s2, 7")
    I("s_lshr_b32 s25, s2, 3")
    I("s_lshr_b32 s23, s2, 5")
    I("s_lshl_b32 s23, s23, 3")
    I("s_add_u32 s23, s23, s24")
    I("s_lshl_b32 s28, s23, 2")
    I("s_add_u32 s28, s28, s3")
    I("s_lshl_b32 s29, s28, 14")
    I("s_and_b32 s30, s25, 3")
    I("s_lshl_b32 s31, s30, 8")
    I("s_add_u32 s29, s29, s31")
    I("s_add_u32 s16, s40, s29")
    I("s_addc_u32 s17, s41, 0")
    I(f"s_mov_b32 s18, {15*1024+256}")
    I("s_mov_b32 s19, 0x00020000")
    I("v_and_b32 v15, 1, v2")
    I("v_lshlrev_b32 v15, 13, v15")
    I("v_lshrrev_b32 v14, 1, v2")
    I("v_lshl_or_b32 v15, v14, 10, v15")
    I("v_lshl_or_b32 v15, v3, 4, v15")
    I("s_movk_i32 s26, 0x1000")
    for t in range(0 if nowo else 4):
        I(f"buffer_load_dwordx4 v[{16+4*t}:{19+4*t}], v15, s[16:19], {'s26' if t >= 2 else '0'} offen offset:{2048*(t&1)} nt")
    I("s_mov_b32 s4, s32")
    I("s_mov_b32 s5, s33")
    I("s_mov_b32 s6, 2048")
    I("s_mov_b32 s54, 2048")
    I("s_mov_b32 s55, 0x00020000")
    I("v_mov_b32 v61, 0")
    I("s_cmp_eq_u32 s3, 0")
    I("s_cbranch_scc1 L_igate")
    I("s_cmp_eq_u32 s3, 3")
    I("s_cbranch_scc1 L_qw")
    I(f"s_cmp_ge_u32 s2, {0 if mlv < 1 else 224}")
    I("s_cbranch_scc1 L_qw")
    I("s_cmp_eq_u32 s3, 1")
    I(f"s_cbranch_scc1 {'L_qw' if m1e else 'L_imlp1'}")
    I("s_lshr_b32 s26, s24, 2")
    I("s_lshl_b32 s27, s25, 1")
    I("s_add_u32 s27, s27, s26")
    I("s_lshl_b32 s29, s27, 15")
    I("s_and_b32 s26, s24, 3")
    I("s_lshl_b32 s26, s26, 8")
    I("s_add_u32 s29, s29, s26")
    I("s_add_u32 s8, s48, s29")
    I("s_addc_u32 s9, s49, 0")
    I(f"s_mov_b32 s10, {31*1024+256}")
    I("v_lshlrev_b32 v14, 4, v3")
    I("v_lshl_or_b32 v14, v2, 13, v14")
    I("s_movk_i32 s29, 0x1000")
    for t in range(8):
        I(f"buffer_load_dwordx4 v[{64+4*t}:{67+4*t}], v14, s[8:11], {'s29' if t >= 4 else '0'} offen offset:{1024*(t&3)} nt")
    I("s_lshl_b32 s29, s25, 7")
    I("s_add_u32 s16, s46, s29")
    I("s_addc_u32 s17, s47, 0")
    I("s_mov_b32 s18, 128")
    I("v_and_b32 v47, 7, v0")
    I("v_lshlrev_b32 v47, 4, v47")
    I("v_lshl_or_b32 v47, v1, 3, v47")
    I("v_lshrrev_b32 v14, 5, v0")
    I("v_lshl_or_b32 v47, v14, 2, v47")
    I("buffer_load_dword v62, v47, s[16:19], 0 offen")
    I("s_branch L_qw")
    a.label("L_imlp1")
    I("v_and_b32 v13, 7, v0")
    I("v_lshl_or_b32 v14, v2, 3, v13")
    I("v_lshlrev_b32 v14, 5, v14")
    I("v_lshl_or_b32 v14, v1, 10, v14")
    I("buffer_load_dwordx4 v[32:35], v14, s[4:7], 0 offen")
    I("buffer_load_dwordx4 v[36:39], v14, s[4:7], 0 offen offset:16")
    I("v_bfe_u32 v14, v0, 2, 1")
    I("v_lshl_or_b32 v14, v2, 1, v14")
    I("v_lshlrev_b32 v14, 4, v14")
    I("v_lshl_or_b32 v14, v1, 10, v14")
    I("s_lshl_b32 s26, s24, 7")
    I("buffer_load_dwordx4 v[40:43], v14, s[4:7], s26 offen")
    I(f"s_mul_i32 s26, s24, {64*3584}")
    I("s_lshl_b32 s27, s25, 7")
    I("s_add_u32 s26, s26, s27")
    I("s_add_u32 s8, s44, s26")
    I("s_addc_u32 s9, s45, 0")
    I(f"s_mov_b32 s10, {63*3584+128}")
    I("v_lshl_or_b32 v14, v2, 1, v1")
    I(f"v_mul_u32_u24 v14, {8*3584}, v14")
    I("v_lshl_add_u32 v14, v13, 4, v14")
    I("s_mov_b32 s26, 0")
    for i in range(8):
        I(f"buffer_load_dwordx4 v[{64+4*i}:{67+4*i}], v14, s[8:11], s26 offen offset:{3584*(i & 1)} nt")
        if i & 1 and i < 7:
            I("s_add_u32 s26, s26, 7168")
    I("s_branch L_qw")
    a.label("L_igate")
    I("s_bfe_u32 s26, s2, 0x20001")
    I("s_lshl_b32 s26, s26, 7")
    I("s_and_b32 s27, s25, 7")
    I("s_lshl_b32 s27, s27, 4")
    I("s_add_u32 s26, s26, s27")
    I("s_bfe_u32 s27, s25, 0x10003")
    I("s_lshl_b32 s27, s27, 2")
    I("s_add_u32 s26, s26, s27")
    I("s_lshr_b32 s27, s25, 4")
    I("s_lshl_b32 s27, s27, 1")
    I("s_add_u32 s26, s26, s27")
    I("v_lshrrev_b32 v60, 5, v0")
    I("v_and_b32 v61, 1, v0")
    I("v_lshl_or_b32 v60, v61, 3, v60")
    I("v_add_u32 v60, s26, v60")
    I("v_lshlrev_b32 v60, 1, v60")
    I("s_and_b32 s27, s2, 1")
    I("s_lshl_b32 s27, s27, 10")
    I("v_add_u32 v61, s27, v60")
    I("s_mov_b32 s8, s50")
    I("s_mov_b32 s9, s51")
    I("s_mov_b32 s10, 1024")
    I("buffer_load_ushort v62, v61, s[4:7], 0 offen")
    I("buffer_load_ushort v63, v60, s[8:11], 0 offen")

    a.label("L_qw")
    I("s_lshr_b32 s26, s20, 4")
    I("s_and_b32 s27, s26, 7")
    I("s_lshl_b32 s27, s27, 2")
    I("s_add_u32 s27, s27, s3")
    I("s_lshl_b32 s27, s27, 14")
    I("s_lshr_b32 s26, s26, 3")
    I("s_lshl_b32 s26, s26, 13")
    I("s_add_u32 s26, s26, s27")
    I(f"s_add_u32 s26, s26, {QP}")
    I("s_add_u32 s27, s26, 4096")
    I("v_lshlrev_b32 v13, 4, v3")
    I("v_bfe_u32 v14, v0, 4, 1")
    I("v_lshl_or_b32 v13, v14, 3, v13")
    I("v_lshrrev_b32 v14, 5, v0")
    I("v_lshl_or_b32 v13, v14, 2, v13")
    I("s_lshl_b32 s29, s3, 8")
    I("v_add_u32 v13, s29, v13")
    masks()
    I("s_waitcnt lgkmcnt(0)")
    tagcalc()
    stamp(13)
    I("s_cmp_eq_u32 s3, 0")
    I("s_cbranch_scc1 L_qpoll")
    I(f"v_mov_b32 v14, {L_FL}")
    a.label("L_fw")
    I("ds_read_b32 v15, v14")
    I("s_waitcnt lgkmcnt(0)")
    I("v_readfirstlane_b32 s29, v15")
    I("s_cmp_lg_u32 s29, 0")
    I("s_cbranch_scc1 L_fok")
    I("s_sleep 2")
    I("s_sub_u32 s22, s22, 1")
    I("s_cbranch_scc0 L_fw")
    I("s_mov_b32 s22, 0")
    a.label("L_fok")
    if qd:
        I(f"s_sleep {qd}")
    a.label("L_qpoll")

    pollid = [0]

    def poll(loads, tags, sleep=0, live="-1", lives=None, depth=1, gap=0, st=None):
        k = pollid[0]; pollid[0] += 1
        M = [f"s[{32+2*i}:{33+2*i}]" for i in range(len(loads))]
        for i_, m in enumerate(M):
            I(f"s_mov_b64 {m}, {lives[i_] if lives else live}")
        for _ in range(depth - 1):
            for l, m in zip(loads, M):
                I(f"s_mov_b64 exec, {m}")
                I(l)
            I(f"s_sleep {gap}")
        a.label(f"L_poll{k}")
        if st is not None and prof:
            I(f"s_mov_b64 s[{64+2*st+2}:{64+2*st+3}], s[{64+2*st}:{64+2*st+1}]")
            stamp(st)
        for l, m in zip(loads, M):
            I(f"s_mov_b64 exec, {m}")
            I(l)
        I("s_mov_b32 s58, 0")
        I(f"s_waitcnt vmcnt({len(loads) * (depth - 1)})" + (" lgkmcnt(0)" if prof else ""))
        for tg, m in zip(tags, M):
            t1, t2 = tg[0], tg[1]
            I(f"s_mov_b64 exec, {m}")
            if len(tg) == 3:
                I(f"v_perm_b32 v{tg[2]}, v{t1}, v{t2}, s48")
                I(f"v_cmpx_eq_u32 vcc, s21, v{tg[2]}")
            else:
                I(f"v_cmpx_eq_u32 vcc, s21, v{t1}")
                I(f"v_cmpx_eq_u32 vcc, s21, v{t2}")
            I(f"s_andn2_b64 {m}, {m}, exec")
            I("s_addc_u32 s58, s58, 0")
        I(f"s_mov_b64 exec, {live}")
        I("s_cmp_eq_u32 s58, 0")
        I(f"s_cbranch_scc1 L_pok{k}", flush=False)
        p0 = a.pos
        h0 = list(a.hist)
        if sleep:
            I(f"s_sleep {sleep}")
        I("s_sub_u32 s22, s22, 1")
        I(f"s_cbranch_scc0 L_poll{k}", flush=False)
        I("s_mov_b32 s22, 0")
        a.label(f"L_pok{k}", flush=False)
        a.pos = p0
        a.hist = h0
        a.vm_reset()

    def tp(base, n):
        return [(base + 4 * i + 1, base + 4 * i + 3) for i in range(n)]

    def sum8(base):
        for k in (0, 2, 4, 6):
            I(f"v_add_f32 v{base+4*k}, v{base+4*k}, v{base+4+4*k}")
            I(f"v_add_f32 v{base+2+4*k}, v{base+2+4*k}, v{base+6+4*k}")
        for k in (0, 4):
            I(f"v_add_f32 v{base+4*k}, v{base+4*k}, v{base+8+4*k}")
            I(f"v_add_f32 v{base+2+4*k}, v{base+2+4*k}, v{base+10+4*k}")
        I(f"v_add_f32 v{base}, v{base}, v{base+16}")
        I(f"v_add_f32 v{base+2}, v{base+2}, v{base+18}")

    a.c("q consumer")
    stamp(15)
    if not noq:
        poll([f"buffer_load_dwordx4 v[{128+4*k}:{131+4*k}], v12, s[12:15], s{26+(k>>2)} offen offset:{1024*(k&3)} sc1" for k in range(8)],
             tp(128, 8), sleep=slpq)
    sum8(128)
    I("v_cvt_pk_bf16_f32 v128, v128, v130")
    I(f"ds_write_b32 v13, v128 offset:{L_Q}")
    if fb1:
        I(f"v_mov_b32 v14, {L_FL}")
        I("v_mov_b32 v15, 1")
        I("s_mov_b64 exec, 1")
        I("s_waitcnt lgkmcnt(0)")
        I("ds_add_u32 v14, v15 offset:4")
        I("s_mov_b64 exec, -1")
        stamp(2)
    else:
        I("s_waitcnt lgkmcnt(0)")
        stamp(2)
        I("s_barrier")
    I("v_lshrrev_b32 v46, 1, v0")
    I(f"v_mul_u32_u24 v46, {SO2}, v46")
    I("v_and_b32 v14, 1, v0")
    I("v_lshl_add_u32 v46, v14, 4, v46")
    I("s_bfe_u32 s26, s2, 0x20001")
    I(f"s_mul_i32 s31, s26, {64*SO2}")
    I("s_lshr_b32 s27, s25, 4")
    I("s_lshl_b32 s27, s27, 10")
    I("s_add_u32 s31, s31, s27")
    I("s_and_b32 s27, s2, 1")
    I("s_lshl_b32 s27, s27, 9")
    I("s_add_u32 s31, s31, s27")
    I("s_and_b32 s27, s25, 15")
    I("s_lshl_b32 s27, s27, 5")
    I("s_add_u32 s31, s31, s27")
    I("s_mov_b32 s62, 3")
    I("s_mov_b32 s63, 3")
    I(f"s_cmp_eq_u32 s3, {3 if dryt else 99}")
    I("s_cselect_b64 s[60:61], 0, -1")
    if hprio != 3:
        I(f"s_setprio {hprio}")
    I(f"s_cmp_eq_u32 s3, {99 if (mlv < 4 or gdef) else 0}")
    I("s_cbranch_scc1 L_gate")
    I("s_cmp_eq_u32 s3, 0")
    I("s_cbranch_scc1 L_tail")
    I("s_cmp_eq_u32 s3, 3")
    I("s_cbranch_scc1 L_tail")
    I(f"s_cmp_ge_u32 s2, {0 if mlv < 2 else 224}")
    I("s_cbranch_scc1 L_tail")
    I("s_cmp_eq_u32 s3, 1")
    I(f"s_cbranch_scc1 {'L_tail' if m1e else 'L_mlp1'}")
    if mlv >= 3:
        I("s_branch L_mlp2")
    else:
        I("s_branch L_tail")

    def rbf(v):
        I(f"v_cvt_pk_bf16_f32 v{v}, v{v}, v{v}")
        I(f"v_and_b32 v{v}, 0xffff0000, v{v}")

    def reduce2(x0, x1):
        I(f"v_permlane32_swap_b32 v{x0}, v{x1}")
        I(f"v_add_f32 v{x0}, v{x0}, v{x1}")
        I(f"v_mov_b32 v{x1}, v{x0}")
        I(f"v_permlane16_swap_b32 v{x0}, v{x1}")
        I(f"v_add_f32 v{x0}, v{x0}, v{x1}")
        I(f"v_add_f32_dpp v{x0}, v{x0}, v{x0} row_ror:8 {DPPF}")
        I(f"v_add_f32_dpp v{x0}, v{x0}, v{x0} row_ror:4 {DPPF}")
        I(f"v_add_f32_dpp v{x0}, v{x0}, v{x0} quad_perm:[2,3,0,1] {DPPF}")

    def gate_calc():
        I("v_cndmask_b32 v136, 0, v132, s[56:57]")
        I("v_cndmask_b32 v138, 0, v134, s[56:57]")
        I("v_add_f32 v136, v128, v136")
        I("v_add_f32 v138, v130, v138")
        reduce2(136, 138)
        rbf(136)
        I("v_lshlrev_b32 v63, 16, v63")
        I("v_lshlrev_b32 v62, 16, v62")
        I("v_add_f32 v136, v136, v63")
        rbf(136)
        I(f"v_mul_f32 v63, {f32(-LOG2E)}, v136")
        I("v_exp_f32 v63, v63")
        I("v_add_f32 v63, 1.0, v63")
        I("v_rcp_f32 v63, v63")
        I("v_mul_f32 v63, v63, v136")
        rbf(63)

    a.raw(".p2align 6")
    a.label("L_tail")
    if hprio != 3:
        I("s_setprio 3")
    I(f"v_mul_u32_u24 v13, {512*SO1}, v1")
    I(f"v_mul_u32_u24 v14, {4*SO1}, v2")
    I("v_add_u32 v13, v13, v14")
    I("v_and_b32 v14, 7, v0")
    I("v_lshl_add_u32 v13, v14, 4, v13")
    I("v_and_b32 v14, 3, v0")
    I("v_lshlrev_b32 v14, 4, v14")
    I("v_lshl_or_b32 v14, v2, 6, v14")
    I("v_lshl_or_b32 v14, v1, 13, v14")
    I("s_lshr_b32 s27, s28, 3")
    I(f"s_mul_i32 s26, s27, {16*SO1}")
    I("s_and_b32 s29, s28, 7")
    I("s_lshl_b32 s29, s29, 7")
    I("s_add_u32 s26, s26, s29")
    I(f"s_add_u32 s26, s26, {O1}")
    I("s_lshl_b32 s27, s27, 8")
    I(f"s_add_u32 s27, s27, {ML}")
    I("s_lshl_b32 s29, s3, 10")
    I(f"s_add_u32 s29, s29, {L_RL - 1024}")
    I("v_add_u32 v15, s29, v12")
    I("s_lshl_b32 s29, s30, 6")
    I("s_add_u32 s29, s29, s23")
    I(f"s_mul_i32 s29, s29, {SO2}")
    I(f"s_add_u32 s29, s29, {O2}")
    I(f"s_add_u32 s24, s31, {O2}")
    I(f"s_add_u32 s25, s31, {O2 + 32*SO2}")
    I("v_mov_b32 v53, s21")
    I("v_mov_b32 v55, s21")
    I("v_mov_b32 v57, s21")
    I("v_mov_b32 v59, s21")
    if gdef:
        I(f"s_add_u32 s31, s31, {OM}")
        I("v_cmp_gt_u32 s[56:57], 48, v0")
        I(f"v_add_u32 v47, {32*SO2}, v46")
        I("v_cndmask_b32 v47, v46, v47, s[56:57]")
        I("s_cmp_eq_u32 s3, 0")
        I("s_cselect_b64 s[50:51], -1, 0")
    if eml:
        I("s_mov_b32 s48, 0x07060302")
        I("s_mov_b32 s49, 0x05040100")
    a.label("L_tail2")
    I("s_mov_b64 exec, s[60:61]")
    I("s_waitcnt vmcnt(0)")
    barrier()
    stamp(4)
    lds_ = [] if eml else [f"buffer_load_dwordx4 v[80:83], v14, s[12:15], s27 offen sc1"]
    for i in range(4):
        lds_.append(f"buffer_load_dwordx4 v[{64+4*i}:{67+4*i}], v13, s[12:15], s26 offen offset:{SO1*i} sc1")
    tg1 = [(65 + 4 * i, 67 + 4 * i, 92 + i) for i in range(4)] if eml else tp(80, 1) + tp(64, 4)
    assert gdef
    lds_ += [f"buffer_load_dwordx4 v[{128+4*e}:{131+4*e}], v{46+e}, s[12:15], s31 offen sc1" for e in range(2)]
    poll(lds_, tg1 + tp(128, 2), sleep=slp1, live="s[60:61]", lives=["s[60:61]"] * len(tg1) + ["s[50:51]"] * 2, depth=pd1, gap=pg1, st=8)
    stamp(5)
    if eml:
        for i in range(4):
            I(f"v_perm_b32 v{80+i}, v{65+4*i}, v{67+4*i}, s49")
        I("v_max3_f32 v84, v80, v81, v82")
        I("v_max_f32 v84, v84, v83")
    else:
        I(f"v_max_f32_dpp v84, v80, v80 quad_perm:[1,0,3,2] {DPPF}")
        I(f"v_max_f32_dpp v84, v84, v84 quad_perm:[2,3,0,1] {DPPF}")
    I("v_mov_b32 v85, v84")
    I("v_permlane16_swap_b32 v84, v85")
    I("v_max_f32 v84, v84, v85")
    I("v_mov_b32 v85, v84")
    I("v_permlane32_swap_b32 v84, v85")
    I("v_max_f32 v84, v84, v85")
    if eml:
        for i in range(4):
            I(f"v_sub_f32 v{92+i}, v{80+i}, v84")
        for i in range(4):
            I(f"v_exp_f32 v{92+i}, v{92+i}")
        for i in range(4):
            op = "v_mul_f32_dpp" if i == 0 else "v_fmac_f32_dpp"
            I(f"{op} v87, v{92+i}, v{80+i} quad_perm:[0,0,2,2] {DPPF}")
            I(f"{op} v88, v{92+i}, v{64+4*i} quad_perm:[0,0,2,2] {DPPF}")
            I(f"{op} v90, v{92+i}, v{66+4*i} quad_perm:[0,0,2,2] {DPPF}")
        I("v_mov_b32 v91, v87")
    else:
        I("v_sub_f32 v86, v80, v84")
        I("v_exp_f32 v86, v86")
        I("v_mul_f32 v87, v86, v82")
        I(f"v_mul_f32_dpp v88, v86, v64 quad_perm:[0,0,0,0] {DPPF}")
        I(f"v_mul_f32_dpp v90, v86, v66 quad_perm:[0,0,0,0] {DPPF}")
        I(f"v_add_f32_dpp v87, v87, v87 quad_perm:[1,0,3,2] {DPPF}")
        for i in range(1, 4):
            I(f"v_fmac_f32_dpp v88, v86, v{64+4*i} quad_perm:[{i},{i},{i},{i}] {DPPF}")
            I(f"v_fmac_f32_dpp v90, v86, v{66+4*i} quad_perm:[{i},{i},{i},{i}] {DPPF}")
            if i == 1:
                I(f"v_add_f32_dpp v87, v87, v87 quad_perm:[2,3,0,1] {DPPF}")
            if i == 2:
                I("v_mov_b32 v91, v87")
    I("v_permlane32_swap_b32 v87, v91")
    I("v_permlane32_swap_b32 v88, v90")
    I("v_add_f32 v87, v87, v91")
    I("v_add_f32 v88, v88, v90")
    I("v_permlane16_swap_b32 v88, v87")
    I("v_add_f32 v88, v88, v87")
    I("v_mov_b32 v87, v88")
    I("v_permlane16_swap_b32 v88, v87")
    I(f"v_rcp_f32_dpp v87, v87 quad_perm:[1,1,3,3] {DPPF}" if eml else "v_rcp_f32 v87, v87")
    I("v_mul_f32 v88, v88, v87")
    I("v_cvt_pk_bf16_f32 v88, v88, v88")
    I("v_mov_b32_dpp v88, v88 row_shr:4 row_mask:0x5 bank_mask:0xa")
    I("v_mov_b32_dpp v88, v88 row_shl:4 row_mask:0xa bank_mask:0x5")
    for t in range(4):
        for r in range(4):
            I(f"v_and_b32_dpp v{96+4*t+r}, v88, v{4+r} quad_perm:[{t},{t},{t},{t}] {DPPF}")
    for t in range(4):
        I(f"v_mfma_f32_16x16x32_bf16 v[48:51], v[{96+4*t}:{99+4*t}], v[{16+4*t}:{19+4*t}], {'0' if t == 0 else 'v[48:51]'}")
    I("s_cbranch_execz L_fin", flush=False)
    I("s_cmp_eq_u32 s3, 0")
    I("s_cbranch_scc1 L_fin", flush=False)
    I("ds_write_b128 v15, v[48:51]")
    I("s_waitcnt lgkmcnt(0)")
    I("s_barrier")
    if prof:
        I("s_add_u32 s3, s3, 4")
        stamps_out("s3")
    I("s_endpgm")
    a.label("L_fin")
    barrier()
    for w in range(3):
        I(f"ds_read_b128 v[{112+4*w}:{115+4*w}], v12 offset:{L_RL + 1024*w}")
    I("s_waitcnt lgkmcnt(1)")
    for r in range(4):
        I(f"v_add_f32 v{48+r}, v{48+r}, v{112+r}")
    for r in range(4):
        I(f"v_add_f32 v{48+r}, v{48+r}, v{116+r}")
    I("s_waitcnt lgkmcnt(0)")
    for r in range(4):
        I(f"v_add_f32 v{52+2*r}, v{48+r}, v{120+r}")
    I("buffer_store_dwordx4 v[52:55], v12, s[12:15], s29 offen sc1")
    I("buffer_store_dwordx4 v[56:59], v12, s[12:15], s29 offen offset:1024 sc1")
    stamp(6)
    if gdef:
        gate_calc()
    poll([f"buffer_load_dwordx4 v[{140+4*e}:{143+4*e}], v46, s[12:15], s{24+e} offen sc1" for e in range(2)],
         tp(140, 2), sleep=slp2, live="s[60:61]", depth=pd2, gap=pg2, st=10)
    stamp(14)
    I("v_add_f32 v148, v140, v144")
    I("v_add_f32 v150, v142, v146")
    reduce2(148, 150)
    rbf(148)
    I("v_mul_f32 v148, v148, v63")
    rbf(148)
    I("v_add_f32 v148, v148, v62")
    I("v_cvt_pk_bf16_f32 v148, v148, v148")
    I("s_and_b64 exec, exec, s[62:63]")
    I(f"buffer_store_short v148, v61, s[52:55], 0 offen {osc}")
    I("s_cbranch_execz L_dry2", flush=False)
    I("s_cmp_lg_u32 s2, 0")
    I("s_cbranch_scc1 L_end2", flush=False)
    I("s_mov_b64 exec, 1")
    I("buffer_store_dword v53, off, s[12:15], 0 sc1")
    a.label("L_end2")
    stamp(7)
    stamps_out("4")
    diag_spin('H')
    I("s_endpgm")
    a.label("L_dry2")
    I("s_mov_b64 s[60:61], -1")
    stamp(3)
    I("s_branch L_tail2")

    a.raw(".p2align 6")
    a.label("L_gate")
    a.c("gate value for this workgroup's 4 outputs")
    I(f"s_add_u32 s26, s31, {OM}")
    I("v_cmp_gt_u32 s[56:57], 48, v0")
    I(f"v_add_u32 v47, {32*SO2}, v46")
    I("v_cndmask_b32 v47, v46, v47, s[56:57]")
    poll([f"buffer_load_dwordx4 v[{128+4*e}:{131+4*e}], v{46+e}, s[12:15], s26 offen sc1" for e in range(2)],
         tp(128, 2), sleep=slpg)
    gate_calc()
    stamp(3)
    I("s_branch L_tail")

    if m1e:
        a.raw(".p2align 6")
        a.label("L_h1b")
        a.vm_reset(vm_h1)
        I("s_load_dword s31, s[12:13], 0")
        masks()
        I("v_or_b32 v116, v4, v6")
        I("v_or_b32 v117, v5, v7")
        for i in range(9):
            I(f"v_mov_b32 v{120+4*i}, 0")
            I(f"v_mov_b32 v{121+4*i}, 0")
        I("v_lshlrev_b32 v13, 4, v13")
        I("v_lshl_or_b32 v13, v2, 7, v13")
        I("s_lshl_b32 s26, s2, 10")
        I(f"s_add_u32 s26, s26, {HP}")
        I("s_waitcnt lgkmcnt(0)")
        tagcalc(31)
        for r in range(4):
            I(f"v_mov_b32 v{161+2*r}, s31")
        a.vm_wait("x")
        ln_stats(32, 96, 48)
        ln_apply(32, 96, 48)
        ln_stats(32, 96, 54)
        a.vm_wait("xa")
        ln_apply(40, 96, 48, n=4)
        ln_apply(40, 96, 54, n=4, dup=104)
        for i in range(8):
            I(f"v_and_b32 v{122+4*i}, v{104+i}, v116")
            I(f"v_and_b32 v{123+4*i}, v{104+i}, v117")
        for i in range(8):
            cx = '0' if i == 0 else 'v[32:35]'
            cy = '0' if i == 0 else 'v[36:39]'
            a.vm_wait(f"w{i}")
            I(f"v_mfma_f32_16x16x32_bf16 v[32:35], v[{122+4*i}:{125+4*i}], v[{64+4*i}:{67+4*i}], {cx}")
            I(f"v_mfma_f32_16x16x32_bf16 v[36:39], v[{120+4*i}:{123+4*i}], v[{64+4*i}:{67+4*i}], {cy}")
        for r in range(4):
            I(f"v_permlane16_swap_b32 v{32+r}, v{36+r}")
        for r in range(4):
            I(f"v_add_f32_dpp v{160+2*r}, v{36+r}, v{32+r} row_ror:8 {DPPF}")
        I("s_mov_b32 exec_lo, 0x00ff00ff")
        I("s_mov_b32 exec_hi, 0x00ff00ff")
        I("buffer_store_dwordx4 v[160:163], v13, s[12:15], s26 offen sc1")
        I("buffer_store_dwordx4 v[164:167], v13, s[12:15], s26 offen offset:512 sc1")
        stamp(3)
        I("s_branch L_hinit")

    a.raw(".p2align 6")
    a.label("L_mlp1")
    a.c("channel MLP layer 1: 64 hidden columns x 64 rows")
    I("v_and_b32 v13, 7, v0")
    I("v_or_b32 v116, v4, v6")
    I("v_or_b32 v117, v5, v7")
    for i in range(9):
        I(f"v_mov_b32 v{120+4*i}, 0")
        I(f"v_mov_b32 v{121+4*i}, 0")
    I("v_lshlrev_b32 v13, 4, v13")
    I("v_lshl_or_b32 v13, v2, 7, v13")
    I("s_lshl_b32 s26, s2, 10")
    I(f"s_add_u32 s26, s26, {HP}")
    ln_stats(32, 96, 48)
    ln_apply(32, 96, 48)
    ln_stats(32, 96, 54)
    ln_apply(40, 96, 48, n=4)
    ln_apply(40, 96, 54, n=4, dup=104)
    for i in range(8):
        I(f"v_and_b32 v{122+4*i}, v{104+i}, v116")
        I(f"v_and_b32 v{123+4*i}, v{104+i}, v117")
    for i in range(8):
        cx = '0' if i == 0 else 'v[32:35]'
        cy = '0' if i == 0 else 'v[36:39]'
        I(f"v_mfma_f32_16x16x32_bf16 v[32:35], v[{122+4*i}:{125+4*i}], v[{64+4*i}:{67+4*i}], {cx}")
        I(f"v_mfma_f32_16x16x32_bf16 v[36:39], v[{120+4*i}:{123+4*i}], v[{64+4*i}:{67+4*i}], {cy}")
    for r in range(4):
        I(f"v_mov_b32 v{65+2*r}, s21")
    for r in range(4):
        I(f"v_permlane16_swap_b32 v{32+r}, v{36+r}")
    for r in range(4):
        I(f"v_add_f32_dpp v{64+2*r}, v{36+r}, v{32+r} row_ror:8 {DPPF}")
    I("s_mov_b32 exec_lo, 0x00ff00ff")
    I("s_mov_b32 exec_hi, 0x00ff00ff")
    I("buffer_store_dwordx4 v[64:67], v13, s[12:15], s26 offen sc1")
    I("buffer_store_dwordx4 v[68:71], v13, s[12:15], s26 offen offset:512 sc1")
    I("s_mov_b64 exec, -1")
    stamp(3)
    I("s_branch L_tail")

    a.raw(".p2align 6")
    a.label("L_mlp2")
    a.c("channel MLP layer 2: 32 hidden rows x 128 columns")
    I("s_lshr_b32 s26, s24, 2")
    I("s_lshl_b32 s27, s25, 1")
    I("s_add_u32 s27, s27, s26")
    I("s_and_b32 s24, s24, 3")
    I("v_lshlrev_b32 v13, 1, v47")
    I("v_and_b32 v14, 1, v2")
    I("v_lshl_or_b32 v13, v14, 8, v13")
    I("s_lshl_b32 s26, s26, 7")
    I("v_lshlrev_b32 v14, 5, v2")
    I("v_lshl_or_b32 v14, v1, 8, v14")
    I("v_add_u32 v14, s26, v14")
    I("s_lshl_b32 s24, s24, 6")
    I("s_add_u32 s29, s24, s27")
    I(f"s_mul_i32 s29, s29, {SO2}")
    I(f"s_add_u32 s29, s29, {OM}")
    I("s_lshl_b32 s26, s25, 13")
    I(f"s_add_u32 s26, s26, {HP}")
    I("s_add_u32 s27, s26, 4096")
    I("v_lshlrev_b32 v15, 10, v0")
    I("s_movk_i32 s56, 0xff")
    I("s_mov_b32 s57, 0")
    for _ in range(m2sl):
        I("s_sleep 127")
    if m2pl:
        if not m2sl and not m1e:
            poll(["buffer_load_dwordx4 v[128:131], v15, s[12:15], s26 offen offset:1008 sc1"], tp(128, 1), sleep=slpm, live="s[56:57]")
        I("s_mov_b64 exec, -1")
        poll([f"buffer_load_dwordx4 v[{128+4*k}:{131+4*k}], v12, s[12:15], s{26+(k>>2)} offen offset:{1024*(k&3)} sc1" for k in range(8)],
             tp(128, 8), sleep=slpm)
    sum8(128)
    I("v_cvt_pk_bf16_f32 v32, v128, v130")
    unpack(32, 36, 1)
    unpack(62, 40, 1)
    for r in range(2):
        I(f"v_add_f32 v{36+r}, v{36+r}, v{40+r}")
    I("v_cvt_pk_bf16_f32 v32, v36, v37")
    unpack(32, 36, 1)
    kk = -2.0 * math.sqrt(2.0 / math.pi) * LOG2E
    I(f"s_mov_b32 s26, {f32(kk * 0.044715)}")
    I(f"v_mov_b32 v44, {f32(kk)}")
    for r in range(2):
        I(f"v_mul_f32 v{40+r}, v{36+r}, v{36+r}")
    for r in range(2):
        I(f"v_fma_f32 v{40+r}, v{40+r}, s26, v44")
    for r in range(2):
        I(f"v_mul_f32 v{40+r}, v{40+r}, v{36+r}")
    for r in range(2):
        I(f"v_exp_f32 v{40+r}, v{40+r}")
    for r in range(2):
        I(f"v_add_f32 v{40+r}, 1.0, v{40+r}")
    for r in range(2):
        I(f"v_rcp_f32 v{40+r}, v{40+r}")
    for r in range(2):
        I(f"v_mul_f32 v{40+r}, v{40+r}, v{36+r}")
    I("v_cvt_pk_bf16_f32 v32, v40, v40")
    I("v_cvt_pk_bf16_f32 v33, v41, v41")
    I(f"ds_write_b64 v13, v[32:33] offset:{L_HL}")
    I("s_waitcnt lgkmcnt(0)")
    I(f"ds_read_b128 v[96:99], v14 offset:{L_HL}")
    I(f"ds_read_b128 v[100:103], v14 offset:{L_HL + 16}")
    for r in range(4):
        I(f"v_mov_b32 v{37+2*r}, s21")
    I("s_waitcnt lgkmcnt(0)")
    for t in range(8):
        for r in range(4):
            I(f"v_and_b32 v{160+4*t+r}, v{96+t}, v{4+r}")
    for t in range(8):
        I(f"v_mfma_f32_16x16x32_bf16 v[32:35], v[{160+4*t}:{163+4*t}], v[{64+4*t}:{67+4*t}], {'0' if t == 0 else 'v[32:35]'}")
    for r in range(4):
        I(f"v_mov_b32 v{36+2*r}, v{32+r}")
    if m2st:
        I("buffer_store_dwordx4 v[36:39], v12, s[12:15], s29 offen sc1")
        I("buffer_store_dwordx4 v[40:43], v12, s[12:15], s29 offen offset:1024 sc1")
    stamp(3)
    I("s_branch L_tail")

    a.raw('.section .rodata,"a"')
    a.raw(".p2align 6")
    a.raw(f".amdhsa_kernel {NAME}")
    a.raw("  .amdhsa_next_free_vgpr 256")
    a.raw("  .amdhsa_next_free_sgpr 102")
    a.raw("  .amdhsa_accum_offset 256")
    a.raw("  .amdhsa_group_segment_fixed_size 0")
    a.raw("  .amdhsa_kernarg_size 104")
    a.raw("  .amdhsa_user_sgpr_count 2")
    a.raw("  .amdhsa_user_sgpr_kernarg_segment_ptr 1")
    a.raw("  .amdhsa_system_sgpr_workgroup_id_x 1")
    a.raw(".end_amdhsa_kernel")
    return a.text()


if __name__ == "__main__":
    out = sys.argv[1]
    kw = eval("dict(" + (sys.argv[2] if len(sys.argv) > 2 else "") + ")")
    open(out, "w").write(gen(**kw))
```

```python
import sys, struct, math
sys.path.insert(0, "exp")
from asmlib import Asm

NAME = "recurrent_scan__gqa_block_cached__mixer_channel_mlp__decode_kernel"
REF = "recurrent_scan__gqa_block_cached__mixer_channel_mlp__decode.s.ref"


def f32(x):
    return "0x%08x" % struct.unpack("<I", struct.pack("<f", x))[0]


QP = 0x10000
HP = 0xA0000
O1 = 0x100000
QPA = 0x500000
O1A = 0x200000
ML = 0x280000
O2 = 0x300000
OM = 0x400000
CTR = 0x500000
TS = 0x700000
WSSZ = 0x800000
L_Q = 0
L_OL = 1024
L_ML = 9216
L_RL = 9728
L_HL = 12800
L_FL = 13312
LOG2E = 1.4426950408889634
DPPF = "row_mask:0xf bank_mask:0xf"
NST = 16


def gen(prof=False, ntkv="nt", budget=20000, SO1=1024, SO2=2048, drys=True, dryt=True,
        slp1=0, slp2=0, slpq=0, qd=32, pace=12, ntk=None, ntv=None, diag=None, noq=False, nomlp=False, nowo=False, nowq=False, mlv=4, slpg=64, slpm=16, hprio=3, m2st=True, m2pl=True, gdef=True, m2sl=0, cmap=0, dyn=0, dlay=1, dmode=0, tlb=0, tlbpos=1, rot=0, m1e=2, hpm=0, fb1=0, pd1=1, pg1=8, pd2=1, pg2=8, eml=1, tdeep=0, osc='', wol=0, loc=0, lper=7, lord=0, xl=0, xo=0, xq=0, qper=7):
    if nomlp: mlv = 0
    ntk = ntkv if ntk is None else ntk
    ntv = ntkv if ntv is None else ntv
    a = Asm()
    I = a.I
    hdr = [l for l in open(REF).read().split("\n") if l.startswith(";") and "@launch" not in l]
    for l in hdr:
        a.raw(l)
    a.raw("; @launch grid=(256,1,1) block=(512,1,1) lds=16384")
    a.raw('.amdgcn_target "amdgcn-amd-amdhsa--gfx950"')
    a.raw(".text")
    a.raw(f".globl {NAME}")
    a.raw(".p2align 8")
    a.raw(f".type {NAME},@function")
    a.raw(f"{NAME}:")

    def stamp(i):
        if prof:
            I(f"s_memrealtime s[{64+2*i}:{65+2*i}]")

    def stamps_out(wavereg):
        if not prof:
            return
        I("s_mov_b64 exec, 1")
        I("s_lshl_b32 s30, s2, 3")
        I(f"s_add_u32 s30, s30, {wavereg}")
        I("s_lshl_b32 s30, s30, 7")
        I(f"s_add_u32 s30, s30, {TS}")
        I("s_waitcnt lgkmcnt(0)")
        for i in range(2 * NST):
            I(f"v_mov_b32 v{64+i}, s{64+i}")
        I("v_mov_b32 v100, 0")
        for i in range(NST // 2):
            I(f"buffer_store_dwordx4 v[{64+4*i}:{67+4*i}], v100, s[12:15], s30 offen offset:{16*i}")

    def diag_spin(role):
        if diag is None or diag[0] != role:
            return
        _, idx, wg, base = diag
        if wg is not None:
            I(f"s_cmp_lg_u32 s2, {wg}")
            I(f"s_cbranch_scc1 L_dg_end")
        I("s_waitcnt lgkmcnt(0)")
        I(f"s_cmp_eq_u32 s{64+2*idx}, 0")
        I(f"s_cbranch_scc1 L_dg_end")
        I(f"s_add_u32 s56, s{64+2*idx}, {base*100}")
        I("s_mov_b32 s57, 20000")
        a.label("L_dg")
        I("s_sleep 4")
        I("s_memrealtime s[58:59]")
        I("s_sub_u32 s57, s57, 1")
        I("s_cbranch_scc1 L_dg_end")
        I("s_waitcnt lgkmcnt(0)")
        I("s_sub_u32 s58, s58, s56")
        I("s_cmp_lt_i32 s58, 0")
        I("s_cbranch_scc1 L_dg")
        a.label("L_dg_end")

    def tagcalc(r=21):
        I(f"s_mul_i32 s{r}, s{r}, 0x9E3779B1")
        I(f"s_add_u32 s{r}, s{r}, 0x7F4A7C15")

    skipid = [0]

    def barrier():
        k = skipid[0]; skipid[0] += 1
        I(f"s_cbranch_execz L_sk{k}", flush=False)
        I("s_barrier")
        a.label(f"L_sk{k}", flush=False)

    def lanebits():
        I("v_bfe_u32 v1, v0, 3, 1")
        I("v_lshrrev_b32 v2, 4, v0")
        I("v_and_b32 v3, 15, v0")

    def masks():
        I("v_and_b32 v8, 1, v0")
        I("v_bfe_u32 v9, v0, 1, 2")
        I("v_lshlrev_b32 v8, 4, v8")
        I("v_mov_b32 v10, 0xffff")
        I("v_cmp_eq_u32 s[56:57], 0, v9")
        I("v_cmp_eq_u32 s[58:59], 1, v9")
        I("v_cmp_eq_u32 s[62:63], 2, v9")
        I("v_cmp_eq_u32 vcc, 3, v9")
        I("v_lshlrev_b32 v8, v8, v10")
        I("v_cndmask_b32 v4, 0, v8, s[56:57]")
        I("v_cndmask_b32 v5, 0, v8, s[58:59]")
        I("v_cndmask_b32 v6, 0, v8, s[62:63]")
        I("v_cndmask_b32 v7, 0, v8, vcc")

    I("s_cmp_ge_u32 s2, 0x100")
    I("s_cbranch_scc1 L_exit")
    I("s_load_dwordx16 s[32:47], s[0:1], 0")
    I("s_load_dwordx2 s[12:13], s[0:1], 96")
    I("s_load_dwordx8 s[48:55], s[0:1], 64")
    if prof:
        for i in range(2 * NST):
            I(f"s_mov_b32 s{64+i}, 0")
    stamp(0)
    I("v_lshrrev_b32 v1, 6, v0")
    I("v_and_b32 v0, 63, v0")
    I("v_readfirstlane_b32 s3, v1")
    I("s_and_b32 s20, s2, 7")
    I("s_lshl_b32 s20, s20, 5")
    I("s_lshr_b32 s25, s2, 3")
    I("s_add_u32 s20, s20, s25")
    if cmap == 1:
        I("s_mov_b32 s20, s2")
    if xl:
        assert not loc and not dyn and cmap == 0
        I("s_lshr_b32 s20, s20, 1")
        I("s_and_b32 s20, s20, 0x70")
        I("s_and_b32 s24, s25, 15")
        I("s_add_u32 s20, s20, s24")
        I("s_and_b32 s24, s2, 0x80")
        I("s_add_u32 s20, s20, s24")
    I(f"s_mov_b32 s14, {WSSZ}")
    I("s_mov_b32 s15, 0x00020000")
    I("s_mov_b32 s7, 0x00020000")
    I("s_mov_b32 s11, 0x00020000")
    I("s_sub_u32 s24, s3, 4")
    I(f"s_cmp_ge_u32 s24, {3 if drys else 4}")
    I("s_cbranch_scc1 L_stream")
    I("s_setprio 3")
    I("s_cmp_eq_u32 s3, 4")
    I("s_cbranch_scc1 L_h0a")
    if m1e:
        I("s_cmp_lt_u32 s2, 224")
        I("s_cselect_b32 s24, s24, 0")
        I("s_cmp_eq_u32 s24, 1")
        I("s_cbranch_scc1 L_h1a")
    I("v_mov_b32 v8, 0")
    I(f"v_mov_b32 v9, {L_FL}")
    I("ds_write_b32 v9, v8")
    if fb1:
        I("ds_write_b32 v9, v8 offset:4")
    I("s_waitcnt lgkmcnt(0)")
    I("s_barrier")
    I("s_branch L_hinit")
    a.label("L_h0a")
    lanebits()
    I("v_and_b32 v12, 7, v0")
    I("v_lshl_or_b32 v12, v2, 3, v12")
    I("v_lshlrev_b32 v12, 5, v12")
    I("v_lshl_or_b32 v12, v1, 10, v12")
    I("v_lshlrev_b32 v13, 5, v2")
    I("v_lshl_or_b32 v13, v1, 10, v13")
    I("v_lshlrev_b32 v14, 4, v3")
    I("v_lshl_or_b32 v14, v2, 17, v14")
    I("v_mov_b32 v15, 0")
    if xl:
        I("s_and_b32 s24, s2, 7")
        I("s_lshl_b32 s24, s24, 2")
        I("s_and_b32 s25, s25, 3")
        I("s_add_u32 s25, s25, s24")
        I("s_lshr_b32 s24, s2, 5")
    else:
        I("s_and_b32 s24, s2, 7")
    I("s_lshl_b32 s26, s24, 19")
    I("s_lshl_b32 s27, s25, 8")
    I("s_add_u32 s26, s26, s27")
    I("s_lshl_b32 s27, s24, 7")
    I("s_mov_b32 s6, 2048")
    I(f"s_mov_b32 s10, {0 if nowq else 63*8192+256}")
    I("s_mov_b32 s28, 0")
    I("s_waitcnt lgkmcnt(0)")
    stamp(8)
    I("s_mov_b32 s4, s32")
    I("s_mov_b32 s5, s33")
    I("s_add_u32 s8, s38, s26")
    I("s_addc_u32 s9, s39, 0")
    a.vm_reset()
    if dyn:
        assert cmap == 1
        I("s_lshl_b32 s29, s24, 5")
        I("s_add_u32 s29, s29, s25")
        I("s_lshl_b32 s29, s29, 8")
        I(f"s_add_u32 s29, s29, {CTR}")
        I("s_cmp_lt_u32 s24, 2")
        I("s_cselect_b64 exec, 1, 0")
        I("s_cbranch_execz L_nz", flush=False)
        I("buffer_store_dword v15, off, s[12:15], s29 sc1")
        a.label("L_nz", flush=False)
        I("s_mov_b64 exec, -1")
    I("buffer_load_dwordx4 v[32:35], v12, s[4:7], 0 offen", vmid="x")
    I("buffer_load_dwordx4 v[36:39], v12, s[4:7], 0 offen offset:16", vmid="x")
    I("buffer_load_dwordx4 v[40:43], v13, s[4:7], s27 offen", vmid="xa")
    I("buffer_load_dwordx4 v[44:47], v13, s[4:7], s27 offen offset:16", vmid="xa")
    for t in range(16):
        I(f"buffer_load_dwordx4 v[{64+4*t}:{67+4*t}], v14, s[8:11], s28 offen nt", vmid=f"wq{t}")
        if t < 15:
            I("s_add_u32 s28, s28, 0x2000")
    I("s_barrier")
    I("s_load_dword s31, s[12:13], 0")
    I("s_branch L_h0b")
    vm_h0 = list(a.vm)
    if m1e:
        a.label("L_h1a")
        a.c("channel MLP layer 1 (early): 64 hidden columns x 64 rows")
        lanebits()
        I("v_and_b32 v13, 7, v0")
        I("v_lshl_or_b32 v14, v2, 3, v13")
        I("v_lshlrev_b32 v14, 5, v14")
        I("v_lshl_or_b32 v14, v1, 10, v14")
        I("v_bfe_u32 v15, v0, 2, 1")
        I("v_lshl_or_b32 v15, v2, 1, v15")
        I("v_lshlrev_b32 v15, 4, v15")
        I("v_lshl_or_b32 v15, v1, 10, v15")
        I("v_lshl_or_b32 v16, v2, 1, v1")
        I(f"v_mul_u32_u24 v16, {8*3584}, v16")
        I("v_lshl_add_u32 v16, v13, 4, v16")
        I("s_and_b32 s24, s2, 7")
        I("s_lshl_b32 s26, s24, 7")
        I(f"s_mul_i32 s27, s24, {64*3584}")
        I("s_lshl_b32 s28, s25, 7")
        I("s_add_u32 s27, s27, s28")
        I("s_mov_b32 s6, 2048")
        I(f"s_mov_b32 s10, {63*3584+128}")
        I("s_mov_b32 s28, 0")
        I("s_waitcnt lgkmcnt(0)")
        I("s_mov_b32 s4, s32")
        I("s_mov_b32 s5, s33")
        I("s_add_u32 s8, s44, s27")
        I("s_addc_u32 s9, s45, 0")
        a.vm_reset()
        if m1e == 1:
            I("s_barrier")
        I("buffer_load_dwordx4 v[32:35], v14, s[4:7], 0 offen", vmid="x")
        I("buffer_load_dwordx4 v[36:39], v14, s[4:7], 0 offen offset:16", vmid="x")
        I("buffer_load_dwordx4 v[40:43], v15, s[4:7], s26 offen", vmid="xa")
        for i in range(8):
            I(f"buffer_load_dwordx4 v[{64+4*i}:{67+4*i}], v16, s[8:11], s28 offen offset:{3584*(i & 1)} nt", vmid=f"w{i}")
            if i & 1 and i < 7:
                I("s_add_u32 s28, s28, 7168")
        if m1e == 2:
            I("s_barrier")
        I("s_branch L_h1b")
        vm_h1 = list(a.vm)

    a.label("L_stream")
    a.c("stream wave")
    I("s_lshl_b32 s24, s3, 12")
    I("v_and_b32 v2, 3, v0")
    I("v_lshlrev_b32 v2, 10, v2")
    I("v_bfe_u32 v1, v0, 2, 2")
    I("v_lshl_or_b32 v2, v1, 8, v2")
    I("v_lshrrev_b32 v1, 4, v0")
    I("v_lshl_or_b32 v2, v1, 4, v2")
    I("v_add_u32 v2, s24, v2")
    I("v_lshl_add_u32 v3, v0, 4, s24")
    if tlb:
        I(f"v_lshlrev_b32 v20, {tlb}, v0")
    if dyn:
        I("s_lshr_b32 s29, s20, 4")
        I("s_lshl_b32 s30, s29, 2")
        I("s_add_u32 s30, s30, s3")
        I("s_lshl_b32 s30, s30, 8")
        I(f"s_add_u32 s30, s30, {CTR}")
        I("s_lshl_b32 s29, s29, 23")
        I("s_mov_b32 s6, 0x800000")
        I("s_mov_b32 s10, 0x800000")
        I("s_and_b32 s23, s20, 15")
        I("s_mov_b32 s56, s23")
        I(f"s_mul_i32 s23, s23, {dyn * 0x4000 if dlay == 0 else 0x80000}")
        I("s_mov_b32 s18, 0")
        I("s_mov_b32 s19, 0x00020000")
    else:
        I("s_lshl_b32 s29, s20, 19")
        I("s_mov_b32 s6, 0x80000")
        I("s_mov_b32 s10, 0x80000")
        if rot == 0:
            I("s_mov_b32 s23, 0")
        elif rot == 1:
            I("s_lshr_b32 s23, s2, 6")
            I("s_lshl_b32 s23, s23, 17")
        elif rot == 2:
            I("s_lshr_b32 s23, s2, 3")
            I("s_lshl_b32 s23, s23, 14")
        elif rot == 3:
            I("s_mul_i32 s23, s2, 5")
            I("s_and_b32 s23, s23, 31")
            I("s_lshl_b32 s23, s23, 14")
        elif rot == 4:
            I("s_and_b32 s23, s2, 7")
            I("s_lshl_b32 s23, s23, 16")
        elif rot == 5:
            I("s_lshr_b32 s23, s2, 3")
            I("s_and_b32 s23, s23, 1")
            I("s_lshl_b32 s23, s23, 14")
    I("s_cmp_eq_u32 s3, 7")
    I("s_cselect_b64 exec, 0, -1")
    def kreg(s, c): return f"v[{64+32*s+4*c}:{67+32*s+4*c}]"
    def vreg(s, r): return f"v[{80+32*s+4*r}:{83+32*s+4*r}]"

    def issueK(s, sk=True, tk=None, s2=None):
        k = skipid[0]; skipid[0] += 1
        if s2 is not None:
            I("s_add_u32 s24, s23, 0x4000")
        if drys and sk:
            I(f"s_cbranch_execz L_sk{k}", flush=False)
        if tk is not None:
            I("s_mov_b64 exec, 1")
            I(f"buffer_atomic_add v{tk}, off, s[16:19], 0 sc0" if tk >= 160 else f"buffer_atomic_add v{tk}, off, s[16:19], 0")
            I("s_mov_b64 exec, -1")
        for c in range(4):
            I(f"buffer_load_dwordx4 {kreg(s, c)}, v2, s[4:7], s23 offen offset:{64*c} {ntk}")
        if s2 is not None:
            for c in range(4):
                I(f"buffer_load_dwordx4 {kreg(s2, c)}, v2, s[4:7], s24 offen offset:{64*c} {ntk}")
        if drys and sk:
            a.label(f"L_sk{k}", flush=False)

    def issueV(s, sk=True, s2=None):
        k = skipid[0]; skipid[0] += 1
        if drys and sk:
            I(f"s_cbranch_execz L_sk{k}", flush=False)
        for r in range(4):
            I(f"buffer_load_dwordx4 {vreg(s, r)}, v3, s[8:11], s23 offen offset:{1024*r} {ntv}")
        if s2 is not None:
            for r in range(4):
                I(f"buffer_load_dwordx4 {vreg(s2, r)}, v3, s[8:11], s24 offen offset:{1024*r} {ntv}")
        if drys and sk:
            a.label(f"L_sk{k}", flush=False)
        I(f"s_add_u32 s23, s23, {0x4000 if s2 is None else 0x8000}")
        if rot:
            I("s_and_b32 s23, s23, 0x7ffff")

    for r in (36, 37, 40, 41, 44, 45, 48, 49, 52, 53, 25, 28, 29, 30, 31, 32, 33, 34, 35):
        I(f"v_mov_b32 v{r}, 0")
    I("v_mov_b32 v24, 0xff7fffff")
    I(f"s_mov_b32 s25, {f32(128 ** -0.5 * LOG2E)}")
    I("v_and_b32 v26, 1, v0")
    I("v_cmp_eq_u32 vcc, 1, v26")
    I("v_mov_b32 v54, 0x0c0c0100")
    I("v_mov_b32 v27, 0x01000c0c")
    I("v_cndmask_b32 v54, v54, v27, vcc")
    I("v_mov_b32 v55, 0x0c0c0302")
    I("v_mov_b32 v27, 0x03020c0c")
    I("v_cndmask_b32 v55, v55, v27, vcc")
    I("v_and_b32 v26, 2, v0")
    I("v_cmp_eq_u32 vcc, 2, v26")
    I("v_mov_b32 v27, 0x0c0c0c0c")
    I("v_bfe_u32 v26, v0, 2, 2")
    I("v_cndmask_b32 v56, v27, v54, vcc")
    I("v_cndmask_b32 v57, v27, v55, vcc")
    I("v_cndmask_b32 v54, v54, v27, vcc")
    I("v_cndmask_b32 v55, v55, v27, vcc")
    I("v_lshrrev_b32 v27, 4, v0")
    I("v_lshlrev_b32 v62, 8, v26")
    I("v_lshl_or_b32 v62, v27, 4, v62")
    I("v_lshlrev_b32 v63, 4, v0")
    I("s_lshl_b32 s24, s3, 9")
    I(f"s_add_u32 s24, s24, {L_OL}")
    I("v_lshl_add_u32 v59, v0, 3, s24")
    I("s_lshl_b32 s24, s3, 3")
    I(f"s_add_u32 s24, s24, {L_ML}")
    I("v_lshl_add_u32 v1, v26, 5, s24")
    I("s_lshl_b32 s24, s3, 11")
    I(f"s_add_u32 s24, s24, {L_OL}")
    I("v_and_b32 v0, 15, v0")
    I("v_lshlrev_b32 v0, 5, v0")
    I("v_lshl_or_b32 v0, v27, 9, v0")
    I("v_add_u32 v0, s24, v0")
    I("s_lshr_b32 s24, s20, 4")
    I("s_lshl_b32 s24, s24, 2")
    I("s_add_u32 s24, s24, s3")
    I("s_lshl_b32 s24, s24, 4")
    I("s_and_b32 s26, s20, 15")
    I("s_add_u32 s24, s24, s26")
    I(f"s_mul_i32 s27, s24, {SO1}")
    I(f"s_add_u32 s27, s27, {O1}")
    if loc >= 2 or xo:
        I(f"s_add_u32 s28, s27, {O1A - O1}")
    else:
        I("s_lshl_b32 s28, s24, 4")
        I(f"s_add_u32 s28, s28, {ML}")
    I("s_waitcnt lgkmcnt(0)")
    I("s_add_u32 s4, s34, s29")
    I("s_addc_u32 s5, s35, 0")
    I("s_add_u32 s8, s36, s29")
    I("s_addc_u32 s9, s37, 0")
    if dyn:
        I("s_add_u32 s16, s12, s30")
        I("s_addc_u32 s17, s13, 0")

    I("s_load_dword s21, s[12:13], 0")
    I("s_barrier")
    if drys:
        I("s_cbranch_execz L_pro", flush=False)
    def tlbw():
        I("s_cmp_lg_u32 s3, 0")
        I("s_cbranch_scc1 L_notlb", flush=False)
        I("buffer_load_dword v21, v20, s[4:7], 0 offen nt")
        I("buffer_load_dword v22, v20, s[8:11], 0 offen nt")
        a.label("L_notlb", flush=False)
    if tlb and tlbpos == 0:
        tlbw()
    issueK(0, False); issueV(0, False)
    stamp(6)
    issueK(1, False); issueV(1, False)
    if tlb and tlbpos == 1:
        tlbw()
    stamp(7)
    for s in range(2, 6):
        I(f"s_waitcnt vmcnt({pace})")
        issueK(s, False)
        I(f"s_waitcnt vmcnt({pace})")
        issueV(s, False)
    I("s_waitcnt lgkmcnt(0)")
    tagcalc()
    stamp(1)
    if fb1:
        I(f"v_mov_b32 v4, {L_FL}")
        I(f"s_mov_b32 s22, {budget * 8}")
        a.label("L_qf")
        I("ds_read_b32 v5, v4 offset:4")
        I("s_sub_u32 s22, s22, 1")
        I("s_cbranch_scc1 L_qfok")
        I("s_waitcnt lgkmcnt(0)")
        I("v_readfirstlane_b32 s24, v5")
        I("s_cmp_lt_u32 s24, 4")
        I("s_cbranch_scc1 L_qf")
        a.label("L_qfok")
    else:
        I("s_barrier")
    stamp(2)
    a.label("L_pro", flush=False)
    for c in range(4):
        I(f"ds_read_b128 v[{4+4*c}:{7+4*c}], v62 offset:{L_Q + 64*c}")
    I("s_cmp_eq_u32 s3, 7")
    if dyn:
        I(f"s_cselect_b32 s26, 1, {dyn - 8}")
        I(f"s_cselect_b32 s30, 0, {16 * (32 - dyn)}")
    else:
        I(f"s_cselect_b32 s26, 1, {6 if tdeep else 8}")
    I("s_waitcnt lgkmcnt(0)")

    def proc(s, wk=None, wv=None, iss=None, vearly=True, tick=False, iss2=None):
        a.c(f"unit in slot {s}")
        if wk is not None:
            I(f"s_waitcnt vmcnt({wk})")
        if tick:
            I(f"v_readfirstlane_b32 s22, v{160 + (s + 2) % 3}")
        for c in range(4):
            I(f"v_mfma_f32_16x16x32_bf16 v[20:23], {kreg(s, c)}, v[{4+4*c}:{7+4*c}], {'0' if c == 0 else 'v[20:23]'}")
            if tick and c == 0:
                I("s_mov_b32 s31, s6")
                if dmode:
                    I("s_mov_b32 s22, s56")
                    I("s_cmp_gt_i32 s26, 0")
                    I("s_cselect_b32 s57, 0, 16")
                    I("s_add_u32 s56, s56, s57")
                I("s_cmp_lt_u32 s22, s30")
                I("s_cselect_b32 s24, s6, 0")
                if dlay == 0:
                    I("s_lshl_b32 s22, s22, 14")
                    I(f"s_add_u32 s22, s22, {16 * dyn * 0x4000}")
                else:
                    I("s_and_b32 s29, s22, 15")
                    I("s_lshl_b32 s29, s29, 19")
                    I("s_lshr_b32 s22, s22, 4")
                    I("s_lshl_b32 s22, s22, 14")
                    I("s_add_u32 s22, s22, s29")
                    I(f"s_add_u32 s22, s22, {dyn * 0x4000}")
            if tick and c == 1:
                I("s_cmp_gt_i32 s26, 0")
                I("s_cselect_b32 s23, s23, s22")
                I("s_cselect_b32 s6, s6, s24")
                I("s_mov_b32 s10, s6")
            if tick and c == 2:
                I("s_cmp_lt_i32 s26, 3")
                I(f"s_cselect_b32 s18, {'0' if dmode == 1 else 's6'}, 0")
                I("s_sub_u32 s26, s26, 1")
                I(f"v_mov_b32 v{160 + (s + 1) % 3}, 1")
        if iss is not None:
            issueK(iss, tk=(160 + (s + 1) % 3) if tick else (0 if dyn else None), s2=iss2)
        I("v_max3_f32 v26, v20, v21, v22")
        I("v_max_f32 v26, v26, v23")
        I("v_mov_b32 v27, v26")
        I("v_permlane32_swap_b32 v26, v27")
        I("v_max_f32 v26, v26, v27")
        I("v_mov_b32 v27, v26")
        I("v_permlane16_swap_b32 v26, v27")
        I("v_max_f32 v26, v26, v27")
        I("v_mul_f32 v26, s25, v26")
        I("v_max_f32 v26, v24, v26")
        I("v_sub_f32 v62, v24, v26")
        for r in range(4):
            I(f"v_fma_f32 v{20+r}, v{20+r}, s25, -v26")
        I("v_exp_f32 v62, v62")
        I("v_exp_f32 v20, v20")
        I("v_exp_f32 v21, v21")
        I("v_mov_b32_dpp v58, v62 row_newbcast:0 row_mask:0x1 bank_mask:0xf")
        I("v_exp_f32 v22, v22")
        I("v_exp_f32 v23, v23")
        I("v_mov_b32_dpp v58, v62 row_newbcast:4 row_mask:0x2 bank_mask:0xf")
        I("v_mov_b32 v24, v26")
        I("v_cvt_pk_bf16_f32 v60, v20, v21")
        I("v_mov_b32_dpp v58, v62 row_newbcast:8 row_mask:0x4 bank_mask:0xf")
        I("v_cvt_pk_bf16_f32 v61, v22, v23")
        I("v_add_f32 v27, v20, v21")
        I("v_mov_b32_dpp v58, v62 row_newbcast:12 row_mask:0x8 bank_mask:0xf")
        I("v_add_f32 v26, v22, v23")
        for r in range(4):
            u = 60 + (r >> 1)
            I(f"v_perm_b32 v{38+4*r}, v{u}, v{u}, v{54 + (r & 1)}")
            I(f"v_perm_b32 v{39+4*r}, v{u}, v{u}, v{56 + (r & 1)}")
        I("v_add_f32 v27, v27, v26")
        for r in range(4):
            I(f"v_pk_mul_f32 v[{28+2*r}:{29+2*r}], v[{28+2*r}:{29+2*r}], v[58:59] op_sel_hi:[1,0]")
        I("v_fma_f32 v25, v25, v62, v27")
        if wv is not None:
            I(f"s_waitcnt vmcnt({wv})")
        if iss is not None and vearly:
            issueV(iss, s2=iss2)
        for r in range(4):
            I(f"v_mfma_f32_16x16x32_bf16 v[28:31], v[{38+4*r}:{41+4*r}], {vreg(s, r)}, v[28:31]")
            I(f"v_mfma_f32_16x16x32_bf16 v[32:35], v[{36+4*r}:{39+4*r}], {vreg(s, r)}, v[32:35]")
        if iss is not None and not vearly:
            issueV(iss)

    if pace > 12:
        assert not dyn
        proc(0, 44, 44, iss=0, vearly=False)
        proc(1, 44, 44, iss=1, vearly=False)
        proc(2, 44, 40)
        proc(3, 36, 32)
    else:
        proc(0, iss=0, vearly=False)
        proc(1, iss=1, vearly=False)
        proc(2)
        proc(3)
    if dyn:
        proc(4, 30, 26)
        proc(5, 22, 18)
        stamp(3)
        a.label("L_loop")
        proc(0, 13, 14, iss=2, tick=True)
        I("s_cmp_eq_u32 s31, 0")
        I("s_cbranch_scc1 L_epi")
        proc(1, 13, 14, iss=0, tick=True)
        I("s_cmp_eq_u32 s31, 0")
        I("s_cbranch_scc1 L_epi")
        proc(2, 13, 14, iss=1, tick=True)
        I("s_cmp_eq_u32 s31, 0")
        I("s_cbranch_scc1 L_epi")
        I("s_cmp_gt_i32 s26, -300")
        I("s_cbranch_scc1 L_loop")
    elif tdeep:
        proc(4, 28, 24)
        proc(5, 20, 16)
        stamp(3)
        a.label("L_loop")
        proc(0, 12, 12, iss=2)
        proc(1, 12, 12, iss=0)
        proc(2, 12, 12, iss=1)
        I("s_sub_u32 s26, s26, 1")
        I("s_cmp_lg_u32 s26, 0")
        I("s_cbranch_scc1 L_loop")
        if tdeep == 2:
            I("s_cbranch_execz L_epi")
        proc(0, 12, 16, iss=2, iss2=3)
        proc(1, 20, 24, iss=0, iss2=4)
        proc(2, 28, 28, iss=1, iss2=5)
        proc(3, None, 32)
        proc(0, 28, 20)
        proc(4, None, 16)
        proc(1, 12, 4)
        proc(5, None, 0)
    else:
        proc(4, 28, 24)
        proc(5, 20, 16)
        stamp(3)
        a.label("L_loop")
        I("s_cmp_eq_u32 s26, 0")
        I("s_cselect_b32 s6, 0, s6")
        I("s_cselect_b32 s10, 0, s10")
        proc(0, 12, 12, iss=2)
        proc(1, 12, 12, iss=0)
        I("s_cmp_eq_u32 s26, 0")
        I("s_cbranch_scc1 L_epi")
        proc(2, 12, 12, iss=1)
        I("s_sub_u32 s26, s26, 1")
        I("s_branch L_loop")
    a.label("L_epi")
    stamp(4)
    if prof and dyn:
        I(f"s_sub_u32 s80, {dyn - 2}, s26")
    I("v_mov_b32 v27, v25")
    I("ds_write_b128 v0, v[28:31]")
    I("v_permlane32_swap_b32 v25, v27")
    I("ds_write_b128 v0, v[32:35] offset:16")
    I("v_add_f32 v25, v25, v27")
    I("v_mov_b32 v27, v25")
    I("s_lshl_b32 s24, s3, 5")
    I(f"s_add_u32 s24, s24, {L_ML}")
    I("v_permlane16_swap_b32 v25, v27")
    I("v_add_f32 v25, v25, v27")
    I("v_mov_b32 v26, s24")
    I("ds_write_b64 v1, v[24:25]")
    if eml:
        I("v_mov_b32 v45, s21")
        I("s_mov_b32 s56, 0xaaaaaaaa")
        I("s_mov_b32 s57, 0xaaaaaaaa")
        I("s_mov_b32 s58, 0x07060302")
        I("s_mov_b32 s59, 0x05040100")
    else:
        I("v_mov_b32 v21, s21")
        I("v_mov_b32 v23, s21")
        I("v_mov_b32 v45, s21")
        I("v_mov_b32 v47, s21")
    I("s_waitcnt lgkmcnt(0)")
    barrier()
    I("ds_read_b128 v[4:7], v26")
    I("ds_read_b128 v[8:11], v26 offset:16")
    for w in range(4):
        I(f"ds_read_b64 v[{12+2*w}:{13+2*w}], v59 offset:{2048*w}")
    I("s_waitcnt lgkmcnt(4)")
    I("v_max3_f32 v44, v4, v6, v8")
    I("v_max_f32 v44, v44, v10")
    for w in range(4):
        I(f"v_sub_f32 v{4+2*w}, v{4+2*w}, v44")
    for w in range(4):
        I(f"v_exp_f32 v{4+2*w}, v{4+2*w}")
    I("v_mul_f32 v46, v4, v5")
    if eml:
        for w in range(1, 4):
            I(f"v_fmac_f32 v46, v{4+2*w}, v{5+2*w}")
        I("v_cndmask_b32 v44, v44, v46, s[56:57]")
        I("s_waitcnt lgkmcnt(0)")
        I("v_mul_f32 v20, v4, v12")
        I("v_mul_f32 v22, v4, v13")
        I("v_perm_b32 v21, v45, v44, s58")
        I("v_perm_b32 v23, v45, v44, s59")
        for w in range(1, 4):
            I(f"v_fmac_f32 v20, v{4+2*w}, v{12+2*w}")
            I(f"v_fmac_f32 v22, v{4+2*w}, v{13+2*w}")
    else:
        I("s_waitcnt lgkmcnt(0)")
        I("v_mul_f32 v20, v4, v12")
        I("v_mul_f32 v22, v4, v13")
        for w in range(1, 4):
            I(f"v_fmac_f32 v20, v{4+2*w}, v{12+2*w}")
            I(f"v_fmac_f32 v22, v{4+2*w}, v{13+2*w}")
            I(f"v_fmac_f32 v46, v{4+2*w}, v{5+2*w}")
    if drys:
        I("s_cbranch_execz L_hinit", flush=False)
    if (loc >= 2 or xo) and lord == 0:
        I("buffer_store_dwordx4 v[20:23], v63, s[12:15], s28 offen")
    I("buffer_store_dwordx4 v[20:23], v63, s[12:15], s27 offen sc1")
    if (loc >= 2 or xo) and lord == 1:
        I("buffer_store_dwordx4 v[20:23], v63, s[12:15], s28 offen")
    if not eml:
        I("s_mov_b64 exec, 1")
        I("buffer_store_dwordx4 v[44:47], off, s[12:15], s28 sc1")
    stamp(5)
    stamps_out("s3")
    diag_spin('S')
    a.label("L_exit", flush=False)
    I("s_endpgm")

    def red_b(v, t, op="v_add_f32"):
        I(f"{op}_dpp v{v}, v{v}, v{v} quad_perm:[1,0,3,2] {DPPF}")
        I(f"{op}_dpp v{v}, v{v}, v{v} quad_perm:[2,3,0,1] {DPPF}")
        I(f"{op}_dpp v{v}, v{v}, v{v} row_half_mirror {DPPF}")
        I(f"v_mov_b32 v{t}, v{v}")
        I(f"v_permlane16_swap_b32 v{v}, v{t}")
        I(f"{op} v{v}, v{v}, v{t}")
        I(f"v_mov_b32 v{t}, v{v}")
        I(f"v_permlane32_swap_b32 v{v}, v{t}")
        I(f"{op} v{v}, v{v}, v{t}")

    def unpack(src, f, n=8):
        for i in range(n):
            I(f"v_lshlrev_b32 v{f+2*i}, 16, v{src+i}")
            I(f"v_and_b32 v{f+2*i+1}, 0xffff0000, v{src+i}")

    def ln_stats(src, f, t):
        unpack(src, f)
        I(f"v_pk_add_f32 v[{t}:{t+1}], v[{f}:{f+1}], v[{f+2}:{f+3}]")
        I(f"v_pk_add_f32 v[{t+2}:{t+3}], v[{f+4}:{f+5}], v[{f+6}:{f+7}]")
        I(f"v_pk_add_f32 v[{t}:{t+1}], v[{t}:{t+1}], v[{f+8}:{f+9}]")
        I(f"v_pk_add_f32 v[{t+2}:{t+3}], v[{t+2}:{t+3}], v[{f+10}:{f+11}]")
        I(f"v_pk_add_f32 v[{t}:{t+1}], v[{t}:{t+1}], v[{f+12}:{f+13}]")
        I(f"v_pk_add_f32 v[{t+2}:{t+3}], v[{t+2}:{t+3}], v[{f+14}:{f+15}]")
        I(f"v_pk_add_f32 v[{t}:{t+1}], v[{t}:{t+1}], v[{t+2}:{t+3}]")
        I(f"v_add_f32 v{t}, v{t}, v{t+1}")
        red_b(t, t + 1)
        I(f"v_mul_f32 v{t}, {f32(1/512)}, v{t}")
        for i in range(8):
            I(f"v_pk_add_f32 v[{f+2*i}:{f+2*i+1}], v[{f+2*i}:{f+2*i+1}], v[{t}:{t+1}] op_sel_hi:[1,0] neg_lo:[0,1] neg_hi:[0,1]")
        I(f"v_pk_mul_f32 v[{t+2}:{t+3}], v[{f}:{f+1}], v[{f}:{f+1}]")
        I(f"v_pk_mul_f32 v[{t+4}:{t+5}], v[{f+2}:{f+3}], v[{f+2}:{f+3}]")
        for i in range(2, 8):
            d = t + 2 + 2 * (i & 1)
            I(f"v_pk_fma_f32 v[{d}:{d+1}], v[{f+2*i}:{f+2*i+1}], v[{f+2*i}:{f+2*i+1}], v[{d}:{d+1}]")
        I(f"v_pk_add_f32 v[{t+2}:{t+3}], v[{t+2}:{t+3}], v[{t+4}:{t+5}]")
        I(f"v_add_f32 v{t+2}, v{t+2}, v{t+3}")
        red_b(t + 2, t + 3)
        I(f"v_mul_f32 v{t+2}, {f32(1/512)}, v{t+2}")
        I(f"v_cvt_pk_bf16_f32 v{t+1}, v{t}, v{t+2}")
        I(f"v_lshlrev_b32 v{t}, 16, v{t+1}")
        I(f"v_and_b32 v{t+2}, 0xffff0000, v{t+1}")
        I(f"v_add_f32 v{t+2}, {f32(1e-5)}, v{t+2}")
        I(f"v_cvt_pk_bf16_f32 v{t+2}, v{t+2}, v{t+2}")
        I(f"v_and_b32 v{t+2}, 0xffff0000, v{t+2}")
        I(f"v_sqrt_f32 v{t+2}, v{t+2}")
        I(f"v_cvt_pk_bf16_f32 v{t+2}, v{t+2}, v{t+2}")
        I(f"v_and_b32 v{t+2}, 0xffff0000, v{t+2}")
        I(f"v_rcp_f32 v{t+2}, v{t+2}")

    def ln_apply(src, f, t, n=8, dup=None):
        unpack(src, f, n)
        for i in range(n):
            I(f"v_pk_add_f32 v[{f+2*i}:{f+2*i+1}], v[{f+2*i}:{f+2*i+1}], v[{t}:{t+1}] op_sel_hi:[1,0] neg_lo:[0,1] neg_hi:[0,1]")
        for i in range(n):
            I(f"v_cvt_pk_bf16_f32 v{src+i}, v{f+2*i}, v{f+2*i+1}")
        unpack(src, f, n)
        for i in range(n):
            I(f"v_pk_mul_f32 v[{f+2*i}:{f+2*i+1}], v[{f+2*i}:{f+2*i+1}], v[{t+2}:{t+3}] op_sel_hi:[1,0]")
        if dup is None:
            for i in range(n):
                I(f"v_cvt_pk_bf16_f32 v{src+i}, v{f+2*i}, v{f+2*i+1}")
        else:
            for i in range(2 * n):
                I(f"v_cvt_pk_bf16_f32 v{dup+i}, v{f+i}, v{f+i}")

    a.raw(".p2align 6")
    a.label("L_h0b")
    stamp(9)
    masks()
    I("v_lshrrev_b32 v13, 5, v0")
    I("v_lshlrev_b32 v13, 13, v13")
    I("v_and_b32 v14, 31, v0")
    I("v_lshl_or_b32 v13, v14, 4, v13")
    I("s_lshl_b32 s29, s25, 14")
    I("s_lshl_b32 s30, s24, 10")
    I("s_add_u32 s29, s29, s30")
    I(f"s_add_u32 s29, s29, {QP}")
    I("s_waitcnt lgkmcnt(0)")
    tagcalc(31)
    I("v_mov_b32 v57, s31")
    I("v_mov_b32 v59, s31")
    I("v_mov_b32 v61, s31")
    I("v_mov_b32 v63, s31")
    a.c("q producer")
    a.vm_reset(vm_h0)
    a.vm_wait("x")
    stamp(10)
    ln_stats(32, 128, 48)
    a.vm_wait("xa")
    ln_apply(40, 128, 48, dup=144)
    for t in range(16):
        for r in range(4):
            I(f"v_and_b32 v{160+4*t+r}, v{144+t}, v{4+r}")
    stamp(11)
    for t in range(16):
        ab = 160 + 4 * t
        a.vm_wait(f"wq{t}")
        if t == 0:
            stamp(12)
        I(f"v_mfma_f32_16x16x32_bf16 v[48:51], v[{ab}:{ab+3}], v[{64+4*t}:{67+4*t}], {'0' if t == 0 else 'v[48:51]'}")
    I("v_mov_b32 v56, v48")
    I("v_mov_b32 v58, v49")
    I("v_mov_b32 v60, v50")
    I("v_mov_b32 v62, v51")
    if xq:
        I(f"s_add_u32 s30, s29, {QPA - QP}")
        I("buffer_store_dwordx4 v[56:59], v13, s[12:15], s30 offen")
        I("buffer_store_dwordx4 v[60:63], v13, s[12:15], s30 offen offset:512")
    I("buffer_store_dwordx4 v[56:59], v13, s[12:15], s29 offen sc1")
    I("buffer_store_dwordx4 v[60:63], v13, s[12:15], s29 offen offset:512 sc1")
    I("v_mov_b32 v8, 1")
    I(f"v_mov_b32 v9, {L_FL}")
    I("ds_write_b32 v9, v8")
    stamp(1)

    a.label("L_hinit")
    I("s_mov_b64 exec, -1")
    I("s_setprio 3")
    I("s_sub_u32 s3, s3, 4")
    I("s_waitcnt lgkmcnt(0)")
    I("s_load_dword s21, s[12:13], 0")
    I(f"s_mov_b32 s22, {budget}")
    lanebits()
    I("v_lshlrev_b32 v12, 4, v0")
    I("s_and_b32 s24, s2, 7")
    I("s_lshr_b32 s25, s2, 3")
    I("s_lshr_b32 s23, s2, 5")
    if loc:
        assert eml and cmap == 0 and not wol
        I("s_lshl_b32 s28, s24, 3")
        I("s_add_u32 s23, s23, s28")
        I("s_and_b32 s28, s23, 31")
        I("s_lshl_b32 s28, s28, 2")
        I("s_add_u32 s28, s28, s3")
        I("s_lshl_b32 s29, s28, 15")
    else:
        if xl:
            I("s_lshl_b32 s28, s24, 3")
            I("s_add_u32 s23, s23, s28")
        else:
            I("s_lshl_b32 s23, s23, 3")
            I("s_add_u32 s23, s23, s24")
        I("s_lshl_b32 s28, s23, 2")
        I("s_add_u32 s28, s28, s3")
        I("s_lshl_b32 s29, s28, 14")
    I("s_and_b32 s30, s25, 3")
    I("s_lshl_b32 s31, s30, 8")
    I("s_add_u32 s29, s29, s31")
    I("s_add_u32 s16, s40, s29")
    I("s_addc_u32 s17, s41, 0")
    I(f"s_mov_b32 s18, {(31 if loc else 15)*1024+256}")
    I("s_mov_b32 s19, 0x00020000")
    I("v_and_b32 v15, 1, v2")
    I("v_lshlrev_b32 v15, 13, v15")
    I("v_lshrrev_b32 v14, 1, v2")
    I("v_lshl_or_b32 v15, v14, 10, v15")
    I("v_lshl_or_b32 v15, v3, 4, v15")
    I("s_movk_i32 s26, 0x1000")
    if wol:
        I("s_mov_b64 s[96:97], s[16:17]")
        I("s_mov_b64 s[98:99], s[18:19]")
        I("v_mov_b32 v11, v15")
    for t in range(0 if (nowo or wol) else 4):
        I(f"buffer_load_dwordx4 v[{16+4*t}:{19+4*t}], v15, s[16:19], {'s26' if t >= 2 else '0'} offen offset:{2048*(t&1)} nt")
    if loc:
        I("s_movk_i32 s26, 0x4000")
        I("s_movk_i32 s27, 0x5000")
        for t in range(4):
            I(f"buffer_load_dwordx4 v[{192+4*t}:{195+4*t}], v15, s[16:19], {'s27' if t >= 2 else 's26'} offen offset:{2048*(t&1)} nt")
    I("s_mov_b32 s4, s32")
    I("s_mov_b32 s5, s33")
    I("s_mov_b32 s6, 2048")
    I("s_mov_b32 s54, 2048")
    I("s_mov_b32 s55, 0x00020000")
    I("v_mov_b32 v61, 0")
    I("s_cmp_eq_u32 s3, 0")
    I("s_cbranch_scc1 L_igate")
    I("s_cmp_eq_u32 s3, 3")
    I("s_cbranch_scc1 L_qw")
    I(f"s_cmp_ge_u32 s2, {0 if mlv < 1 else 224}")
    I("s_cbranch_scc1 L_qw")
    I("s_cmp_eq_u32 s3, 1")
    I(f"s_cbranch_scc1 {'L_qw' if m1e else 'L_imlp1'}")
    I("s_lshr_b32 s26, s24, 2")
    I("s_lshl_b32 s27, s25, 1")
    I("s_add_u32 s27, s27, s26")
    I("s_lshl_b32 s29, s27, 15")
    I("s_and_b32 s26, s24, 3")
    I("s_lshl_b32 s26, s26, 8")
    I("s_add_u32 s29, s29, s26")
    I("s_add_u32 s8, s48, s29")
    I("s_addc_u32 s9, s49, 0")
    I(f"s_mov_b32 s10, {31*1024+256}")
    I("v_lshlrev_b32 v14, 4, v3")
    I("v_lshl_or_b32 v14, v2, 13, v14")
    I("s_movk_i32 s29, 0x1000")
    for t in range(8):
        I(f"buffer_load_dwordx4 v[{64+4*t}:{67+4*t}], v14, s[8:11], {'s29' if t >= 4 else '0'} offen offset:{1024*(t&3)} nt")
    I("s_lshl_b32 s29, s25, 7")
    I("s_add_u32 s16, s46, s29")
    I("s_addc_u32 s17, s47, 0")
    I("s_mov_b32 s18, 128")
    I("v_and_b32 v47, 7, v0")
    I("v_lshlrev_b32 v47, 4, v47")
    I("v_lshl_or_b32 v47, v1, 3, v47")
    I("v_lshrrev_b32 v14, 5, v0")
    I("v_lshl_or_b32 v47, v14, 2, v47")
    I("buffer_load_dword v62, v47, s[16:19], 0 offen")
    I("s_branch L_qw")
    a.label("L_imlp1")
    I("v_and_b32 v13, 7, v0")
    I("v_lshl_or_b32 v14, v2, 3, v13")
    I("v_lshlrev_b32 v14, 5, v14")
    I("v_lshl_or_b32 v14, v1, 10, v14")
    I("buffer_load_dwordx4 v[32:35], v14, s[4:7], 0 offen")
    I("buffer_load_dwordx4 v[36:39], v14, s[4:7], 0 offen offset:16")
    I("v_bfe_u32 v14, v0, 2, 1")
    I("v_lshl_or_b32 v14, v2, 1, v14")
    I("v_lshlrev_b32 v14, 4, v14")
    I("v_lshl_or_b32 v14, v1, 10, v14")
    I("s_lshl_b32 s26, s24, 7")
    I("buffer_load_dwordx4 v[40:43], v14, s[4:7], s26 offen")
    I(f"s_mul_i32 s26, s24, {64*3584}")
    I("s_lshl_b32 s27, s25, 7")
    I("s_add_u32 s26, s26, s27")
    I("s_add_u32 s8, s44, s26")
    I("s_addc_u32 s9, s45, 0")
    I(f"s_mov_b32 s10, {63*3584+128}")
    I("v_lshl_or_b32 v14, v2, 1, v1")
    I(f"v_mul_u32_u24 v14, {8*3584}, v14")
    I("v_lshl_add_u32 v14, v13, 4, v14")
    I("s_mov_b32 s26, 0")
    for i in range(8):
        I(f"buffer_load_dwordx4 v[{64+4*i}:{67+4*i}], v14, s[8:11], s26 offen offset:{3584*(i & 1)} nt")
        if i & 1 and i < 7:
            I("s_add_u32 s26, s26, 7168")
    I("s_branch L_qw")
    a.label("L_igate")
    I("s_bfe_u32 s26, s2, 0x20001")
    I("s_lshl_b32 s26, s26, 7")
    I("s_and_b32 s27, s25, 7")
    I("s_lshl_b32 s27, s27, 4")
    I("s_add_u32 s26, s26, s27")
    I("s_bfe_u32 s27, s25, 0x10003")
    I("s_lshl_b32 s27, s27, 2")
    I("s_add_u32 s26, s26, s27")
    I("s_lshr_b32 s27, s25, 4")
    I("s_lshl_b32 s27, s27, 1")
    I("s_add_u32 s26, s26, s27")
    I("v_lshrrev_b32 v60, 5, v0")
    I("v_and_b32 v61, 1, v0")
    I("v_lshl_or_b32 v60, v61, 3, v60")
    I("v_add_u32 v60, s26, v60")
    I("v_lshlrev_b32 v60, 1, v60")
    I("s_and_b32 s27, s2, 1")
    I("s_lshl_b32 s27, s27, 10")
    I("v_add_u32 v61, s27, v60")
    I("s_mov_b32 s8, s50")
    I("s_mov_b32 s9, s51")
    I("s_mov_b32 s10, 1024")
    I("buffer_load_ushort v62, v61, s[4:7], 0 offen")
    I("buffer_load_ushort v63, v60, s[8:11], 0 offen")

    a.label("L_qw")
    I("s_lshr_b32 s26, s20, 4")
    I("s_and_b32 s27, s26, 7")
    I("s_lshl_b32 s27, s27, 2")
    I("s_add_u32 s27, s27, s3")
    I("s_lshl_b32 s27, s27, 14")
    I("s_lshr_b32 s26, s26, 3")
    I("s_lshl_b32 s26, s26, 13")
    I("s_add_u32 s26, s26, s27")
    I(f"s_add_u32 s26, s26, {QP}")
    I("s_add_u32 s27, s26, 4096")
    if xq:
        I("s_mov_b32 s97, s26")
        I(f"s_add_u32 s96, s26, {QPA - QP}")
    I("v_lshlrev_b32 v13, 4, v3")
    I("v_bfe_u32 v14, v0, 4, 1")
    I("v_lshl_or_b32 v13, v14, 3, v13")
    I("v_lshrrev_b32 v14, 5, v0")
    I("v_lshl_or_b32 v13, v14, 2, v13")
    I("s_lshl_b32 s29, s3, 8")
    I("v_add_u32 v13, s29, v13")
    masks()
    I("s_waitcnt lgkmcnt(0)")
    tagcalc()
    stamp(13)
    I("s_cmp_eq_u32 s3, 0")
    I("s_cbranch_scc1 L_qpoll")
    I(f"v_mov_b32 v14, {L_FL}")
    a.label("L_fw")
    I("ds_read_b32 v15, v14")
    I("s_waitcnt lgkmcnt(0)")
    I("v_readfirstlane_b32 s29, v15")
    I("s_cmp_lg_u32 s29, 0")
    I("s_cbranch_scc1 L_fok")
    I("s_sleep 2")
    I("s_sub_u32 s22, s22, 1")
    I("s_cbranch_scc0 L_fw")
    I("s_mov_b32 s22, 0")
    a.label("L_fok")
    if qd:
        I(f"s_sleep {qd}")
    a.label("L_qpoll")

    pollid = [0]

    def poll(loads, tags, sleep=0, live="-1", lives=None, depth=1, gap=0, st=None, pre=()):
        k = pollid[0]; pollid[0] += 1
        M = [f"s[{32+2*i}:{33+2*i}]" for i in range(len(loads))]
        for i_, m in enumerate(M):
            I(f"s_mov_b64 {m}, {lives[i_] if lives else live}")
        for _ in range(depth - 1):
            for l, m in zip(loads, M):
                I(f"s_mov_b64 exec, {m}")
                I(l)
            I(f"s_sleep {gap}")
        a.label(f"L_poll{k}")
        if st is not None and prof:
            I(f"s_mov_b64 s[{64+2*st+2}:{64+2*st+3}], s[{64+2*st}:{64+2*st+1}]")
            stamp(st)
        for x_ in pre:
            I(x_)
        for l, m in zip(loads, M):
            I(f"s_mov_b64 exec, {m}")
            I(l)
        I("s_mov_b32 s58, 0")
        I(f"s_waitcnt vmcnt({len(loads) * (depth - 1)})" + (" lgkmcnt(0)" if prof else ""))
        for tg, m in zip(tags, M):
            t1, t2 = tg[0], tg[1]
            I(f"s_mov_b64 exec, {m}")
            if len(tg) == 3:
                I(f"v_perm_b32 v{tg[2]}, v{t1}, v{t2}, s48")
                I(f"v_cmpx_eq_u32 vcc, s21, v{tg[2]}")
            else:
                I(f"v_cmpx_eq_u32 vcc, s21, v{t1}")
                I(f"v_cmpx_eq_u32 vcc, s21, v{t2}")
            I(f"s_andn2_b64 {m}, {m}, exec")
            I("s_addc_u32 s58, s58, 0")
        I(f"s_mov_b64 exec, {live}")
        I("s_cmp_eq_u32 s58, 0")
        I(f"s_cbranch_scc1 L_pok{k}", flush=False)
        p0 = a.pos
        h0 = list(a.hist)
        if sleep:
            I(f"s_sleep {sleep}")
        I("s_sub_u32 s22, s22, 1")
        I(f"s_cbranch_scc0 L_poll{k}", flush=False)
        I("s_mov_b32 s22, 0")
        a.label(f"L_pok{k}", flush=False)
        a.pos = p0
        a.hist = h0
        a.vm_reset()

    def tp(base, n):
        return [(base + 4 * i + 1, base + 4 * i + 3) for i in range(n)]

    def sum8(base):
        for k in (0, 2, 4, 6):
            I(f"v_add_f32 v{base+4*k}, v{base+4*k}, v{base+4+4*k}")
            I(f"v_add_f32 v{base+2+4*k}, v{base+2+4*k}, v{base+6+4*k}")
        for k in (0, 4):
            I(f"v_add_f32 v{base+4*k}, v{base+4*k}, v{base+8+4*k}")
            I(f"v_add_f32 v{base+2+4*k}, v{base+2+4*k}, v{base+10+4*k}")
        I(f"v_add_f32 v{base}, v{base}, v{base+16}")
        I(f"v_add_f32 v{base+2}, v{base+2}, v{base+18}")

    a.c("q consumer")
    stamp(15)
    if not noq:
        poll([f"buffer_load_dwordx4 v[{128+4*k}:{131+4*k}], v12, s[12:15], s{26+(k>>2)} offen offset:{1024*(k&3)} sc1" for k in range(8)],
             tp(128, 8), sleep=slpq,
             pre=([f"s_and_b32 s98, s22, {qper}", "s_cselect_b32 s26, s96, s97", "s_add_u32 s27, s26, 4096"] if xq else []))
    sum8(128)
    I("v_cvt_pk_bf16_f32 v128, v128, v130")
    I(f"ds_write_b32 v13, v128 offset:{L_Q}")
    if fb1:
        I(f"v_mov_b32 v14, {L_FL}")
        I("v_mov_b32 v15, 1")
        I("s_mov_b64 exec, 1")
        I("s_waitcnt lgkmcnt(0)")
        I("ds_add_u32 v14, v15 offset:4")
        I("s_mov_b64 exec, -1")
        stamp(2)
    else:
        I("s_waitcnt lgkmcnt(0)")
        stamp(2)
        I("s_barrier")
    I("v_lshrrev_b32 v46, 1, v0")
    I(f"v_mul_u32_u24 v46, {SO2}, v46")
    I("v_and_b32 v14, 1, v0")
    I("v_lshl_add_u32 v46, v14, 4, v46")
    I("s_bfe_u32 s26, s2, 0x20001")
    I(f"s_mul_i32 s31, s26, {64*SO2}")
    I("s_lshr_b32 s27, s25, 4")
    I("s_lshl_b32 s27, s27, 10")
    I("s_add_u32 s31, s31, s27")
    I("s_and_b32 s27, s2, 1")
    I("s_lshl_b32 s27, s27, 9")
    I("s_add_u32 s31, s31, s27")
    I("s_and_b32 s27, s25, 15")
    I("s_lshl_b32 s27, s27, 5")
    I("s_add_u32 s31, s31, s27")
    I("s_mov_b32 s62, 3")
    I("s_mov_b32 s63, 3")
    I(f"s_cmp_eq_u32 s3, {3 if dryt else 99}")
    I("s_cselect_b64 s[60:61], 0, -1")
    if hprio != 3:
        I(f"s_setprio {hprio}")
    I(f"s_cmp_eq_u32 s3, {99 if (mlv < 4 or gdef) else 0}")
    I("s_cbranch_scc1 L_gate")
    I("s_cmp_eq_u32 s3, 0")
    I("s_cbranch_scc1 L_tail")
    I("s_cmp_eq_u32 s3, 3")
    I("s_cbranch_scc1 L_tail")
    I(f"s_cmp_ge_u32 s2, {0 if mlv < 2 else 224}")
    I("s_cbranch_scc1 L_tail")
    I("s_cmp_eq_u32 s3, 1")
    I(f"s_cbranch_scc1 {'L_tail' if m1e else 'L_mlp1'}")
    if mlv >= 3:
        I("s_branch L_mlp2")
    else:
        I("s_branch L_tail")

    def rbf(v):
        I(f"v_cvt_pk_bf16_f32 v{v}, v{v}, v{v}")
        I(f"v_and_b32 v{v}, 0xffff0000, v{v}")

    def reduce2(x0, x1):
        I(f"v_permlane32_swap_b32 v{x0}, v{x1}")
        I(f"v_add_f32 v{x0}, v{x0}, v{x1}")
        I(f"v_mov_b32 v{x1}, v{x0}")
        I(f"v_permlane16_swap_b32 v{x0}, v{x1}")
        I(f"v_add_f32 v{x0}, v{x0}, v{x1}")
        I(f"v_add_f32_dpp v{x0}, v{x0}, v{x0} row_ror:8 {DPPF}")
        I(f"v_add_f32_dpp v{x0}, v{x0}, v{x0} row_ror:4 {DPPF}")
        I(f"v_add_f32_dpp v{x0}, v{x0}, v{x0} quad_perm:[2,3,0,1] {DPPF}")

    def gate_calc():
        I("v_cndmask_b32 v136, 0, v132, s[56:57]")
        I("v_cndmask_b32 v138, 0, v134, s[56:57]")
        I("v_add_f32 v136, v128, v136")
        I("v_add_f32 v138, v130, v138")
        reduce2(136, 138)
        rbf(136)
        I("v_lshlrev_b32 v63, 16, v63")
        I("v_lshlrev_b32 v62, 16, v62")
        I("v_add_f32 v136, v136, v63")
        rbf(136)
        I(f"v_mul_f32 v63, {f32(-LOG2E)}, v136")
        I("v_exp_f32 v63, v63")
        I("v_add_f32 v63, 1.0, v63")
        I("v_rcp_f32 v63, v63")
        I("v_mul_f32 v63, v63, v136")
        rbf(63)

    a.raw(".p2align 6")
    a.label("L_tail")
    if hprio != 3:
        I("s_setprio 3")
    I(f"v_mul_u32_u24 v13, {128 if loc else 512*SO1}, v1")
    I(f"v_mul_u32_u24 v14, {4*SO1}, v2")
    I("v_add_u32 v13, v13, v14")
    I("v_and_b32 v14, 7, v0")
    I("v_lshl_add_u32 v13, v14, 4, v13")
    I("v_and_b32 v14, 3, v0")
    I("v_lshlrev_b32 v14, 4, v14")
    I("v_lshl_or_b32 v14, v2, 6, v14")
    I("v_lshl_or_b32 v14, v1, 13, v14")
    I("s_lshr_b32 s27, s28, 3")
    if loc:
        I(f"s_mul_i32 s26, s23, {16*SO1}")
        I("s_lshl_b32 s29, s3, 8")
    else:
        I(f"s_mul_i32 s26, s27, {16*SO1}")
        I("s_and_b32 s29, s28, 7")
        I("s_lshl_b32 s29, s29, 7")
    I("s_add_u32 s26, s26, s29")
    I(f"s_add_u32 s26, s26, {O1}")
    if loc or xo:
        I("s_mov_b32 s97, s26")
        I(f"s_add_u32 s96, s26, {O1A - O1}")
    if loc:
        I("s_mov_b32 s100, 0")
        I("s_mov_b32 s101, -1")
    I("s_lshl_b32 s27, s27, 8")
    I(f"s_add_u32 s27, s27, {ML}")
    I("s_lshl_b32 s29, s3, 10")
    I(f"s_add_u32 s29, s29, {L_RL - 1024}")
    I("v_add_u32 v15, s29, v12")
    I("s_lshl_b32 s29, s30, 6")
    I("s_add_u32 s29, s29, s23")
    I(f"s_mul_i32 s29, s29, {SO2}")
    I(f"s_add_u32 s29, s29, {O2}")
    I(f"s_add_u32 s24, s31, {O2}")
    if loc:
        I("s_and_b32 s25, s2, 1")
        I(f"s_mul_i32 s25, s25, {32*SO2 - 512}")
        I("s_add_u32 s24, s24, s25")
        I("s_add_u32 s25, s24, 512")
    else:
        I(f"s_add_u32 s25, s31, {O2 + 32*SO2}")
    I("v_mov_b32 v53, s21")
    I("v_mov_b32 v55, s21")
    I("v_mov_b32 v57, s21")
    I("v_mov_b32 v59, s21")
    if gdef:
        I(f"s_add_u32 s31, s31, {OM}")
        I("v_cmp_gt_u32 s[56:57], 48, v0")
        I(f"v_add_u32 v47, {32*SO2}, v46")
        I("v_cndmask_b32 v47, v46, v47, s[56:57]")
        I("s_cmp_eq_u32 s3, 0")
        I("s_cselect_b64 s[50:51], -1, 0")
    if eml:
        I("s_mov_b32 s48, 0x07060302")
        I("s_mov_b32 s49, 0x05040100")
    a.label("L_tail2")
    I("s_mov_b64 exec, s[60:61]")
    I("s_waitcnt vmcnt(0)")
    if wol:
        I("s_movk_i32 s100, 0x1000")
    barrier()
    stamp(4)
    if wol:
        for t in range(4):
            I(f"buffer_load_dwordx4 v[{16+4*t}:{19+4*t}], v11, s[96:99], {'s100' if t >= 2 else '0'} offen offset:{2048*(t&1)} {'nt' if wol == 1 else ''}")
    lds_ = [] if eml else [f"buffer_load_dwordx4 v[80:83], v14, s[12:15], s27 offen sc1"]
    for i in range(4):
        lds_.append(f"buffer_load_dwordx4 v[{64+4*i}:{67+4*i}], v13, s[12:15], s26 offen offset:{SO1*i} sc1")
    tg1 = [(65 + 4 * i, 67 + 4 * i, 92 + i) for i in range(4)] if eml else tp(80, 1) + tp(64, 4)
    assert gdef
    lds_ += [f"buffer_load_dwordx4 v[{128+4*e}:{131+4*e}], v{46+e}, s[12:15], s31 offen sc1" for e in range(2)]
    poll(lds_, tg1 + tp(128, 2), sleep=slp1, live="s[60:61]", lives=["s[60:61]"] * len(tg1) + ["s[50:51]"] * 2, depth=pd1, gap=pg1, st=8,
         pre=([f"s_and_b32 s98, s22, {lper}", "s_cselect_b32 s26, s96, s97"] if (loc >= 2 or xo) else []))
    stamp(5)
    if eml:
        for i in range(4):
            I(f"v_perm_b32 v{80+i}, v{65+4*i}, v{67+4*i}, s49")
        I("v_max3_f32 v84, v80, v81, v82")
        I("v_max_f32 v84, v84, v83")
    else:
        I(f"v_max_f32_dpp v84, v80, v80 quad_perm:[1,0,3,2] {DPPF}")
        I(f"v_max_f32_dpp v84, v84, v84 quad_perm:[2,3,0,1] {DPPF}")
    I("v_mov_b32 v85, v84")
    I("v_permlane16_swap_b32 v84, v85")
    I("v_max_f32 v84, v84, v85")
    I("v_mov_b32 v85, v84")
    I("v_permlane32_swap_b32 v84, v85")
    I("v_max_f32 v84, v84, v85")
    if eml:
        for i in range(4):
            I(f"v_sub_f32 v{92+i}, v{80+i}, v84")
        for i in range(4):
            I(f"v_exp_f32 v{92+i}, v{92+i}")
        for i in range(4):
            op = "v_mul_f32_dpp" if i == 0 else "v_fmac_f32_dpp"
            I(f"{op} v87, v{92+i}, v{80+i} quad_perm:[0,0,2,2] {DPPF}")
            I(f"{op} v88, v{92+i}, v{64+4*i} quad_perm:[0,0,2,2] {DPPF}")
            I(f"{op} v90, v{92+i}, v{66+4*i} quad_perm:[0,0,2,2] {DPPF}")
        I("v_mov_b32 v91, v87")
    else:
        I("v_sub_f32 v86, v80, v84")
        I("v_exp_f32 v86, v86")
        I("v_mul_f32 v87, v86, v82")
        I(f"v_mul_f32_dpp v88, v86, v64 quad_perm:[0,0,0,0] {DPPF}")
        I(f"v_mul_f32_dpp v90, v86, v66 quad_perm:[0,0,0,0] {DPPF}")
        I(f"v_add_f32_dpp v87, v87, v87 quad_perm:[1,0,3,2] {DPPF}")
        for i in range(1, 4):
            I(f"v_fmac_f32_dpp v88, v86, v{64+4*i} quad_perm:[{i},{i},{i},{i}] {DPPF}")
            I(f"v_fmac_f32_dpp v90, v86, v{66+4*i} quad_perm:[{i},{i},{i},{i}] {DPPF}")
            if i == 1:
                I(f"v_add_f32_dpp v87, v87, v87 quad_perm:[2,3,0,1] {DPPF}")
            if i == 2:
                I("v_mov_b32 v91, v87")
    I("v_permlane32_swap_b32 v87, v91")
    I("v_permlane32_swap_b32 v88, v90")
    I("v_add_f32 v87, v87, v91")
    I("v_add_f32 v88, v88, v90")
    I("v_permlane16_swap_b32 v88, v87")
    I("v_add_f32 v88, v88, v87")
    I("v_mov_b32 v87, v88")
    I("v_permlane16_swap_b32 v88, v87")
    I(f"v_rcp_f32_dpp v87, v87 quad_perm:[1,1,3,3] {DPPF}" if eml else "v_rcp_f32 v87, v87")
    I("v_mul_f32 v88, v88, v87")
    I("v_cvt_pk_bf16_f32 v88, v88, v88")
    I("v_mov_b32_dpp v88, v88 row_shr:4 row_mask:0x5 bank_mask:0xa")
    I("v_mov_b32_dpp v88, v88 row_shl:4 row_mask:0xa bank_mask:0x5")
    for t in range(4):
        for r in range(4):
            I(f"v_and_b32_dpp v{96+4*t+r}, v88, v{4+r} quad_perm:[{t},{t},{t},{t}] {DPPF}")
    for t in range(4):
        I(f"v_mfma_f32_16x16x32_bf16 v[48:51], v[{96+4*t}:{99+4*t}], v[{16+4*t}:{19+4*t}], {'0' if t == 0 else 'v[48:51]'}")
        if loc:
            I(f"v_mfma_f32_16x16x32_bf16 v[208:211], v[{96+4*t}:{99+4*t}], v[{192+4*t}:{195+4*t}], {'0' if t == 0 else 'v[208:211]'}")
    if loc:
        for r in range(4):
            I(f"v_cndmask_b32 v{48+r}, v{48+r}, v{208+r}, s[100:101]")
    I("s_cbranch_execz L_fin", flush=False)
    I("s_cmp_eq_u32 s3, 0")
    I("s_cbranch_scc1 L_fin", flush=False)
    I("ds_write_b128 v15, v[48:51]")
    I("s_waitcnt lgkmcnt(0)")
    I("s_barrier")
    if prof:
        I("s_add_u32 s3, s3, 4")
        stamps_out("s3")
    I("s_endpgm")
    a.label("L_fin")
    barrier()
    for w in range(3):
        I(f"ds_read_b128 v[{112+4*w}:{115+4*w}], v12 offset:{L_RL + 1024*w}")
    I("s_waitcnt lgkmcnt(1)")
    for r in range(4):
        I(f"v_add_f32 v{48+r}, v{48+r}, v{112+r}")
    for r in range(4):
        I(f"v_add_f32 v{48+r}, v{48+r}, v{116+r}")
    I("s_waitcnt lgkmcnt(0)")
    for r in range(4):
        I(f"v_add_f32 v{52+2*r}, v{48+r}, v{120+r}")
    I("buffer_store_dwordx4 v[52:55], v12, s[12:15], s29 offen sc1")
    I("buffer_store_dwordx4 v[56:59], v12, s[12:15], s29 offen offset:1024 sc1")
    stamp(6)
    if gdef:
        gate_calc()
    poll([f"buffer_load_dwordx4 v[{140+4*e}:{143+4*e}], v46, s[12:15], s{24+e} offen sc1" for e in range(2)],
         tp(140, 2), sleep=slp2, live="s[60:61]", depth=pd2, gap=pg2, st=10)
    stamp(14)
    I("v_add_f32 v148, v140, v144")
    I("v_add_f32 v150, v142, v146")
    reduce2(148, 150)
    rbf(148)
    I("v_mul_f32 v148, v148, v63")
    rbf(148)
    I("v_add_f32 v148, v148, v62")
    I("v_cvt_pk_bf16_f32 v148, v148, v148")
    I("s_and_b64 exec, exec, s[62:63]")
    I(f"buffer_store_short v148, v61, s[52:55], 0 offen {osc}")
    I("s_cbranch_execz L_dry2", flush=False)
    I("s_cmp_lg_u32 s2, 0")
    I("s_cbranch_scc1 L_end2", flush=False)
    I("s_mov_b64 exec, 1")
    I("buffer_store_dword v53, off, s[12:15], 0 sc1")
    a.label("L_end2")
    stamp(7)
    stamps_out("4")
    diag_spin('H')
    I("s_endpgm")
    a.label("L_dry2")
    I("s_mov_b64 s[60:61], -1")
    stamp(3)
    I("s_branch L_tail2")

    a.raw(".p2align 6")
    a.label("L_gate")
    a.c("gate value for this workgroup's 4 outputs")
    I(f"s_add_u32 s26, s31, {OM}")
    I("v_cmp_gt_u32 s[56:57], 48, v0")
    I(f"v_add_u32 v47, {32*SO2}, v46")
    I("v_cndmask_b32 v47, v46, v47, s[56:57]")
    poll([f"buffer_load_dwordx4 v[{128+4*e}:{131+4*e}], v{46+e}, s[12:15], s26 offen sc1" for e in range(2)],
         tp(128, 2), sleep=slpg)
    gate_calc()
    stamp(3)
    I("s_branch L_tail")

    if m1e:
        a.raw(".p2align 6")
        a.label("L_h1b")
        a.vm_reset(vm_h1)
        I("s_load_dword s31, s[12:13], 0")
        masks()
        I("v_or_b32 v116, v4, v6")
        I("v_or_b32 v117, v5, v7")
        for i in range(9):
            I(f"v_mov_b32 v{120+4*i}, 0")
            I(f"v_mov_b32 v{121+4*i}, 0")
        I("v_lshlrev_b32 v13, 4, v13")
        I("v_lshl_or_b32 v13, v2, 7, v13")
        I("s_lshl_b32 s26, s2, 10")
        I(f"s_add_u32 s26, s26, {HP}")
        I("s_waitcnt lgkmcnt(0)")
        tagcalc(31)
        for r in range(4):
            I(f"v_mov_b32 v{161+2*r}, s31")
        a.vm_wait("x")
        ln_stats(32, 96, 48)
        ln_apply(32, 96, 48)
        ln_stats(32, 96, 54)
        a.vm_wait("xa")
        ln_apply(40, 96, 48, n=4)
        ln_apply(40, 96, 54, n=4, dup=104)
        for i in range(8):
            I(f"v_and_b32 v{122+4*i}, v{104+i}, v116")
            I(f"v_and_b32 v{123+4*i}, v{104+i}, v117")
        for i in range(8):
            cx = '0' if i == 0 else 'v[32:35]'
            cy = '0' if i == 0 else 'v[36:39]'
            a.vm_wait(f"w{i}")
            I(f"v_mfma_f32_16x16x32_bf16 v[32:35], v[{122+4*i}:{125+4*i}], v[{64+4*i}:{67+4*i}], {cx}")
            I(f"v_mfma_f32_16x16x32_bf16 v[36:39], v[{120+4*i}:{123+4*i}], v[{64+4*i}:{67+4*i}], {cy}")
        for r in range(4):
            I(f"v_permlane16_swap_b32 v{32+r}, v{36+r}")
        for r in range(4):
            I(f"v_add_f32_dpp v{160+2*r}, v{36+r}, v{32+r} row_ror:8 {DPPF}")
        I("s_mov_b32 exec_lo, 0x00ff00ff")
        I("s_mov_b32 exec_hi, 0x00ff00ff")
        I("buffer_store_dwordx4 v[160:163], v13, s[12:15], s26 offen sc1")
        I("buffer_store_dwordx4 v[164:167], v13, s[12:15], s26 offen offset:512 sc1")
        stamp(3)
        I("s_branch L_hinit")

    a.raw(".p2align 6")
    a.label("L_mlp1")
    a.c("channel MLP layer 1: 64 hidden columns x 64 rows")
    I("v_and_b32 v13, 7, v0")
    I("v_or_b32 v116, v4, v6")
    I("v_or_b32 v117, v5, v7")
    for i in range(9):
        I(f"v_mov_b32 v{120+4*i}, 0")
        I(f"v_mov_b32 v{121+4*i}, 0")
    I("v_lshlrev_b32 v13, 4, v13")
    I("v_lshl_or_b32 v13, v2, 7, v13")
    I("s_lshl_b32 s26, s2, 10")
    I(f"s_add_u32 s26, s26, {HP}")
    ln_stats(32, 96, 48)
    ln_apply(32, 96, 48)
    ln_stats(32, 96, 54)
    ln_apply(40, 96, 48, n=4)
    ln_apply(40, 96, 54, n=4, dup=104)
    for i in range(8):
        I(f"v_and_b32 v{122+4*i}, v{104+i}, v116")
        I(f"v_and_b32 v{123+4*i}, v{104+i}, v117")
    for i in range(8):
        cx = '0' if i == 0 else 'v[32:35]'
        cy = '0' if i == 0 else 'v[36:39]'
        I(f"v_mfma_f32_16x16x32_bf16 v[32:35], v[{122+4*i}:{125+4*i}], v[{64+4*i}:{67+4*i}], {cx}")
        I(f"v_mfma_f32_16x16x32_bf16 v[36:39], v[{120+4*i}:{123+4*i}], v[{64+4*i}:{67+4*i}], {cy}")
    for r in range(4):
        I(f"v_mov_b32 v{65+2*r}, s21")
    for r in range(4):
        I(f"v_permlane16_swap_b32 v{32+r}, v{36+r}")
    for r in range(4):
        I(f"v_add_f32_dpp v{64+2*r}, v{36+r}, v{32+r} row_ror:8 {DPPF}")
    I("s_mov_b32 exec_lo, 0x00ff00ff")
    I("s_mov_b32 exec_hi, 0x00ff00ff")
    I("buffer_store_dwordx4 v[64:67], v13, s[12:15], s26 offen sc1")
    I("buffer_store_dwordx4 v[68:71], v13, s[12:15], s26 offen offset:512 sc1")
    I("s_mov_b64 exec, -1")
    stamp(3)
    I("s_branch L_tail")

    a.raw(".p2align 6")
    a.label("L_mlp2")
    a.c("channel MLP layer 2: 32 hidden rows x 128 columns")
    I("s_lshr_b32 s26, s24, 2")
    I("s_lshl_b32 s27, s25, 1")
    I("s_add_u32 s27, s27, s26")
    I("s_and_b32 s24, s24, 3")
    I("v_lshlrev_b32 v13, 1, v47")
    I("v_and_b32 v14, 1, v2")
    I("v_lshl_or_b32 v13, v14, 8, v13")
    I("s_lshl_b32 s26, s26, 7")
    I("v_lshlrev_b32 v14, 5, v2")
    I("v_lshl_or_b32 v14, v1, 8, v14")
    I("v_add_u32 v14, s26, v14")
    I("s_lshl_b32 s24, s24, 6")
    I("s_add_u32 s29, s24, s27")
    I(f"s_mul_i32 s29, s29, {SO2}")
    I(f"s_add_u32 s29, s29, {OM}")
    I("s_lshl_b32 s26, s25, 13")
    I(f"s_add_u32 s26, s26, {HP}")
    I("s_add_u32 s27, s26, 4096")
    I("v_lshlrev_b32 v15, 10, v0")
    I("s_movk_i32 s56, 0xff")
    I("s_mov_b32 s57, 0")
    for _ in range(m2sl):
        I("s_sleep 127")
    if m2pl:
        if not m2sl and not m1e:
            poll(["buffer_load_dwordx4 v[128:131], v15, s[12:15], s26 offen offset:1008 sc1"], tp(128, 1), sleep=slpm, live="s[56:57]")
        I("s_mov_b64 exec, -1")
        poll([f"buffer_load_dwordx4 v[{128+4*k}:{131+4*k}], v12, s[12:15], s{26+(k>>2)} offen offset:{1024*(k&3)} sc1" for k in range(8)],
             tp(128, 8), sleep=slpm)
    sum8(128)
    I("v_cvt_pk_bf16_f32 v32, v128, v130")
    unpack(32, 36, 1)
    unpack(62, 40, 1)
    for r in range(2):
        I(f"v_add_f32 v{36+r}, v{36+r}, v{40+r}")
    I("v_cvt_pk_bf16_f32 v32, v36, v37")
    unpack(32, 36, 1)
    kk = -2.0 * math.sqrt(2.0 / math.pi) * LOG2E
    I(f"s_mov_b32 s26, {f32(kk * 0.044715)}")
    I(f"v_mov_b32 v44, {f32(kk)}")
    for r in range(2):
        I(f"v_mul_f32 v{40+r}, v{36+r}, v{36+r}")
    for r in range(2):
        I(f"v_fma_f32 v{40+r}, v{40+r}, s26, v44")
    for r in range(2):
        I(f"v_mul_f32 v{40+r}, v{40+r}, v{36+r}")
    for r in range(2):
        I(f"v_exp_f32 v{40+r}, v{40+r}")
    for r in range(2):
        I(f"v_add_f32 v{40+r}, 1.0, v{40+r}")
    for r in range(2):
        I(f"v_rcp_f32 v{40+r}, v{40+r}")
    for r in range(2):
        I(f"v_mul_f32 v{40+r}, v{40+r}, v{36+r}")
    I("v_cvt_pk_bf16_f32 v32, v40, v40")
    I("v_cvt_pk_bf16_f32 v33, v41, v41")
    I(f"ds_write_b64 v13, v[32:33] offset:{L_HL}")
    I("s_waitcnt lgkmcnt(0)")
    I(f"ds_read_b128 v[96:99], v14 offset:{L_HL}")
    I(f"ds_read_b128 v[100:103], v14 offset:{L_HL + 16}")
    for r in range(4):
        I(f"v_mov_b32 v{37+2*r}, s21")
    I("s_waitcnt lgkmcnt(0)")
    for t in range(8):
        for r in range(4):
            I(f"v_and_b32 v{160+4*t+r}, v{96+t}, v{4+r}")
    for t in range(8):
        I(f"v_mfma_f32_16x16x32_bf16 v[32:35], v[{160+4*t}:{163+4*t}], v[{64+4*t}:{67+4*t}], {'0' if t == 0 else 'v[32:35]'}")
    for r in range(4):
        I(f"v_mov_b32 v{36+2*r}, v{32+r}")
    if m2st:
        I("buffer_store_dwordx4 v[36:39], v12, s[12:15], s29 offen sc1")
        I("buffer_store_dwordx4 v[40:43], v12, s[12:15], s29 offen offset:1024 sc1")
    stamp(3)
    I("s_branch L_tail")

    a.raw('.section .rodata,"a"')
    a.raw(".p2align 6")
    a.raw(f".amdhsa_kernel {NAME}")
    a.raw("  .amdhsa_next_free_vgpr 256")
    a.raw("  .amdhsa_next_free_sgpr 102")
    a.raw("  .amdhsa_accum_offset 256")
    a.raw("  .amdhsa_group_segment_fixed_size 0")
    a.raw("  .amdhsa_kernarg_size 104")
    a.raw("  .amdhsa_user_sgpr_count 2")
    a.raw("  .amdhsa_user_sgpr_kernarg_segment_ptr 1")
    a.raw("  .amdhsa_system_sgpr_workgroup_id_x 1")
    a.raw(".end_amdhsa_kernel")
    return a.text()


if __name__ == "__main__":
    out = sys.argv[1]
    kw = eval("dict(" + (sys.argv[2] if len(sys.argv) > 2 else "") + ")")
    open(out, "w").write(gen(**kw))
```

```python
import sys, struct, math
sys.path.insert(0, "exp")
from asmlib import Asm

NAME = "recurrent_scan__gqa_block_cached__mixer_channel_mlp__decode_kernel"
REF = "recurrent_scan__gqa_block_cached__mixer_channel_mlp__decode.s.ref"


def f32(x):
    return "0x%08x" % struct.unpack("<I", struct.pack("<f", x))[0]


QP = 0x10000
HP = 0xA0000
O1 = 0x100000
QPA = 0x500000
O1A = 0x200000
ML = 0x280000
O2 = 0x300000
OM = 0x400000
CTR = 0x500000
TS = 0x700000
WSSZ = 0x800000
L_Q = 0
L_OL = 1024
L_ML = 9216
L_RL = 9728
L_HL = 12800
L_FL = 13312
LOG2E = 1.4426950408889634
DPPF = "row_mask:0xf bank_mask:0xf"
NST = 16


def gen(prof=False, ntkv="nt", budget=20000, SO1=1024, SO2=2048, drys=True, dryt=True,
        slp1=0, slp2=0, slpq=0, qd=32, pace=12, ntk=None, ntv=None, diag=None, noq=False, nomlp=False, nowo=False, nowq=False, mlv=4, slpg=64, slpm=16, hprio=3, m2st=True, m2pl=True, gdef=True, m2sl=0, cmap=0, dyn=0, dlay=1, dmode=0, tlb=0, tlbpos=1, rot=0, m1e=2, hpm=0, fb1=0, pd1=1, pg1=8, pd2=1, pg2=8, eml=1, tdeep=0, osc='', wol=0, loc=0, lper=7, lord=0, xl=0, xo=0, xq=0, qper=7, o2m=0, otl=0, xc=1, xh=1, xw=1):
    global O2
    if o2m:
        O2 = 0x480000
    if nomlp: mlv = 0
    ntk = ntkv if ntk is None else ntk
    ntv = ntkv if ntv is None else ntv
    a = Asm()
    I = a.I
    hdr = [l for l in open(REF).read().split("\n") if l.startswith(";") and "@launch" not in l]
    for l in hdr:
        a.raw(l)
    a.raw("; @launch grid=(256,1,1) block=(512,1,1) lds=16384")
    a.raw('.amdgcn_target "amdgcn-amd-amdhsa--gfx950"')
    a.raw(".text")
    a.raw(f".globl {NAME}")
    a.raw(".p2align 8")
    a.raw(f".type {NAME},@function")
    a.raw(f"{NAME}:")

    def stamp(i):
        if prof:
            I(f"s_memrealtime s[{64+2*i}:{65+2*i}]")

    def stamps_out(wavereg):
        if not prof:
            return
        I("s_mov_b64 exec, 1")
        I("s_lshl_b32 s30, s2, 3")
        I(f"s_add_u32 s30, s30, {wavereg}")
        I("s_lshl_b32 s30, s30, 7")
        I(f"s_add_u32 s30, s30, {TS}")
        I("s_waitcnt lgkmcnt(0)")
        for i in range(2 * NST):
            I(f"v_mov_b32 v{64+i}, s{64+i}")
        I("v_mov_b32 v100, 0")
        for i in range(NST // 2):
            I(f"buffer_store_dwordx4 v[{64+4*i}:{67+4*i}], v100, s[12:15], s30 offen offset:{16*i}")

    def diag_spin(role):
        if diag is None or diag[0] != role:
            return
        _, idx, wg, base = diag
        if wg is not None:
            I(f"s_cmp_lg_u32 s2, {wg}")
            I(f"s_cbranch_scc1 L_dg_end")
        I("s_waitcnt lgkmcnt(0)")
        I(f"s_cmp_eq_u32 s{64+2*idx}, 0")
        I(f"s_cbranch_scc1 L_dg_end")
        I(f"s_add_u32 s56, s{64+2*idx}, {base*100}")
        I("s_mov_b32 s57, 20000")
        a.label("L_dg")
        I("s_sleep 4")
        I("s_memrealtime s[58:59]")
        I("s_sub_u32 s57, s57, 1")
        I("s_cbranch_scc1 L_dg_end")
        I("s_waitcnt lgkmcnt(0)")
        I("s_sub_u32 s58, s58, s56")
        I("s_cmp_lt_i32 s58, 0")
        I("s_cbranch_scc1 L_dg")
        a.label("L_dg_end")

    def tagcalc(r=21):
        I(f"s_mul_i32 s{r}, s{r}, 0x9E3779B1")
        I(f"s_add_u32 s{r}, s{r}, 0x7F4A7C15")

    skipid = [0]

    def barrier():
        k = skipid[0]; skipid[0] += 1
        I(f"s_cbranch_execz L_sk{k}", flush=False)
        I("s_barrier")
        a.label(f"L_sk{k}", flush=False)

    def lanebits():
        I("v_bfe_u32 v1, v0, 3, 1")
        I("v_lshrrev_b32 v2, 4, v0")
        I("v_and_b32 v3, 15, v0")

    def masks():
        I("v_and_b32 v8, 1, v0")
        I("v_bfe_u32 v9, v0, 1, 2")
        I("v_lshlrev_b32 v8, 4, v8")
        I("v_mov_b32 v10, 0xffff")
        I("v_cmp_eq_u32 s[56:57], 0, v9")
        I("v_cmp_eq_u32 s[58:59], 1, v9")
        I("v_cmp_eq_u32 s[62:63], 2, v9")
        I("v_cmp_eq_u32 vcc, 3, v9")
        I("v_lshlrev_b32 v8, v8, v10")
        I("v_cndmask_b32 v4, 0, v8, s[56:57]")
        I("v_cndmask_b32 v5, 0, v8, s[58:59]")
        I("v_cndmask_b32 v6, 0, v8, s[62:63]")
        I("v_cndmask_b32 v7, 0, v8, vcc")

    I("s_cmp_ge_u32 s2, 0x100")
    I("s_cbranch_scc1 L_exit")
    I("s_load_dwordx16 s[32:47], s[0:1], 0")
    I("s_load_dwordx2 s[12:13], s[0:1], 96")
    I("s_load_dwordx8 s[48:55], s[0:1], 64")
    if prof:
        for i in range(2 * NST):
            I(f"s_mov_b32 s{64+i}, 0")
    stamp(0)
    I("v_lshrrev_b32 v1, 6, v0")
    I("v_and_b32 v0, 63, v0")
    I("v_readfirstlane_b32 s3, v1")
    I("s_and_b32 s20, s2, 7")
    I("s_lshl_b32 s20, s20, 5")
    I("s_lshr_b32 s25, s2, 3")
    I("s_add_u32 s20, s20, s25")
    if cmap == 1:
        I("s_mov_b32 s20, s2")
    if xl and xc:
        assert not loc and not dyn and cmap == 0
        I("s_lshr_b32 s20, s20, 1")
        I("s_and_b32 s20, s20, 0x70")
        I("s_and_b32 s24, s25, 15")
        I("s_add_u32 s20, s20, s24")
        I("s_and_b32 s24, s2, 0x80")
        I("s_add_u32 s20, s20, s24")
    I(f"s_mov_b32 s14, {WSSZ}")
    I("s_mov_b32 s15, 0x00020000")
    I("s_mov_b32 s7, 0x00020000")
    I("s_mov_b32 s11, 0x00020000")
    I("s_sub_u32 s24, s3, 4")
    I(f"s_cmp_ge_u32 s24, {3 if drys else 4}")
    I("s_cbranch_scc1 L_stream")
    I("s_setprio 3")
    I("s_cmp_eq_u32 s3, 4")
    I("s_cbranch_scc1 L_h0a")
    if m1e:
        I("s_cmp_lt_u32 s2, 224")
        I("s_cselect_b32 s24, s24, 0")
        I("s_cmp_eq_u32 s24, 1")
        I("s_cbranch_scc1 L_h1a")
    I("v_mov_b32 v8, 0")
    I(f"v_mov_b32 v9, {L_FL}")
    I("ds_write_b32 v9, v8")
    if fb1:
        I("ds_write_b32 v9, v8 offset:4")
    I("s_waitcnt lgkmcnt(0)")
    I("s_barrier")
    I("s_branch L_hinit")
    a.label("L_h0a")
    lanebits()
    I("v_and_b32 v12, 7, v0")
    I("v_lshl_or_b32 v12, v2, 3, v12")
    I("v_lshlrev_b32 v12, 5, v12")
    I("v_lshl_or_b32 v12, v1, 10, v12")
    I("v_lshlrev_b32 v13, 5, v2")
    I("v_lshl_or_b32 v13, v1, 10, v13")
    I("v_lshlrev_b32 v14, 4, v3")
    I("v_lshl_or_b32 v14, v2, 17, v14")
    I("v_mov_b32 v15, 0")
    if xl and xh:
        I("s_and_b32 s24, s2, 7")
        I("s_lshl_b32 s24, s24, 2")
        I("s_and_b32 s25, s25, 3")
        I("s_add_u32 s25, s25, s24")
        I("s_lshr_b32 s24, s2, 5")
    else:
        I("s_and_b32 s24, s2, 7")
    I("s_lshl_b32 s26, s24, 19")
    I("s_lshl_b32 s27, s25, 8")
    I("s_add_u32 s26, s26, s27")
    I("s_lshl_b32 s27, s24, 7")
    I("s_mov_b32 s6, 2048")
    I(f"s_mov_b32 s10, {0 if nowq else 63*8192+256}")
    I("s_mov_b32 s28, 0")
    I("s_waitcnt lgkmcnt(0)")
    stamp(8)
    I("s_mov_b32 s4, s32")
    I("s_mov_b32 s5, s33")
    I("s_add_u32 s8, s38, s26")
    I("s_addc_u32 s9, s39, 0")
    a.vm_reset()
    if dyn:
        assert cmap == 1
        I("s_lshl_b32 s29, s24, 5")
        I("s_add_u32 s29, s29, s25")
        I("s_lshl_b32 s29, s29, 8")
        I(f"s_add_u32 s29, s29, {CTR}")
        I("s_cmp_lt_u32 s24, 2")
        I("s_cselect_b64 exec, 1, 0")
        I("s_cbranch_execz L_nz", flush=False)
        I("buffer_store_dword v15, off, s[12:15], s29 sc1")
        a.label("L_nz", flush=False)
        I("s_mov_b64 exec, -1")
    I("buffer_load_dwordx4 v[32:35], v12, s[4:7], 0 offen", vmid="x")
    I("buffer_load_dwordx4 v[36:39], v12, s[4:7], 0 offen offset:16", vmid="x")
    I("buffer_load_dwordx4 v[40:43], v13, s[4:7], s27 offen", vmid="xa")
    I("buffer_load_dwordx4 v[44:47], v13, s[4:7], s27 offen offset:16", vmid="xa")
    for t in range(16):
        I(f"buffer_load_dwordx4 v[{64+4*t}:{67+4*t}], v14, s[8:11], s28 offen nt", vmid=f"wq{t}")
        if t < 15:
            I("s_add_u32 s28, s28, 0x2000")
    I("s_barrier")
    I("s_load_dword s31, s[12:13], 0")
    I("s_branch L_h0b")
    vm_h0 = list(a.vm)
    if m1e:
        a.label("L_h1a")
        a.c("channel MLP layer 1 (early): 64 hidden columns x 64 rows")
        lanebits()
        I("v_and_b32 v13, 7, v0")
        I("v_lshl_or_b32 v14, v2, 3, v13")
        I("v_lshlrev_b32 v14, 5, v14")
        I("v_lshl_or_b32 v14, v1, 10, v14")
        I("v_bfe_u32 v15, v0, 2, 1")
        I("v_lshl_or_b32 v15, v2, 1, v15")
        I("v_lshlrev_b32 v15, 4, v15")
        I("v_lshl_or_b32 v15, v1, 10, v15")
        I("v_lshl_or_b32 v16, v2, 1, v1")
        I(f"v_mul_u32_u24 v16, {8*3584}, v16")
        I("v_lshl_add_u32 v16, v13, 4, v16")
        I("s_and_b32 s24, s2, 7")
        I("s_lshl_b32 s26, s24, 7")
        I(f"s_mul_i32 s27, s24, {64*3584}")
        I("s_lshl_b32 s28, s25, 7")
        I("s_add_u32 s27, s27, s28")
        I("s_mov_b32 s6, 2048")
        I(f"s_mov_b32 s10, {63*3584+128}")
        I("s_mov_b32 s28, 0")
        I("s_waitcnt lgkmcnt(0)")
        I("s_mov_b32 s4, s32")
        I("s_mov_b32 s5, s33")
        I("s_add_u32 s8, s44, s27")
        I("s_addc_u32 s9, s45, 0")
        a.vm_reset()
        if m1e == 1:
            I("s_barrier")
        I("buffer_load_dwordx4 v[32:35], v14, s[4:7], 0 offen", vmid="x")
        I("buffer_load_dwordx4 v[36:39], v14, s[4:7], 0 offen offset:16", vmid="x")
        I("buffer_load_dwordx4 v[40:43], v15, s[4:7], s26 offen", vmid="xa")
        for i in range(8):
            I(f"buffer_load_dwordx4 v[{64+4*i}:{67+4*i}], v16, s[8:11], s28 offen offset:{3584*(i & 1)} nt", vmid=f"w{i}")
            if i & 1 and i < 7:
                I("s_add_u32 s28, s28, 7168")
        if m1e == 2:
            I("s_barrier")
        I("s_branch L_h1b")
        vm_h1 = list(a.vm)

    a.label("L_stream")
    a.c("stream wave")
    I("s_lshl_b32 s24, s3, 12")
    I("v_and_b32 v2, 3, v0")
    I("v_lshlrev_b32 v2, 10, v2")
    I("v_bfe_u32 v1, v0, 2, 2")
    I("v_lshl_or_b32 v2, v1, 8, v2")
    I("v_lshrrev_b32 v1, 4, v0")
    I("v_lshl_or_b32 v2, v1, 4, v2")
    I("v_add_u32 v2, s24, v2")
    I("v_lshl_add_u32 v3, v0, 4, s24")
    if tlb:
        I(f"v_lshlrev_b32 v20, {tlb}, v0")
    if dyn:
        I("s_lshr_b32 s29, s20, 4")
        I("s_lshl_b32 s30, s29, 2")
        I("s_add_u32 s30, s30, s3")
        I("s_lshl_b32 s30, s30, 8")
        I(f"s_add_u32 s30, s30, {CTR}")
        I("s_lshl_b32 s29, s29, 23")
        I("s_mov_b32 s6, 0x800000")
        I("s_mov_b32 s10, 0x800000")
        I("s_and_b32 s23, s20, 15")
        I("s_mov_b32 s56, s23")
        I(f"s_mul_i32 s23, s23, {dyn * 0x4000 if dlay == 0 else 0x80000}")
        I("s_mov_b32 s18, 0")
        I("s_mov_b32 s19, 0x00020000")
    else:
        I("s_lshl_b32 s29, s20, 19")
        I("s_mov_b32 s6, 0x80000")
        I("s_mov_b32 s10, 0x80000")
        if rot == 0:
            I("s_mov_b32 s23, 0")
        elif rot == 1:
            I("s_lshr_b32 s23, s2, 6")
            I("s_lshl_b32 s23, s23, 17")
        elif rot == 2:
            I("s_lshr_b32 s23, s2, 3")
            I("s_lshl_b32 s23, s23, 14")
        elif rot == 3:
            I("s_mul_i32 s23, s2, 5")
            I("s_and_b32 s23, s23, 31")
            I("s_lshl_b32 s23, s23, 14")
        elif rot == 4:
            I("s_and_b32 s23, s2, 7")
            I("s_lshl_b32 s23, s23, 16")
        elif rot == 5:
            I("s_lshr_b32 s23, s2, 3")
            I("s_and_b32 s23, s23, 1")
            I("s_lshl_b32 s23, s23, 14")
    I("s_cmp_eq_u32 s3, 7")
    I("s_cselect_b64 exec, 0, -1")
    def kreg(s, c): return f"v[{64+32*s+4*c}:{67+32*s+4*c}]"
    def vreg(s, r): return f"v[{80+32*s+4*r}:{83+32*s+4*r}]"

    def issueK(s, sk=True, tk=None, s2=None):
        k = skipid[0]; skipid[0] += 1
        if s2 is not None:
            I("s_add_u32 s24, s23, 0x4000")
        if drys and sk:
            I(f"s_cbranch_execz L_sk{k}", flush=False)
        if tk is not None:
            I("s_mov_b64 exec, 1")
            I(f"buffer_atomic_add v{tk}, off, s[16:19], 0 sc0" if tk >= 160 else f"buffer_atomic_add v{tk}, off, s[16:19], 0")
            I("s_mov_b64 exec, -1")
        for c in range(4):
            I(f"buffer_load_dwordx4 {kreg(s, c)}, v2, s[4:7], s23 offen offset:{64*c} {ntk}")
        if s2 is not None:
            for c in range(4):
                I(f"buffer_load_dwordx4 {kreg(s2, c)}, v2, s[4:7], s24 offen offset:{64*c} {ntk}")
        if drys and sk:
            a.label(f"L_sk{k}", flush=False)

    def issueV(s, sk=True, s2=None):
        k = skipid[0]; skipid[0] += 1
        if drys and sk:
            I(f"s_cbranch_execz L_sk{k}", flush=False)
        for r in range(4):
            I(f"buffer_load_dwordx4 {vreg(s, r)}, v3, s[8:11], s23 offen offset:{1024*r} {ntv}")
        if s2 is not None:
            for r in range(4):
                I(f"buffer_load_dwordx4 {vreg(s2, r)}, v3, s[8:11], s24 offen offset:{1024*r} {ntv}")
        if drys and sk:
            a.label(f"L_sk{k}", flush=False)
        I(f"s_add_u32 s23, s23, {0x4000 if s2 is None else 0x8000}")
        if rot:
            I("s_and_b32 s23, s23, 0x7ffff")

    for r in (36, 37, 40, 41, 44, 45, 48, 49, 52, 53, 25, 28, 29, 30, 31, 32, 33, 34, 35):
        I(f"v_mov_b32 v{r}, 0")
    I("v_mov_b32 v24, 0xff7fffff")
    I(f"s_mov_b32 s25, {f32(128 ** -0.5 * LOG2E)}")
    I("v_and_b32 v26, 1, v0")
    I("v_cmp_eq_u32 vcc, 1, v26")
    I("v_mov_b32 v54, 0x0c0c0100")
    I("v_mov_b32 v27, 0x01000c0c")
    I("v_cndmask_b32 v54, v54, v27, vcc")
    I("v_mov_b32 v55, 0x0c0c0302")
    I("v_mov_b32 v27, 0x03020c0c")
    I("v_cndmask_b32 v55, v55, v27, vcc")
    I("v_and_b32 v26, 2, v0")
    I("v_cmp_eq_u32 vcc, 2, v26")
    I("v_mov_b32 v27, 0x0c0c0c0c")
    I("v_bfe_u32 v26, v0, 2, 2")
    I("v_cndmask_b32 v56, v27, v54, vcc")
    I("v_cndmask_b32 v57, v27, v55, vcc")
    I("v_cndmask_b32 v54, v54, v27, vcc")
    I("v_cndmask_b32 v55, v55, v27, vcc")
    I("v_lshrrev_b32 v27, 4, v0")
    I("v_lshlrev_b32 v62, 8, v26")
    I("v_lshl_or_b32 v62, v27, 4, v62")
    I("v_lshlrev_b32 v63, 4, v0")
    I("s_lshl_b32 s24, s3, 9")
    I(f"s_add_u32 s24, s24, {L_OL}")
    I("v_lshl_add_u32 v59, v0, 3, s24")
    I("s_lshl_b32 s24, s3, 3")
    I(f"s_add_u32 s24, s24, {L_ML}")
    I("v_lshl_add_u32 v1, v26, 5, s24")
    I("s_lshl_b32 s24, s3, 11")
    I(f"s_add_u32 s24, s24, {L_OL}")
    I("v_and_b32 v0, 15, v0")
    I("v_lshlrev_b32 v0, 5, v0")
    I("v_lshl_or_b32 v0, v27, 9, v0")
    I("v_add_u32 v0, s24, v0")
    I("s_lshr_b32 s24, s20, 4")
    I("s_lshl_b32 s24, s24, 2")
    I("s_add_u32 s24, s24, s3")
    I("s_lshl_b32 s24, s24, 4")
    I("s_and_b32 s26, s20, 15")
    I("s_add_u32 s24, s24, s26")
    I(f"s_mul_i32 s27, s24, {SO1}")
    I(f"s_add_u32 s27, s27, {O1}")
    if loc >= 2 or xo:
        I(f"s_add_u32 s28, s27, {O1A - O1}")
    else:
        I("s_lshl_b32 s28, s24, 4")
        I(f"s_add_u32 s28, s28, {ML}")
    I("s_waitcnt lgkmcnt(0)")
    I("s_add_u32 s4, s34, s29")
    I("s_addc_u32 s5, s35, 0")
    I("s_add_u32 s8, s36, s29")
    I("s_addc_u32 s9, s37, 0")
    if dyn:
        I("s_add_u32 s16, s12, s30")
        I("s_addc_u32 s17, s13, 0")

    I("s_load_dword s21, s[12:13], 0")
    I("s_barrier")
    if drys:
        I("s_cbranch_execz L_pro", flush=False)
    def tlbw():
        I("s_cmp_lg_u32 s3, 0")
        I("s_cbranch_scc1 L_notlb", flush=False)
        I("buffer_load_dword v21, v20, s[4:7], 0 offen nt")
        I("buffer_load_dword v22, v20, s[8:11], 0 offen nt")
        a.label("L_notlb", flush=False)
    if tlb and tlbpos == 0:
        tlbw()
    issueK(0, False); issueV(0, False)
    stamp(6)
    issueK(1, False); issueV(1, False)
    if tlb and tlbpos == 1:
        tlbw()
    stamp(7)
    for s in range(2, 6):
        I(f"s_waitcnt vmcnt({pace})")
        issueK(s, False)
        I(f"s_waitcnt vmcnt({pace})")
        issueV(s, False)
    I("s_waitcnt lgkmcnt(0)")
    tagcalc()
    stamp(1)
    if fb1:
        I(f"v_mov_b32 v4, {L_FL}")
        I(f"s_mov_b32 s22, {budget * 8}")
        a.label("L_qf")
        I("ds_read_b32 v5, v4 offset:4")
        I("s_sub_u32 s22, s22, 1")
        I("s_cbranch_scc1 L_qfok")
        I("s_waitcnt lgkmcnt(0)")
        I("v_readfirstlane_b32 s24, v5")
        I("s_cmp_lt_u32 s24, 4")
        I("s_cbranch_scc1 L_qf")
        a.label("L_qfok")
    else:
        I("s_barrier")
    stamp(2)
    a.label("L_pro", flush=False)
    for c in range(4):
        I(f"ds_read_b128 v[{4+4*c}:{7+4*c}], v62 offset:{L_Q + 64*c}")
    I("s_cmp_eq_u32 s3, 7")
    if dyn:
        I(f"s_cselect_b32 s26, 1, {dyn - 8}")
        I(f"s_cselect_b32 s30, 0, {16 * (32 - dyn)}")
    else:
        I(f"s_cselect_b32 s26, 1, {6 if tdeep else 8}")
    I("s_waitcnt lgkmcnt(0)")

    def proc(s, wk=None, wv=None, iss=None, vearly=True, tick=False, iss2=None):
        a.c(f"unit in slot {s}")
        if wk is not None:
            I(f"s_waitcnt vmcnt({wk})")
        if tick:
            I(f"v_readfirstlane_b32 s22, v{160 + (s + 2) % 3}")
        for c in range(4):
            I(f"v_mfma_f32_16x16x32_bf16 v[20:23], {kreg(s, c)}, v[{4+4*c}:{7+4*c}], {'0' if c == 0 else 'v[20:23]'}")
            if tick and c == 0:
                I("s_mov_b32 s31, s6")
                if dmode:
                    I("s_mov_b32 s22, s56")
                    I("s_cmp_gt_i32 s26, 0")
                    I("s_cselect_b32 s57, 0, 16")
                    I("s_add_u32 s56, s56, s57")
                I("s_cmp_lt_u32 s22, s30")
                I("s_cselect_b32 s24, s6, 0")
                if dlay == 0:
                    I("s_lshl_b32 s22, s22, 14")
                    I(f"s_add_u32 s22, s22, {16 * dyn * 0x4000}")
                else:
                    I("s_and_b32 s29, s22, 15")
                    I("s_lshl_b32 s29, s29, 19")
                    I("s_lshr_b32 s22, s22, 4")
                    I("s_lshl_b32 s22, s22, 14")
                    I("s_add_u32 s22, s22, s29")
                    I(f"s_add_u32 s22, s22, {dyn * 0x4000}")
            if tick and c == 1:
                I("s_cmp_gt_i32 s26, 0")
                I("s_cselect_b32 s23, s23, s22")
                I("s_cselect_b32 s6, s6, s24")
                I("s_mov_b32 s10, s6")
            if tick and c == 2:
                I("s_cmp_lt_i32 s26, 3")
                I(f"s_cselect_b32 s18, {'0' if dmode == 1 else 's6'}, 0")
                I("s_sub_u32 s26, s26, 1")
                I(f"v_mov_b32 v{160 + (s + 1) % 3}, 1")
        if iss is not None:
            issueK(iss, tk=(160 + (s + 1) % 3) if tick else (0 if dyn else None), s2=iss2)
        I("v_max3_f32 v26, v20, v21, v22")
        I("v_max_f32 v26, v26, v23")
        I("v_mov_b32 v27, v26")
        I("v_permlane32_swap_b32 v26, v27")
        I("v_max_f32 v26, v26, v27")
        I("v_mov_b32 v27, v26")
        I("v_permlane16_swap_b32 v26, v27")
        I("v_max_f32 v26, v26, v27")
        I("v_mul_f32 v26, s25, v26")
        I("v_max_f32 v26, v24, v26")
        I("v_sub_f32 v62, v24, v26")
        for r in range(4):
            I(f"v_fma_f32 v{20+r}, v{20+r}, s25, -v26")
        I("v_exp_f32 v62, v62")
        I("v_exp_f32 v20, v20")
        I("v_exp_f32 v21, v21")
        I("v_mov_b32_dpp v58, v62 row_newbcast:0 row_mask:0x1 bank_mask:0xf")
        I("v_exp_f32 v22, v22")
        I("v_exp_f32 v23, v23")
        I("v_mov_b32_dpp v58, v62 row_newbcast:4 row_mask:0x2 bank_mask:0xf")
        I("v_mov_b32 v24, v26")
        I("v_cvt_pk_bf16_f32 v60, v20, v21")
        I("v_mov_b32_dpp v58, v62 row_newbcast:8 row_mask:0x4 bank_mask:0xf")
        I("v_cvt_pk_bf16_f32 v61, v22, v23")
        I("v_add_f32 v27, v20, v21")
        I("v_mov_b32_dpp v58, v62 row_newbcast:12 row_mask:0x8 bank_mask:0xf")
        I("v_add_f32 v26, v22, v23")
        for r in range(4):
            u = 60 + (r >> 1)
            I(f"v_perm_b32 v{38+4*r}, v{u}, v{u}, v{54 + (r & 1)}")
            I(f"v_perm_b32 v{39+4*r}, v{u}, v{u}, v{56 + (r & 1)}")
        I("v_add_f32 v27, v27, v26")
        for r in range(4):
            I(f"v_pk_mul_f32 v[{28+2*r}:{29+2*r}], v[{28+2*r}:{29+2*r}], v[58:59] op_sel_hi:[1,0]")
        I("v_fma_f32 v25, v25, v62, v27")
        if wv is not None:
            I(f"s_waitcnt vmcnt({wv})")
        if iss is not None and vearly:
            issueV(iss, s2=iss2)
        for r in range(4):
            I(f"v_mfma_f32_16x16x32_bf16 v[28:31], v[{38+4*r}:{41+4*r}], {vreg(s, r)}, v[28:31]")
            I(f"v_mfma_f32_16x16x32_bf16 v[32:35], v[{36+4*r}:{39+4*r}], {vreg(s, r)}, v[32:35]")
        if iss is not None and not vearly:
            issueV(iss)

    if pace > 12:
        assert not dyn
        proc(0, 44, 44, iss=0, vearly=False)
        proc(1, 44, 44, iss=1, vearly=False)
        proc(2, 44, 40)
        proc(3, 36, 32)
    else:
        proc(0, iss=0, vearly=False)
        proc(1, iss=1, vearly=False)
        proc(2)
        proc(3)
    if dyn:
        proc(4, 30, 26)
        proc(5, 22, 18)
        stamp(3)
        a.label("L_loop")
        proc(0, 13, 14, iss=2, tick=True)
        I("s_cmp_eq_u32 s31, 0")
        I("s_cbranch_scc1 L_epi")
        proc(1, 13, 14, iss=0, tick=True)
        I("s_cmp_eq_u32 s31, 0")
        I("s_cbranch_scc1 L_epi")
        proc(2, 13, 14, iss=1, tick=True)
        I("s_cmp_eq_u32 s31, 0")
        I("s_cbranch_scc1 L_epi")
        I("s_cmp_gt_i32 s26, -300")
        I("s_cbranch_scc1 L_loop")
    elif tdeep:
        proc(4, 28, 24)
        proc(5, 20, 16)
        stamp(3)
        a.label("L_loop")
        proc(0, 12, 12, iss=2)
        proc(1, 12, 12, iss=0)
        proc(2, 12, 12, iss=1)
        I("s_sub_u32 s26, s26, 1")
        I("s_cmp_lg_u32 s26, 0")
        I("s_cbranch_scc1 L_loop")
        if tdeep == 2:
            I("s_cbranch_execz L_epi")
        proc(0, 12, 16, iss=2, iss2=3)
        proc(1, 20, 24, iss=0, iss2=4)
        proc(2, 28, 28, iss=1, iss2=5)
        proc(3, None, 32)
        proc(0, 28, 20)
        proc(4, None, 16)
        proc(1, 12, 4)
        proc(5, None, 0)
    else:
        proc(4, 28, 24)
        proc(5, 20, 16)
        stamp(3)
        a.label("L_loop")
        I("s_cmp_eq_u32 s26, 0")
        I("s_cselect_b32 s6, 0, s6")
        I("s_cselect_b32 s10, 0, s10")
        proc(0, 12, 12, iss=2)
        proc(1, 12, 12, iss=0)
        I("s_cmp_eq_u32 s26, 0")
        I("s_cbranch_scc1 L_epi")
        proc(2, 12, 12, iss=1)
        I("s_sub_u32 s26, s26, 1")
        I("s_branch L_loop")
    a.label("L_epi")
    stamp(4)
    if prof and dyn:
        I(f"s_sub_u32 s80, {dyn - 2}, s26")
    I("v_mov_b32 v27, v25")
    I("ds_write_b128 v0, v[28:31]")
    I("v_permlane32_swap_b32 v25, v27")
    I("ds_write_b128 v0, v[32:35] offset:16")
    I("v_add_f32 v25, v25, v27")
    I("v_mov_b32 v27, v25")
    I("s_lshl_b32 s24, s3, 5")
    I(f"s_add_u32 s24, s24, {L_ML}")
    I("v_permlane16_swap_b32 v25, v27")
    I("v_add_f32 v25, v25, v27")
    I("v_mov_b32 v26, s24")
    I("ds_write_b64 v1, v[24:25]")
    if eml:
        I("v_mov_b32 v45, s21")
        I("s_mov_b32 s56, 0xaaaaaaaa")
        I("s_mov_b32 s57, 0xaaaaaaaa")
        I("s_mov_b32 s58, 0x07060302")
        I("s_mov_b32 s59, 0x05040100")
    else:
        I("v_mov_b32 v21, s21")
        I("v_mov_b32 v23, s21")
        I("v_mov_b32 v45, s21")
        I("v_mov_b32 v47, s21")
    I("s_waitcnt lgkmcnt(0)")
    barrier()
    I("ds_read_b128 v[4:7], v26")
    I("ds_read_b128 v[8:11], v26 offset:16")
    for w in range(4):
        I(f"ds_read_b64 v[{12+2*w}:{13+2*w}], v59 offset:{2048*w}")
    I("s_waitcnt lgkmcnt(4)")
    I("v_max3_f32 v44, v4, v6, v8")
    I("v_max_f32 v44, v44, v10")
    for w in range(4):
        I(f"v_sub_f32 v{4+2*w}, v{4+2*w}, v44")
    for w in range(4):
        I(f"v_exp_f32 v{4+2*w}, v{4+2*w}")
    I("v_mul_f32 v46, v4, v5")
    if eml:
        for w in range(1, 4):
            I(f"v_fmac_f32 v46, v{4+2*w}, v{5+2*w}")
        I("v_cndmask_b32 v44, v44, v46, s[56:57]")
        I("s_waitcnt lgkmcnt(0)")
        I("v_mul_f32 v20, v4, v12")
        I("v_mul_f32 v22, v4, v13")
        I("v_perm_b32 v21, v45, v44, s58")
        I("v_perm_b32 v23, v45, v44, s59")
        for w in range(1, 4):
            I(f"v_fmac_f32 v20, v{4+2*w}, v{12+2*w}")
            I(f"v_fmac_f32 v22, v{4+2*w}, v{13+2*w}")
    else:
        I("s_waitcnt lgkmcnt(0)")
        I("v_mul_f32 v20, v4, v12")
        I("v_mul_f32 v22, v4, v13")
        for w in range(1, 4):
            I(f"v_fmac_f32 v20, v{4+2*w}, v{12+2*w}")
            I(f"v_fmac_f32 v22, v{4+2*w}, v{13+2*w}")
            I(f"v_fmac_f32 v46, v{4+2*w}, v{5+2*w}")
    if drys:
        I("s_cbranch_execz L_hinit", flush=False)
    if (loc >= 2 or xo) and lord == 0:
        I("buffer_store_dwordx4 v[20:23], v63, s[12:15], s28 offen")
    I("buffer_store_dwordx4 v[20:23], v63, s[12:15], s27 offen sc1")
    if (loc >= 2 or xo) and lord == 1:
        I("buffer_store_dwordx4 v[20:23], v63, s[12:15], s28 offen")
    if not eml:
        I("s_mov_b64 exec, 1")
        I("buffer_store_dwordx4 v[44:47], off, s[12:15], s28 sc1")
    stamp(5)
    stamps_out("s3")
    diag_spin('S')
    a.label("L_exit", flush=False)
    I("s_endpgm")

    def red_b(v, t, op="v_add_f32"):
        I(f"{op}_dpp v{v}, v{v}, v{v} quad_perm:[1,0,3,2] {DPPF}")
        I(f"{op}_dpp v{v}, v{v}, v{v} quad_perm:[2,3,0,1] {DPPF}")
        I(f"{op}_dpp v{v}, v{v}, v{v} row_half_mirror {DPPF}")
        I(f"v_mov_b32 v{t}, v{v}")
        I(f"v_permlane16_swap_b32 v{v}, v{t}")
        I(f"{op} v{v}, v{v}, v{t}")
        I(f"v_mov_b32 v{t}, v{v}")
        I(f"v_permlane32_swap_b32 v{v}, v{t}")
        I(f"{op} v{v}, v{v}, v{t}")

    def unpack(src, f, n=8):
        for i in range(n):
            I(f"v_lshlrev_b32 v{f+2*i}, 16, v{src+i}")
            I(f"v_and_b32 v{f+2*i+1}, 0xffff0000, v{src+i}")

    def ln_stats(src, f, t):
        unpack(src, f)
        I(f"v_pk_add_f32 v[{t}:{t+1}], v[{f}:{f+1}], v[{f+2}:{f+3}]")
        I(f"v_pk_add_f32 v[{t+2}:{t+3}], v[{f+4}:{f+5}], v[{f+6}:{f+7}]")
        I(f"v_pk_add_f32 v[{t}:{t+1}], v[{t}:{t+1}], v[{f+8}:{f+9}]")
        I(f"v_pk_add_f32 v[{t+2}:{t+3}], v[{t+2}:{t+3}], v[{f+10}:{f+11}]")
        I(f"v_pk_add_f32 v[{t}:{t+1}], v[{t}:{t+1}], v[{f+12}:{f+13}]")
        I(f"v_pk_add_f32 v[{t+2}:{t+3}], v[{t+2}:{t+3}], v[{f+14}:{f+15}]")
        I(f"v_pk_add_f32 v[{t}:{t+1}], v[{t}:{t+1}], v[{t+2}:{t+3}]")
        I(f"v_add_f32 v{t}, v{t}, v{t+1}")
        red_b(t, t + 1)
        I(f"v_mul_f32 v{t}, {f32(1/512)}, v{t}")
        for i in range(8):
            I(f"v_pk_add_f32 v[{f+2*i}:{f+2*i+1}], v[{f+2*i}:{f+2*i+1}], v[{t}:{t+1}] op_sel_hi:[1,0] neg_lo:[0,1] neg_hi:[0,1]")
        I(f"v_pk_mul_f32 v[{t+2}:{t+3}], v[{f}:{f+1}], v[{f}:{f+1}]")
        I(f"v_pk_mul_f32 v[{t+4}:{t+5}], v[{f+2}:{f+3}], v[{f+2}:{f+3}]")
        for i in range(2, 8):
            d = t + 2 + 2 * (i & 1)
            I(f"v_pk_fma_f32 v[{d}:{d+1}], v[{f+2*i}:{f+2*i+1}], v[{f+2*i}:{f+2*i+1}], v[{d}:{d+1}]")
        I(f"v_pk_add_f32 v[{t+2}:{t+3}], v[{t+2}:{t+3}], v[{t+4}:{t+5}]")
        I(f"v_add_f32 v{t+2}, v{t+2}, v{t+3}")
        red_b(t + 2, t + 3)
        I(f"v_mul_f32 v{t+2}, {f32(1/512)}, v{t+2}")
        I(f"v_cvt_pk_bf16_f32 v{t+1}, v{t}, v{t+2}")
        I(f"v_lshlrev_b32 v{t}, 16, v{t+1}")
        I(f"v_and_b32 v{t+2}, 0xffff0000, v{t+1}")
        I(f"v_add_f32 v{t+2}, {f32(1e-5)}, v{t+2}")
        I(f"v_cvt_pk_bf16_f32 v{t+2}, v{t+2}, v{t+2}")
        I(f"v_and_b32 v{t+2}, 0xffff0000, v{t+2}")
        I(f"v_sqrt_f32 v{t+2}, v{t+2}")
        I(f"v_cvt_pk_bf16_f32 v{t+2}, v{t+2}, v{t+2}")
        I(f"v_and_b32 v{t+2}, 0xffff0000, v{t+2}")
        I(f"v_rcp_f32 v{t+2}, v{t+2}")

    def ln_apply(src, f, t, n=8, dup=None):
        unpack(src, f, n)
        for i in range(n):
            I(f"v_pk_add_f32 v[{f+2*i}:{f+2*i+1}], v[{f+2*i}:{f+2*i+1}], v[{t}:{t+1}] op_sel_hi:[1,0] neg_lo:[0,1] neg_hi:[0,1]")
        for i in range(n):
            I(f"v_cvt_pk_bf16_f32 v{src+i}, v{f+2*i}, v{f+2*i+1}")
        unpack(src, f, n)
        for i in range(n):
            I(f"v_pk_mul_f32 v[{f+2*i}:{f+2*i+1}], v[{f+2*i}:{f+2*i+1}], v[{t+2}:{t+3}] op_sel_hi:[1,0]")
        if dup is None:
            for i in range(n):
                I(f"v_cvt_pk_bf16_f32 v{src+i}, v{f+2*i}, v{f+2*i+1}")
        else:
            for i in range(2 * n):
                I(f"v_cvt_pk_bf16_f32 v{dup+i}, v{f+i}, v{f+i}")

    a.raw(".p2align 6")
    a.label("L_h0b")
    stamp(9)
    masks()
    I("v_lshrrev_b32 v13, 5, v0")
    I("v_lshlrev_b32 v13, 13, v13")
    I("v_and_b32 v14, 31, v0")
    I("v_lshl_or_b32 v13, v14, 4, v13")
    I("s_lshl_b32 s29, s25, 14")
    I("s_lshl_b32 s30, s24, 10")
    I("s_add_u32 s29, s29, s30")
    I(f"s_add_u32 s29, s29, {QP}")
    I("s_waitcnt lgkmcnt(0)")
    tagcalc(31)
    I("v_mov_b32 v57, s31")
    I("v_mov_b32 v59, s31")
    I("v_mov_b32 v61, s31")
    I("v_mov_b32 v63, s31")
    a.c("q producer")
    a.vm_reset(vm_h0)
    a.vm_wait("x")
    stamp(10)
    ln_stats(32, 128, 48)
    a.vm_wait("xa")
    ln_apply(40, 128, 48, dup=144)
    for t in range(16):
        for r in range(4):
            I(f"v_and_b32 v{160+4*t+r}, v{144+t}, v{4+r}")
    stamp(11)
    for t in range(16):
        ab = 160 + 4 * t
        a.vm_wait(f"wq{t}")
        if t == 0:
            stamp(12)
        I(f"v_mfma_f32_16x16x32_bf16 v[48:51], v[{ab}:{ab+3}], v[{64+4*t}:{67+4*t}], {'0' if t == 0 else 'v[48:51]'}")
    I("v_mov_b32 v56, v48")
    I("v_mov_b32 v58, v49")
    I("v_mov_b32 v60, v50")
    I("v_mov_b32 v62, v51")
    if xq:
        I(f"s_add_u32 s30, s29, {QPA - QP}")
        I("buffer_store_dwordx4 v[56:59], v13, s[12:15], s30 offen")
        I("buffer_store_dwordx4 v[60:63], v13, s[12:15], s30 offen offset:512")
    I("buffer_store_dwordx4 v[56:59], v13, s[12:15], s29 offen sc1")
    I("buffer_store_dwordx4 v[60:63], v13, s[12:15], s29 offen offset:512 sc1")
    I("v_mov_b32 v8, 1")
    I(f"v_mov_b32 v9, {L_FL}")
    I("ds_write_b32 v9, v8")
    stamp(1)

    a.label("L_hinit")
    I("s_mov_b64 exec, -1")
    I("s_setprio 3")
    I("s_sub_u32 s3, s3, 4")
    I("s_waitcnt lgkmcnt(0)")
    I("s_load_dword s21, s[12:13], 0")
    I(f"s_mov_b32 s22, {budget}")
    lanebits()
    I("v_lshlrev_b32 v12, 4, v0")
    I("s_and_b32 s24, s2, 7")
    I("s_lshr_b32 s25, s2, 3")
    I("s_lshr_b32 s23, s2, 5")
    if loc:
        assert eml and cmap == 0 and not wol
        I("s_lshl_b32 s28, s24, 3")
        I("s_add_u32 s23, s23, s28")
        I("s_and_b32 s28, s23, 31")
        I("s_lshl_b32 s28, s28, 2")
        I("s_add_u32 s28, s28, s3")
        I("s_lshl_b32 s29, s28, 15")
    else:
        if xl and xw:
            I("s_lshl_b32 s28, s24, 3")
            I("s_add_u32 s23, s23, s28")
        else:
            I("s_lshl_b32 s23, s23, 3")
            I("s_add_u32 s23, s23, s24")
        I("s_lshl_b32 s28, s23, 2")
        I("s_add_u32 s28, s28, s3")
        I("s_lshl_b32 s29, s28, 14")
    I("s_and_b32 s30, s25, 3")
    I("s_lshl_b32 s31, s30, 8")
    I("s_add_u32 s29, s29, s31")
    I("s_add_u32 s16, s40, s29")
    I("s_addc_u32 s17, s41, 0")
    I(f"s_mov_b32 s18, {(31 if loc else 15)*1024+256}")
    I("s_mov_b32 s19, 0x00020000")
    I("v_and_b32 v15, 1, v2")
    I("v_lshlrev_b32 v15, 13, v15")
    I("v_lshrrev_b32 v14, 1, v2")
    I("v_lshl_or_b32 v15, v14, 10, v15")
    I("v_lshl_or_b32 v15, v3, 4, v15")
    I("s_movk_i32 s26, 0x1000")
    if wol:
        I("s_mov_b64 s[96:97], s[16:17]")
        I("s_mov_b64 s[98:99], s[18:19]")
        I("v_mov_b32 v11, v15")
    for t in range(0 if (nowo or wol) else 4):
        I(f"buffer_load_dwordx4 v[{16+4*t}:{19+4*t}], v15, s[16:19], {'s26' if t >= 2 else '0'} offen offset:{2048*(t&1)} nt")
    if loc:
        I("s_movk_i32 s26, 0x4000")
        I("s_movk_i32 s27, 0x5000")
        for t in range(4):
            I(f"buffer_load_dwordx4 v[{192+4*t}:{195+4*t}], v15, s[16:19], {'s27' if t >= 2 else 's26'} offen offset:{2048*(t&1)} nt")
    I("s_mov_b32 s4, s32")
    I("s_mov_b32 s5, s33")
    I("s_mov_b32 s6, 2048")
    I("s_mov_b32 s54, 2048")
    I("s_mov_b32 s55, 0x00020000")
    I("v_mov_b32 v61, 0")
    I("s_cmp_eq_u32 s3, 0")
    I("s_cbranch_scc1 L_igate")
    I("s_cmp_eq_u32 s3, 3")
    I("s_cbranch_scc1 L_qw")
    I(f"s_cmp_ge_u32 s2, {0 if mlv < 1 else 224}")
    I("s_cbranch_scc1 L_qw")
    I("s_cmp_eq_u32 s3, 1")
    I(f"s_cbranch_scc1 {'L_qw' if m1e else 'L_imlp1'}")
    I("s_lshr_b32 s26, s24, 2")
    I("s_lshl_b32 s27, s25, 1")
    I("s_add_u32 s27, s27, s26")
    I("s_lshl_b32 s29, s27, 15")
    I("s_and_b32 s26, s24, 3")
    I("s_lshl_b32 s26, s26, 8")
    I("s_add_u32 s29, s29, s26")
    I("s_add_u32 s8, s48, s29")
    I("s_addc_u32 s9, s49, 0")
    I(f"s_mov_b32 s10, {31*1024+256}")
    I("v_lshlrev_b32 v14, 4, v3")
    I("v_lshl_or_b32 v14, v2, 13, v14")
    I("s_movk_i32 s29, 0x1000")
    for t in range(8):
        I(f"buffer_load_dwordx4 v[{64+4*t}:{67+4*t}], v14, s[8:11], {'s29' if t >= 4 else '0'} offen offset:{1024*(t&3)} nt")
    I("s_lshl_b32 s29, s25, 7")
    I("s_add_u32 s16, s46, s29")
    I("s_addc_u32 s17, s47, 0")
    I("s_mov_b32 s18, 128")
    I("v_and_b32 v47, 7, v0")
    I("v_lshlrev_b32 v47, 4, v47")
    I("v_lshl_or_b32 v47, v1, 3, v47")
    I("v_lshrrev_b32 v14, 5, v0")
    I("v_lshl_or_b32 v47, v14, 2, v47")
    I("buffer_load_dword v62, v47, s[16:19], 0 offen")
    I("s_branch L_qw")
    a.label("L_imlp1")
    I("v_and_b32 v13, 7, v0")
    I("v_lshl_or_b32 v14, v2, 3, v13")
    I("v_lshlrev_b32 v14, 5, v14")
    I("v_lshl_or_b32 v14, v1, 10, v14")
    I("buffer_load_dwordx4 v[32:35], v14, s[4:7], 0 offen")
    I("buffer_load_dwordx4 v[36:39], v14, s[4:7], 0 offen offset:16")
    I("v_bfe_u32 v14, v0, 2, 1")
    I("v_lshl_or_b32 v14, v2, 1, v14")
    I("v_lshlrev_b32 v14, 4, v14")
    I("v_lshl_or_b32 v14, v1, 10, v14")
    I("s_lshl_b32 s26, s24, 7")
    I("buffer_load_dwordx4 v[40:43], v14, s[4:7], s26 offen")
    I(f"s_mul_i32 s26, s24, {64*3584}")
    I("s_lshl_b32 s27, s25, 7")
    I("s_add_u32 s26, s26, s27")
    I("s_add_u32 s8, s44, s26")
    I("s_addc_u32 s9, s45, 0")
    I(f"s_mov_b32 s10, {63*3584+128}")
    I("v_lshl_or_b32 v14, v2, 1, v1")
    I(f"v_mul_u32_u24 v14, {8*3584}, v14")
    I("v_lshl_add_u32 v14, v13, 4, v14")
    I("s_mov_b32 s26, 0")
    for i in range(8):
        I(f"buffer_load_dwordx4 v[{64+4*i}:{67+4*i}], v14, s[8:11], s26 offen offset:{3584*(i & 1)} nt")
        if i & 1 and i < 7:
            I("s_add_u32 s26, s26, 7168")
    I("s_branch L_qw")
    a.label("L_igate")
    I("s_bfe_u32 s26, s2, 0x20001")
    I("s_lshl_b32 s26, s26, 7")
    I("s_and_b32 s27, s25, 7")
    I("s_lshl_b32 s27, s27, 4")
    I("s_add_u32 s26, s26, s27")
    I("s_bfe_u32 s27, s25, 0x10003")
    I("s_lshl_b32 s27, s27, 2")
    I("s_add_u32 s26, s26, s27")
    I("s_lshr_b32 s27, s25, 4")
    I("s_lshl_b32 s27, s27, 1")
    I("s_add_u32 s26, s26, s27")
    I("v_lshrrev_b32 v60, 5, v0")
    I("v_and_b32 v61, 1, v0")
    I("v_lshl_or_b32 v60, v61, 3, v60")
    I("v_add_u32 v60, s26, v60")
    I("v_lshlrev_b32 v60, 1, v60")
    I("s_and_b32 s27, s2, 1")
    I("s_lshl_b32 s27, s27, 10")
    I("v_add_u32 v61, s27, v60")
    I("s_mov_b32 s8, s50")
    I("s_mov_b32 s9, s51")
    I("s_mov_b32 s10, 1024")
    I("buffer_load_ushort v62, v61, s[4:7], 0 offen")
    I("buffer_load_ushort v63, v60, s[8:11], 0 offen")
    if otl:
        I("buffer_load_ushort v11, v61, s[52:55], 0 offen")

    a.label("L_qw")
    I("s_lshr_b32 s26, s20, 4")
    I("s_and_b32 s27, s26, 7")
    I("s_lshl_b32 s27, s27, 2")
    I("s_add_u32 s27, s27, s3")
    I("s_lshl_b32 s27, s27, 14")
    I("s_lshr_b32 s26, s26, 3")
    I("s_lshl_b32 s26, s26, 13")
    I("s_add_u32 s26, s26, s27")
    I(f"s_add_u32 s26, s26, {QP}")
    I("s_add_u32 s27, s26, 4096")
    if xq:
        I("s_mov_b32 s97, s26")
        I(f"s_add_u32 s96, s26, {QPA - QP}")
    I("v_lshlrev_b32 v13, 4, v3")
    I("v_bfe_u32 v14, v0, 4, 1")
    I("v_lshl_or_b32 v13, v14, 3, v13")
    I("v_lshrrev_b32 v14, 5, v0")
    I("v_lshl_or_b32 v13, v14, 2, v13")
    I("s_lshl_b32 s29, s3, 8")
    I("v_add_u32 v13, s29, v13")
    masks()
    I("s_waitcnt lgkmcnt(0)")
    tagcalc()
    stamp(13)
    I("s_cmp_eq_u32 s3, 0")
    I("s_cbranch_scc1 L_qpoll")
    I(f"v_mov_b32 v14, {L_FL}")
    a.label("L_fw")
    I("ds_read_b32 v15, v14")
    I("s_waitcnt lgkmcnt(0)")
    I("v_readfirstlane_b32 s29, v15")
    I("s_cmp_lg_u32 s29, 0")
    I("s_cbranch_scc1 L_fok")
    I("s_sleep 2")
    I("s_sub_u32 s22, s22, 1")
    I("s_cbranch_scc0 L_fw")
    I("s_mov_b32 s22, 0")
    a.label("L_fok")
    if qd:
        I(f"s_sleep {qd}")
    a.label("L_qpoll")

    pollid = [0]

    def poll(loads, tags, sleep=0, live="-1", lives=None, depth=1, gap=0, st=None, pre=()):
        k = pollid[0]; pollid[0] += 1
        M = [f"s[{32+2*i}:{33+2*i}]" for i in range(len(loads))]
        for i_, m in enumerate(M):
            I(f"s_mov_b64 {m}, {lives[i_] if lives else live}")
        for _ in range(depth - 1):
            for l, m in zip(loads, M):
                I(f"s_mov_b64 exec, {m}")
                I(l)
            I(f"s_sleep {gap}")
        a.label(f"L_poll{k}")
        if st is not None and prof:
            I(f"s_mov_b64 s[{64+2*st+2}:{64+2*st+3}], s[{64+2*st}:{64+2*st+1}]")
            stamp(st)
        for x_ in pre:
            I(x_)
        for l, m in zip(loads, M):
            I(f"s_mov_b64 exec, {m}")
            I(l)
        I("s_mov_b32 s58, 0")
        I(f"s_waitcnt vmcnt({len(loads) * (depth - 1)})" + (" lgkmcnt(0)" if prof else ""))
        for tg, m in zip(tags, M):
            t1, t2 = tg[0], tg[1]
            I(f"s_mov_b64 exec, {m}")
            if len(tg) == 3:
                I(f"v_perm_b32 v{tg[2]}, v{t1}, v{t2}, s48")
                I(f"v_cmpx_eq_u32 vcc, s21, v{tg[2]}")
            else:
                I(f"v_cmpx_eq_u32 vcc, s21, v{t1}")
                I(f"v_cmpx_eq_u32 vcc, s21, v{t2}")
            I(f"s_andn2_b64 {m}, {m}, exec")
            I("s_addc_u32 s58, s58, 0")
        I(f"s_mov_b64 exec, {live}")
        I("s_cmp_eq_u32 s58, 0")
        I(f"s_cbranch_scc1 L_pok{k}", flush=False)
        p0 = a.pos
        h0 = list(a.hist)
        if sleep:
            I(f"s_sleep {sleep}")
        I("s_sub_u32 s22, s22, 1")
        I(f"s_cbranch_scc0 L_poll{k}", flush=False)
        I("s_mov_b32 s22, 0")
        a.label(f"L_pok{k}", flush=False)
        a.pos = p0
        a.hist = h0
        a.vm_reset()

    def tp(base, n):
        return [(base + 4 * i + 1, base + 4 * i + 3) for i in range(n)]

    def sum8(base):
        for k in (0, 2, 4, 6):
            I(f"v_add_f32 v{base+4*k}, v{base+4*k}, v{base+4+4*k}")
            I(f"v_add_f32 v{base+2+4*k}, v{base+2+4*k}, v{base+6+4*k}")
        for k in (0, 4):
            I(f"v_add_f32 v{base+4*k}, v{base+4*k}, v{base+8+4*k}")
            I(f"v_add_f32 v{base+2+4*k}, v{base+2+4*k}, v{base+10+4*k}")
        I(f"v_add_f32 v{base}, v{base}, v{base+16}")
        I(f"v_add_f32 v{base+2}, v{base+2}, v{base+18}")

    a.c("q consumer")
    stamp(15)
    if not noq:
        poll([f"buffer_load_dwordx4 v[{128+4*k}:{131+4*k}], v12, s[12:15], s{26+(k>>2)} offen offset:{1024*(k&3)} sc1" for k in range(8)],
             tp(128, 8), sleep=slpq,
             pre=([f"s_and_b32 s98, s22, {qper}", "s_cselect_b32 s26, s96, s97", "s_add_u32 s27, s26, 4096"] if xq else []))
    sum8(128)
    I("v_cvt_pk_bf16_f32 v128, v128, v130")
    I(f"ds_write_b32 v13, v128 offset:{L_Q}")
    if fb1:
        I(f"v_mov_b32 v14, {L_FL}")
        I("v_mov_b32 v15, 1")
        I("s_mov_b64 exec, 1")
        I("s_waitcnt lgkmcnt(0)")
        I("ds_add_u32 v14, v15 offset:4")
        I("s_mov_b64 exec, -1")
        stamp(2)
    else:
        I("s_waitcnt lgkmcnt(0)")
        stamp(2)
        I("s_barrier")
    I("v_lshrrev_b32 v46, 1, v0")
    I(f"v_mul_u32_u24 v46, {SO2}, v46")
    I("v_and_b32 v14, 1, v0")
    I("v_lshl_add_u32 v46, v14, 4, v46")
    I("s_bfe_u32 s26, s2, 0x20001")
    I(f"s_mul_i32 s31, s26, {64*SO2}")
    I("s_lshr_b32 s27, s25, 4")
    I("s_lshl_b32 s27, s27, 10")
    I("s_add_u32 s31, s31, s27")
    I("s_and_b32 s27, s2, 1")
    I("s_lshl_b32 s27, s27, 9")
    I("s_add_u32 s31, s31, s27")
    I("s_and_b32 s27, s25, 15")
    I("s_lshl_b32 s27, s27, 5")
    I("s_add_u32 s31, s31, s27")
    I("s_mov_b32 s62, 3")
    I("s_mov_b32 s63, 3")
    I(f"s_cmp_eq_u32 s3, {3 if dryt else 99}")
    I("s_cselect_b64 s[60:61], 0, -1")
    if hprio != 3:
        I(f"s_setprio {hprio}")
    I(f"s_cmp_eq_u32 s3, {99 if (mlv < 4 or gdef) else 0}")
    I("s_cbranch_scc1 L_gate")
    I("s_cmp_eq_u32 s3, 0")
    I("s_cbranch_scc1 L_tail")
    I("s_cmp_eq_u32 s3, 3")
    I("s_cbranch_scc1 L_tail")
    I(f"s_cmp_ge_u32 s2, {0 if mlv < 2 else 224}")
    I("s_cbranch_scc1 L_tail")
    I("s_cmp_eq_u32 s3, 1")
    I(f"s_cbranch_scc1 {'L_tail' if m1e else 'L_mlp1'}")
    if mlv >= 3:
        I("s_branch L_mlp2")
    else:
        I("s_branch L_tail")

    def rbf(v):
        I(f"v_cvt_pk_bf16_f32 v{v}, v{v}, v{v}")
        I(f"v_and_b32 v{v}, 0xffff0000, v{v}")

    def reduce2(x0, x1):
        I(f"v_permlane32_swap_b32 v{x0}, v{x1}")
        I(f"v_add_f32 v{x0}, v{x0}, v{x1}")
        I(f"v_mov_b32 v{x1}, v{x0}")
        I(f"v_permlane16_swap_b32 v{x0}, v{x1}")
        I(f"v_add_f32 v{x0}, v{x0}, v{x1}")
        I(f"v_add_f32_dpp v{x0}, v{x0}, v{x0} row_ror:8 {DPPF}")
        I(f"v_add_f32_dpp v{x0}, v{x0}, v{x0} row_ror:4 {DPPF}")
        I(f"v_add_f32_dpp v{x0}, v{x0}, v{x0} quad_perm:[2,3,0,1] {DPPF}")

    def gate_calc():
        I("v_cndmask_b32 v136, 0, v132, s[56:57]")
        I("v_cndmask_b32 v138, 0, v134, s[56:57]")
        I("v_add_f32 v136, v128, v136")
        I("v_add_f32 v138, v130, v138")
        reduce2(136, 138)
        rbf(136)
        I("v_lshlrev_b32 v63, 16, v63")
        I("v_lshlrev_b32 v62, 16, v62")
        I("v_add_f32 v136, v136, v63")
        rbf(136)
        I(f"v_mul_f32 v63, {f32(-LOG2E)}, v136")
        I("v_exp_f32 v63, v63")
        I("v_add_f32 v63, 1.0, v63")
        I("v_rcp_f32 v63, v63")
        I("v_mul_f32 v63, v63, v136")
        rbf(63)

    a.raw(".p2align 6")
    a.label("L_tail")
    if hprio != 3:
        I("s_setprio 3")
    I(f"v_mul_u32_u24 v13, {128 if loc else 512*SO1}, v1")
    I(f"v_mul_u32_u24 v14, {4*SO1}, v2")
    I("v_add_u32 v13, v13, v14")
    I("v_and_b32 v14, 7, v0")
    I("v_lshl_add_u32 v13, v14, 4, v13")
    I("v_and_b32 v14, 3, v0")
    I("v_lshlrev_b32 v14, 4, v14")
    I("v_lshl_or_b32 v14, v2, 6, v14")
    I("v_lshl_or_b32 v14, v1, 13, v14")
    I("s_lshr_b32 s27, s28, 3")
    if loc:
        I(f"s_mul_i32 s26, s23, {16*SO1}")
        I("s_lshl_b32 s29, s3, 8")
    else:
        I(f"s_mul_i32 s26, s27, {16*SO1}")
        I("s_and_b32 s29, s28, 7")
        I("s_lshl_b32 s29, s29, 7")
    I("s_add_u32 s26, s26, s29")
    I(f"s_add_u32 s26, s26, {O1}")
    if loc or xo:
        I("s_mov_b32 s97, s26")
        I(f"s_add_u32 s96, s26, {O1A - O1}")
    if loc:
        I("s_mov_b32 s100, 0")
        I("s_mov_b32 s101, -1")
    I("s_lshl_b32 s27, s27, 8")
    I(f"s_add_u32 s27, s27, {ML}")
    I("s_lshl_b32 s29, s3, 10")
    I(f"s_add_u32 s29, s29, {L_RL - 1024}")
    I("v_add_u32 v15, s29, v12")
    I("s_lshl_b32 s29, s30, 6")
    I("s_add_u32 s29, s29, s23")
    I(f"s_mul_i32 s29, s29, {SO2}")
    I(f"s_add_u32 s29, s29, {O2}")
    I(f"s_add_u32 s24, s31, {O2}")
    if loc:
        I("s_and_b32 s25, s2, 1")
        I(f"s_mul_i32 s25, s25, {32*SO2 - 512}")
        I("s_add_u32 s24, s24, s25")
        I("s_add_u32 s25, s24, 512")
    else:
        I(f"s_add_u32 s25, s31, {O2 + 32*SO2}")
    I("v_mov_b32 v53, s21")
    I("v_mov_b32 v55, s21")
    I("v_mov_b32 v57, s21")
    I("v_mov_b32 v59, s21")
    if gdef:
        I(f"s_add_u32 s31, s31, {OM}")
        I("v_cmp_gt_u32 s[56:57], 48, v0")
        I(f"v_add_u32 v47, {32*SO2}, v46")
        I("v_cndmask_b32 v47, v46, v47, s[56:57]")
        I("s_cmp_eq_u32 s3, 0")
        I("s_cselect_b64 s[50:51], -1, 0")
    if eml:
        I("s_mov_b32 s48, 0x07060302")
        I("s_mov_b32 s49, 0x05040100")
    a.label("L_tail2")
    I("s_mov_b64 exec, s[60:61]")
    I("s_waitcnt vmcnt(0)")
    if wol:
        I("s_movk_i32 s100, 0x1000")
    barrier()
    stamp(4)
    if wol:
        for t in range(4):
            I(f"buffer_load_dwordx4 v[{16+4*t}:{19+4*t}], v11, s[96:99], {'s100' if t >= 2 else '0'} offen offset:{2048*(t&1)} {'nt' if wol == 1 else ''}")
    lds_ = [] if eml else [f"buffer_load_dwordx4 v[80:83], v14, s[12:15], s27 offen sc1"]
    for i in range(4):
        lds_.append(f"buffer_load_dwordx4 v[{64+4*i}:{67+4*i}], v13, s[12:15], s26 offen offset:{SO1*i} sc1")
    tg1 = [(65 + 4 * i, 67 + 4 * i, 92 + i) for i in range(4)] if eml else tp(80, 1) + tp(64, 4)
    assert gdef
    lds_ += [f"buffer_load_dwordx4 v[{128+4*e}:{131+4*e}], v{46+e}, s[12:15], s31 offen sc1" for e in range(2)]
    poll(lds_, tg1 + tp(128, 2), sleep=slp1, live="s[60:61]", lives=["s[60:61]"] * len(tg1) + ["s[50:51]"] * 2, depth=pd1, gap=pg1, st=8,
         pre=([f"s_and_b32 s98, s22, {lper}", "s_cselect_b32 s26, s96, s97"] if (loc >= 2 or xo) else []))
    stamp(5)
    if eml:
        for i in range(4):
            I(f"v_perm_b32 v{80+i}, v{65+4*i}, v{67+4*i}, s49")
        I("v_max3_f32 v84, v80, v81, v82")
        I("v_max_f32 v84, v84, v83")
    else:
        I(f"v_max_f32_dpp v84, v80, v80 quad_perm:[1,0,3,2] {DPPF}")
        I(f"v_max_f32_dpp v84, v84, v84 quad_perm:[2,3,0,1] {DPPF}")
    I("v_mov_b32 v85, v84")
    I("v_permlane16_swap_b32 v84, v85")
    I("v_max_f32 v84, v84, v85")
    I("v_mov_b32 v85, v84")
    I("v_permlane32_swap_b32 v84, v85")
    I("v_max_f32 v84, v84, v85")
    if eml:
        for i in range(4):
            I(f"v_sub_f32 v{92+i}, v{80+i}, v84")
        for i in range(4):
            I(f"v_exp_f32 v{92+i}, v{92+i}")
        for i in range(4):
            op = "v_mul_f32_dpp" if i == 0 else "v_fmac_f32_dpp"
            I(f"{op} v87, v{92+i}, v{80+i} quad_perm:[0,0,2,2] {DPPF}")
            I(f"{op} v88, v{92+i}, v{64+4*i} quad_perm:[0,0,2,2] {DPPF}")
            I(f"{op} v90, v{92+i}, v{66+4*i} quad_perm:[0,0,2,2] {DPPF}")
        I("v_mov_b32 v91, v87")
    else:
        I("v_sub_f32 v86, v80, v84")
        I("v_exp_f32 v86, v86")
        I("v_mul_f32 v87, v86, v82")
        I(f"v_mul_f32_dpp v88, v86, v64 quad_perm:[0,0,0,0] {DPPF}")
        I(f"v_mul_f32_dpp v90, v86, v66 quad_perm:[0,0,0,0] {DPPF}")
        I(f"v_add_f32_dpp v87, v87, v87 quad_perm:[1,0,3,2] {DPPF}")
        for i in range(1, 4):
            I(f"v_fmac_f32_dpp v88, v86, v{64+4*i} quad_perm:[{i},{i},{i},{i}] {DPPF}")
            I(f"v_fmac_f32_dpp v90, v86, v{66+4*i} quad_perm:[{i},{i},{i},{i}] {DPPF}")
            if i == 1:
                I(f"v_add_f32_dpp v87, v87, v87 quad_perm:[2,3,0,1] {DPPF}")
            if i == 2:
                I("v_mov_b32 v91, v87")
    I("v_permlane32_swap_b32 v87, v91")
    I("v_permlane32_swap_b32 v88, v90")
    I("v_add_f32 v87, v87, v91")
    I("v_add_f32 v88, v88, v90")
    I("v_permlane16_swap_b32 v88, v87")
    I("v_add_f32 v88, v88, v87")
    I("v_mov_b32 v87, v88")
    I("v_permlane16_swap_b32 v88, v87")
    I(f"v_rcp_f32_dpp v87, v87 quad_perm:[1,1,3,3] {DPPF}" if eml else "v_rcp_f32 v87, v87")
    I("v_mul_f32 v88, v88, v87")
    I("v_cvt_pk_bf16_f32 v88, v88, v88")
    I("v_mov_b32_dpp v88, v88 row_shr:4 row_mask:0x5 bank_mask:0xa")
    I("v_mov_b32_dpp v88, v88 row_shl:4 row_mask:0xa bank_mask:0x5")
    for t in range(4):
        for r in range(4):
            I(f"v_and_b32_dpp v{96+4*t+r}, v88, v{4+r} quad_perm:[{t},{t},{t},{t}] {DPPF}")
    for t in range(4):
        I(f"v_mfma_f32_16x16x32_bf16 v[48:51], v[{96+4*t}:{99+4*t}], v[{16+4*t}:{19+4*t}], {'0' if t == 0 else 'v[48:51]'}")
        if loc:
            I(f"v_mfma_f32_16x16x32_bf16 v[208:211], v[{96+4*t}:{99+4*t}], v[{192+4*t}:{195+4*t}], {'0' if t == 0 else 'v[208:211]'}")
    if loc:
        for r in range(4):
            I(f"v_cndmask_b32 v{48+r}, v{48+r}, v{208+r}, s[100:101]")
    I("s_cbranch_execz L_fin", flush=False)
    I("s_cmp_eq_u32 s3, 0")
    I("s_cbranch_scc1 L_fin", flush=False)
    I("ds_write_b128 v15, v[48:51]")
    I("s_waitcnt lgkmcnt(0)")
    I("s_barrier")
    if prof:
        I("s_add_u32 s3, s3, 4")
        stamps_out("s3")
    I("s_endpgm")
    a.label("L_fin")
    barrier()
    for w in range(3):
        I(f"ds_read_b128 v[{112+4*w}:{115+4*w}], v12 offset:{L_RL + 1024*w}")
    I("s_waitcnt lgkmcnt(1)")
    for r in range(4):
        I(f"v_add_f32 v{48+r}, v{48+r}, v{112+r}")
    for r in range(4):
        I(f"v_add_f32 v{48+r}, v{48+r}, v{116+r}")
    I("s_waitcnt lgkmcnt(0)")
    for r in range(4):
        I(f"v_add_f32 v{52+2*r}, v{48+r}, v{120+r}")
    I("buffer_store_dwordx4 v[52:55], v12, s[12:15], s29 offen sc1")
    I("buffer_store_dwordx4 v[56:59], v12, s[12:15], s29 offen offset:1024 sc1")
    stamp(6)
    if gdef:
        gate_calc()
    poll([f"buffer_load_dwordx4 v[{140+4*e}:{143+4*e}], v46, s[12:15], s{24+e} offen sc1" for e in range(2)],
         tp(140, 2), sleep=slp2, live="s[60:61]", depth=pd2, gap=pg2, st=10)
    stamp(14)
    I("v_add_f32 v148, v140, v144")
    I("v_add_f32 v150, v142, v146")
    reduce2(148, 150)
    rbf(148)
    I("v_mul_f32 v148, v148, v63")
    rbf(148)
    I("v_add_f32 v148, v148, v62")
    I("v_cvt_pk_bf16_f32 v148, v148, v148")
    I("s_and_b64 exec, exec, s[62:63]")
    I(f"buffer_store_short v148, v61, s[52:55], 0 offen {osc}")
    I("s_cbranch_execz L_dry2", flush=False)
    I("s_cmp_lg_u32 s2, 0")
    I("s_cbranch_scc1 L_end2", flush=False)
    I("s_mov_b64 exec, 1")
    I("buffer_store_dword v53, off, s[12:15], 0 sc1")
    a.label("L_end2")
    stamp(7)
    stamps_out("4")
    diag_spin('H')
    I("s_endpgm")
    a.label("L_dry2")
    I("s_mov_b64 s[60:61], -1")
    stamp(3)
    I("s_branch L_tail2")

    a.raw(".p2align 6")
    a.label("L_gate")
    a.c("gate value for this workgroup's 4 outputs")
    I(f"s_add_u32 s26, s31, {OM}")
    I("v_cmp_gt_u32 s[56:57], 48, v0")
    I(f"v_add_u32 v47, {32*SO2}, v46")
    I("v_cndmask_b32 v47, v46, v47, s[56:57]")
    poll([f"buffer_load_dwordx4 v[{128+4*e}:{131+4*e}], v{46+e}, s[12:15], s26 offen sc1" for e in range(2)],
         tp(128, 2), sleep=slpg)
    gate_calc()
    stamp(3)
    I("s_branch L_tail")

    if m1e:
        a.raw(".p2align 6")
        a.label("L_h1b")
        a.vm_reset(vm_h1)
        I("s_load_dword s31, s[12:13], 0")
        masks()
        I("v_or_b32 v116, v4, v6")
        I("v_or_b32 v117, v5, v7")
        for i in range(9):
            I(f"v_mov_b32 v{120+4*i}, 0")
            I(f"v_mov_b32 v{121+4*i}, 0")
        I("v_lshlrev_b32 v13, 4, v13")
        I("v_lshl_or_b32 v13, v2, 7, v13")
        I("s_lshl_b32 s26, s2, 10")
        I(f"s_add_u32 s26, s26, {HP}")
        I("s_waitcnt lgkmcnt(0)")
        tagcalc(31)
        for r in range(4):
            I(f"v_mov_b32 v{161+2*r}, s31")
        a.vm_wait("x")
        ln_stats(32, 96, 48)
        ln_apply(32, 96, 48)
        ln_stats(32, 96, 54)
        a.vm_wait("xa")
        ln_apply(40, 96, 48, n=4)
        ln_apply(40, 96, 54, n=4, dup=104)
        for i in range(8):
            I(f"v_and_b32 v{122+4*i}, v{104+i}, v116")
            I(f"v_and_b32 v{123+4*i}, v{104+i}, v117")
        for i in range(8):
            cx = '0' if i == 0 else 'v[32:35]'
            cy = '0' if i == 0 else 'v[36:39]'
            a.vm_wait(f"w{i}")
            I(f"v_mfma_f32_16x16x32_bf16 v[32:35], v[{122+4*i}:{125+4*i}], v[{64+4*i}:{67+4*i}], {cx}")
            I(f"v_mfma_f32_16x16x32_bf16 v[36:39], v[{120+4*i}:{123+4*i}], v[{64+4*i}:{67+4*i}], {cy}")
        for r in range(4):
            I(f"v_permlane16_swap_b32 v{32+r}, v{36+r}")
        for r in range(4):
            I(f"v_add_f32_dpp v{160+2*r}, v{36+r}, v{32+r} row_ror:8 {DPPF}")
        I("s_mov_b32 exec_lo, 0x00ff00ff")
        I("s_mov_b32 exec_hi, 0x00ff00ff")
        I("buffer_store_dwordx4 v[160:163], v13, s[12:15], s26 offen sc1")
        I("buffer_store_dwordx4 v[164:167], v13, s[12:15], s26 offen offset:512 sc1")
        stamp(3)
        I("s_branch L_hinit")

    a.raw(".p2align 6")
    a.label("L_mlp1")
    a.c("channel MLP layer 1: 64 hidden columns x 64 rows")
    I("v_and_b32 v13, 7, v0")
    I("v_or_b32 v116, v4, v6")
    I("v_or_b32 v117, v5, v7")
    for i in range(9):
        I(f"v_mov_b32 v{120+4*i}, 0")
        I(f"v_mov_b32 v{121+4*i}, 0")
    I("v_lshlrev_b32 v13, 4, v13")
    I("v_lshl_or_b32 v13, v2, 7, v13")
    I("s_lshl_b32 s26, s2, 10")
    I(f"s_add_u32 s26, s26, {HP}")
    ln_stats(32, 96, 48)
    ln_apply(32, 96, 48)
    ln_stats(32, 96, 54)
    ln_apply(40, 96, 48, n=4)
    ln_apply(40, 96, 54, n=4, dup=104)
    for i in range(8):
        I(f"v_and_b32 v{122+4*i}, v{104+i}, v116")
        I(f"v_and_b32 v{123+4*i}, v{104+i}, v117")
    for i in range(8):
        cx = '0' if i == 0 else 'v[32:35]'
        cy = '0' if i == 0 else 'v[36:39]'
        I(f"v_mfma_f32_16x16x32_bf16 v[32:35], v[{122+4*i}:{125+4*i}], v[{64+4*i}:{67+4*i}], {cx}")
        I(f"v_mfma_f32_16x16x32_bf16 v[36:39], v[{120+4*i}:{123+4*i}], v[{64+4*i}:{67+4*i}], {cy}")
    for r in range(4):
        I(f"v_mov_b32 v{65+2*r}, s21")
    for r in range(4):
        I(f"v_permlane16_swap_b32 v{32+r}, v{36+r}")
    for r in range(4):
        I(f"v_add_f32_dpp v{64+2*r}, v{36+r}, v{32+r} row_ror:8 {DPPF}")
    I("s_mov_b32 exec_lo, 0x00ff00ff")
    I("s_mov_b32 exec_hi, 0x00ff00ff")
    I("buffer_store_dwordx4 v[64:67], v13, s[12:15], s26 offen sc1")
    I("buffer_store_dwordx4 v[68:71], v13, s[12:15], s26 offen offset:512 sc1")
    I("s_mov_b64 exec, -1")
    stamp(3)
    I("s_branch L_tail")

    a.raw(".p2align 6")
    a.label("L_mlp2")
    a.c("channel MLP layer 2: 32 hidden rows x 128 columns")
    I("s_lshr_b32 s26, s24, 2")
    I("s_lshl_b32 s27, s25, 1")
    I("s_add_u32 s27, s27, s26")
    I("s_and_b32 s24, s24, 3")
    I("v_lshlrev_b32 v13, 1, v47")
    I("v_and_b32 v14, 1, v2")
    I("v_lshl_or_b32 v13, v14, 8, v13")
    I("s_lshl_b32 s26, s26, 7")
    I("v_lshlrev_b32 v14, 5, v2")
    I("v_lshl_or_b32 v14, v1, 8, v14")
    I("v_add_u32 v14, s26, v14")
    I("s_lshl_b32 s24, s24, 6")
    I("s_add_u32 s29, s24, s27")
    I(f"s_mul_i32 s29, s29, {SO2}")
    I(f"s_add_u32 s29, s29, {OM}")
    I("s_lshl_b32 s26, s25, 13")
    I(f"s_add_u32 s26, s26, {HP}")
    I("s_add_u32 s27, s26, 4096")
    I("v_lshlrev_b32 v15, 10, v0")
    I("s_movk_i32 s56, 0xff")
    I("s_mov_b32 s57, 0")
    for _ in range(m2sl):
        I("s_sleep 127")
    if m2pl:
        if not m2sl and not m1e:
            poll(["buffer_load_dwordx4 v[128:131], v15, s[12:15], s26 offen offset:1008 sc1"], tp(128, 1), sleep=slpm, live="s[56:57]")
        I("s_mov_b64 exec, -1")
        poll([f"buffer_load_dwordx4 v[{128+4*k}:{131+4*k}], v12, s[12:15], s{26+(k>>2)} offen offset:{1024*(k&3)} sc1" for k in range(8)],
             tp(128, 8), sleep=slpm)
    sum8(128)
    I("v_cvt_pk_bf16_f32 v32, v128, v130")
    unpack(32, 36, 1)
    unpack(62, 40, 1)
    for r in range(2):
        I(f"v_add_f32 v{36+r}, v{36+r}, v{40+r}")
    I("v_cvt_pk_bf16_f32 v32, v36, v37")
    unpack(32, 36, 1)
    kk = -2.0 * math.sqrt(2.0 / math.pi) * LOG2E
    I(f"s_mov_b32 s26, {f32(kk * 0.044715)}")
    I(f"v_mov_b32 v44, {f32(kk)}")
    for r in range(2):
        I(f"v_mul_f32 v{40+r}, v{36+r}, v{36+r}")
    for r in range(2):
        I(f"v_fma_f32 v{40+r}, v{40+r}, s26, v44")
    for r in range(2):
        I(f"v_mul_f32 v{40+r}, v{40+r}, v{36+r}")
    for r in range(2):
        I(f"v_exp_f32 v{40+r}, v{40+r}")
    for r in range(2):
        I(f"v_add_f32 v{40+r}, 1.0, v{40+r}")
    for r in range(2):
        I(f"v_rcp_f32 v{40+r}, v{40+r}")
    for r in range(2):
        I(f"v_mul_f32 v{40+r}, v{40+r}, v{36+r}")
    I("v_cvt_pk_bf16_f32 v32, v40, v40")
    I("v_cvt_pk_bf16_f32 v33, v41, v41")
    I(f"ds_write_b64 v13, v[32:33] offset:{L_HL}")
    I("s_waitcnt lgkmcnt(0)")
    I(f"ds_read_b128 v[96:99], v14 offset:{L_HL}")
    I(f"ds_read_b128 v[100:103], v14 offset:{L_HL + 16}")
    for r in range(4):
        I(f"v_mov_b32 v{37+2*r}, s21")
    I("s_waitcnt lgkmcnt(0)")
    for t in range(8):
        for r in range(4):
            I(f"v_and_b32 v{160+4*t+r}, v{96+t}, v{4+r}")
    for t in range(8):
        I(f"v_mfma_f32_16x16x32_bf16 v[32:35], v[{160+4*t}:{163+4*t}], v[{64+4*t}:{67+4*t}], {'0' if t == 0 else 'v[32:35]'}")
    for r in range(4):
        I(f"v_mov_b32 v{36+2*r}, v{32+r}")
    if m2st:
        I("buffer_store_dwordx4 v[36:39], v12, s[12:15], s29 offen sc1")
        I("buffer_store_dwordx4 v[40:43], v12, s[12:15], s29 offen offset:1024 sc1")
    stamp(3)
    I("s_branch L_tail")

    a.raw('.section .rodata,"a"')
    a.raw(".p2align 6")
    a.raw(f".amdhsa_kernel {NAME}")
    a.raw("  .amdhsa_next_free_vgpr 256")
    a.raw("  .amdhsa_next_free_sgpr 102")
    a.raw("  .amdhsa_accum_offset 256")
    a.raw("  .amdhsa_group_segment_fixed_size 0")
    a.raw("  .amdhsa_kernarg_size 104")
    a.raw("  .amdhsa_user_sgpr_count 2")
    a.raw("  .amdhsa_user_sgpr_kernarg_segment_ptr 1")
    a.raw("  .amdhsa_system_sgpr_workgroup_id_x 1")
    a.raw(".end_amdhsa_kernel")
    return a.text()


if __name__ == "__main__":
    out = sys.argv[1]
    kw = eval("dict(" + (sys.argv[2] if len(sys.argv) > 2 else "") + ")")
    open(out, "w").write(gen(**kw))
```

```python
import sys, struct, math
sys.path.insert(0, "exp")
from asmlib import Asm

NAME = "recurrent_scan__gqa_block_cached__mixer_channel_mlp__decode_kernel"
REF = "recurrent_scan__gqa_block_cached__mixer_channel_mlp__decode.s.ref"


def f32(x):
    return "0x%08x" % struct.unpack("<I", struct.pack("<f", x))[0]


QP = 0x10000
HP = 0xA0000
O1 = 0x100000
QPA = 0x500000
O1A = 0x200000
ML = 0x280000
O2 = 0x300000
OM = 0x400000
CTR = 0x500000
TS = 0x700000
WSSZ = 0x800000
L_Q = 0
L_OL = 1024
L_ML = 9216
L_RL = 9728
L_HL = 12800
L_FL = 13312
LOG2E = 1.4426950408889634
DPPF = "row_mask:0xf bank_mask:0xf"
NST = 16


def gen(prof=False, ntkv="nt", budget=20000, SO1=1024, SO2=2048, drys=True, dryt=True,
        slp1=0, slp2=0, slpq=0, qd=32, pace=12, ntk=None, ntv=None, diag=None, noq=False, nomlp=False, nowo=False, nowq=False, mlv=4, slpg=64, slpm=16, hprio=3, m2st=True, m2pl=True, gdef=True, m2sl=0, cmap=0, dyn=0, dlay=1, dmode=0, tlb=0, tlbpos=1, rot=0, m1e=2, hpm=0, fb1=0, pd1=1, pg1=8, pd2=1, pg2=8, eml=1, tdeep=0, osc='', wol=0, loc=0, lper=7, lord=0, xl=0, xo=0, xq=0, qper=7, o2m=0, otl=0, xc=1, xh=1, xw=1, il=1, wl=0):
    global O2
    if o2m:
        O2 = 0x480000
    if nomlp: mlv = 0
    ntk = ntkv if ntk is None else ntk
    ntv = ntkv if ntv is None else ntv
    a = Asm()
    I = a.I
    hdr = [l for l in open(REF).read().split("\n") if l.startswith(";") and "@launch" not in l]
    for l in hdr:
        a.raw(l)
    a.raw("; @launch grid=(256,1,1) block=(512,1,1) lds=16384")
    a.raw('.amdgcn_target "amdgcn-amd-amdhsa--gfx950"')
    a.raw(".text")
    a.raw(f".globl {NAME}")
    a.raw(".p2align 8")
    a.raw(f".type {NAME},@function")
    a.raw(f"{NAME}:")

    def stamp(i):
        if prof:
            I(f"s_memrealtime s[{64+2*i}:{65+2*i}]")

    def stamps_out(wavereg):
        if not prof:
            return
        I("s_mov_b64 exec, 1")
        I("s_lshl_b32 s30, s2, 3")
        I(f"s_add_u32 s30, s30, {wavereg}")
        I("s_lshl_b32 s30, s30, 7")
        I(f"s_add_u32 s30, s30, {TS}")
        I("s_waitcnt lgkmcnt(0)")
        for i in range(2 * NST):
            I(f"v_mov_b32 v{64+i}, s{64+i}")
        I("v_mov_b32 v100, 0")
        for i in range(NST // 2):
            I(f"buffer_store_dwordx4 v[{64+4*i}:{67+4*i}], v100, s[12:15], s30 offen offset:{16*i}")

    def diag_spin(role):
        if diag is None or diag[0] != role:
            return
        _, idx, wg, base = diag
        if wg is not None:
            I(f"s_cmp_lg_u32 s2, {wg}")
            I(f"s_cbranch_scc1 L_dg_end")
        I("s_waitcnt lgkmcnt(0)")
        I(f"s_cmp_eq_u32 s{64+2*idx}, 0")
        I(f"s_cbranch_scc1 L_dg_end")
        I(f"s_add_u32 s56, s{64+2*idx}, {base*100}")
        I("s_mov_b32 s57, 20000")
        a.label("L_dg")
        I("s_sleep 4")
        I("s_memrealtime s[58:59]")
        I("s_sub_u32 s57, s57, 1")
        I("s_cbranch_scc1 L_dg_end")
        I("s_waitcnt lgkmcnt(0)")
        I("s_sub_u32 s58, s58, s56")
        I("s_cmp_lt_i32 s58, 0")
        I("s_cbranch_scc1 L_dg")
        a.label("L_dg_end")

    def tagcalc(r=21):
        I(f"s_mul_i32 s{r}, s{r}, 0x9E3779B1")
        I(f"s_add_u32 s{r}, s{r}, 0x7F4A7C15")

    skipid = [0]

    def barrier():
        k = skipid[0]; skipid[0] += 1
        I(f"s_cbranch_execz L_sk{k}", flush=False)
        I("s_barrier")
        a.label(f"L_sk{k}", flush=False)

    def lanebits():
        I("v_bfe_u32 v1, v0, 3, 1")
        I("v_lshrrev_b32 v2, 4, v0")
        I("v_and_b32 v3, 15, v0")

    def masks():
        I("v_and_b32 v8, 1, v0")
        I("v_bfe_u32 v9, v0, 1, 2")
        I("v_lshlrev_b32 v8, 4, v8")
        I("v_mov_b32 v10, 0xffff")
        I("v_cmp_eq_u32 s[56:57], 0, v9")
        I("v_cmp_eq_u32 s[58:59], 1, v9")
        I("v_cmp_eq_u32 s[62:63], 2, v9")
        I("v_cmp_eq_u32 vcc, 3, v9")
        I("v_lshlrev_b32 v8, v8, v10")
        I("v_cndmask_b32 v4, 0, v8, s[56:57]")
        I("v_cndmask_b32 v5, 0, v8, s[58:59]")
        I("v_cndmask_b32 v6, 0, v8, s[62:63]")
        I("v_cndmask_b32 v7, 0, v8, vcc")

    I("s_cmp_ge_u32 s2, 0x100")
    I("s_cbranch_scc1 L_exit")
    I("s_load_dwordx16 s[32:47], s[0:1], 0")
    I("s_load_dwordx2 s[12:13], s[0:1], 96")
    I("s_load_dwordx8 s[48:55], s[0:1], 64")
    if prof:
        for i in range(2 * NST):
            I(f"s_mov_b32 s{64+i}, 0")
    stamp(0)
    I("v_lshrrev_b32 v1, 6, v0")
    I("v_and_b32 v0, 63, v0")
    I("v_readfirstlane_b32 s3, v1")
    I("s_and_b32 s20, s2, 7")
    I("s_lshl_b32 s20, s20, 5")
    I("s_lshr_b32 s25, s2, 3")
    I("s_add_u32 s20, s20, s25")
    if cmap == 1:
        I("s_mov_b32 s20, s2")
    if xl and xc:
        assert not loc and not dyn and cmap == 0
        I("s_lshr_b32 s20, s20, 1")
        I("s_and_b32 s20, s20, 0x70")
        I("s_and_b32 s24, s25, 15")
        I("s_add_u32 s20, s20, s24")
        I("s_and_b32 s24, s2, 0x80")
        I("s_add_u32 s20, s20, s24")
    I(f"s_mov_b32 s14, {WSSZ}")
    I("s_mov_b32 s15, 0x00020000")
    I("s_mov_b32 s7, 0x00020000")
    I("s_mov_b32 s11, 0x00020000")
    I("s_sub_u32 s24, s3, 4")
    I(f"s_cmp_ge_u32 s24, {3 if drys else 4}")
    I("s_cbranch_scc1 L_stream")
    I("s_setprio 3")
    I("s_cmp_eq_u32 s3, 4")
    I("s_cbranch_scc1 L_h0a")
    if m1e:
        I("s_cmp_lt_u32 s2, 224")
        I("s_cselect_b32 s24, s24, 0")
        I("s_cmp_eq_u32 s24, 1")
        I("s_cbranch_scc1 L_h1a")
    I("v_mov_b32 v8, 0")
    I(f"v_mov_b32 v9, {L_FL}")
    I("ds_write_b32 v9, v8")
    if fb1:
        I("ds_write_b32 v9, v8 offset:4")
    I("s_waitcnt lgkmcnt(0)")
    I("s_barrier")
    I("s_branch L_hinit")
    a.label("L_h0a")
    lanebits()
    I("v_and_b32 v12, 7, v0")
    I("v_lshl_or_b32 v12, v2, 3, v12")
    I("v_lshlrev_b32 v12, 5, v12")
    I("v_lshl_or_b32 v12, v1, 10, v12")
    I("v_lshlrev_b32 v13, 5, v2")
    I("v_lshl_or_b32 v13, v1, 10, v13")
    I("v_lshlrev_b32 v14, 4, v3")
    I("v_lshl_or_b32 v14, v2, 17, v14")
    I("v_mov_b32 v15, 0")
    if xl and xh:
        I("s_and_b32 s24, s2, 7")
        I("s_lshl_b32 s24, s24, 2")
        I("s_and_b32 s25, s25, 3")
        I("s_add_u32 s25, s25, s24")
        I("s_lshr_b32 s24, s2, 5")
    else:
        I("s_and_b32 s24, s2, 7")
    I("s_lshl_b32 s26, s24, 19")
    I("s_lshl_b32 s27, s25, 8")
    I("s_add_u32 s26, s26, s27")
    I("s_lshl_b32 s27, s24, 7")
    I("s_mov_b32 s6, 2048")
    I(f"s_mov_b32 s10, {0 if nowq else 63*8192+256}")
    I("s_mov_b32 s28, 0")
    I("s_waitcnt lgkmcnt(0)")
    stamp(8)
    I("s_mov_b32 s4, s32")
    I("s_mov_b32 s5, s33")
    I("s_add_u32 s8, s38, s26")
    I("s_addc_u32 s9, s39, 0")
    a.vm_reset()
    if dyn:
        assert cmap == 1
        I("s_lshl_b32 s29, s24, 5")
        I("s_add_u32 s29, s29, s25")
        I("s_lshl_b32 s29, s29, 8")
        I(f"s_add_u32 s29, s29, {CTR}")
        I("s_cmp_lt_u32 s24, 2")
        I("s_cselect_b64 exec, 1, 0")
        I("s_cbranch_execz L_nz", flush=False)
        I("buffer_store_dword v15, off, s[12:15], s29 sc1")
        a.label("L_nz", flush=False)
        I("s_mov_b64 exec, -1")
    I("buffer_load_dwordx4 v[32:35], v12, s[4:7], 0 offen", vmid="x")
    I("buffer_load_dwordx4 v[36:39], v12, s[4:7], 0 offen offset:16", vmid="x")
    I("buffer_load_dwordx4 v[40:43], v13, s[4:7], s27 offen", vmid="xa")
    I("buffer_load_dwordx4 v[44:47], v13, s[4:7], s27 offen offset:16", vmid="xa")
    for t in range(16):
        I(f"buffer_load_dwordx4 v[{64+4*t}:{67+4*t}], v14, s[8:11], s28 offen nt", vmid=f"wq{t}")
        if t < 15:
            I("s_add_u32 s28, s28, 0x2000")
    I("s_barrier")
    I("s_load_dword s31, s[12:13], 0")
    I("s_branch L_h0b")
    vm_h0 = list(a.vm)
    if m1e:
        a.label("L_h1a")
        a.c("channel MLP layer 1 (early): 64 hidden columns x 64 rows")
        lanebits()
        I("v_and_b32 v13, 7, v0")
        I("v_lshl_or_b32 v14, v2, 3, v13")
        I("v_lshlrev_b32 v14, 5, v14")
        I("v_lshl_or_b32 v14, v1, 10, v14")
        I("v_bfe_u32 v15, v0, 2, 1")
        I("v_lshl_or_b32 v15, v2, 1, v15")
        I("v_lshlrev_b32 v15, 4, v15")
        I("v_lshl_or_b32 v15, v1, 10, v15")
        I("v_lshl_or_b32 v16, v2, 1, v1")
        I(f"v_mul_u32_u24 v16, {8*3584}, v16")
        I("v_lshl_add_u32 v16, v13, 4, v16")
        I("s_and_b32 s24, s2, 7")
        I("s_lshl_b32 s26, s24, 7")
        I(f"s_mul_i32 s27, s24, {64*3584}")
        I("s_lshl_b32 s28, s25, 7")
        I("s_add_u32 s27, s27, s28")
        I("s_mov_b32 s6, 2048")
        I(f"s_mov_b32 s10, {63*3584+128}")
        I("s_mov_b32 s28, 0")
        I("s_waitcnt lgkmcnt(0)")
        I("s_mov_b32 s4, s32")
        I("s_mov_b32 s5, s33")
        I("s_add_u32 s8, s44, s27")
        I("s_addc_u32 s9, s45, 0")
        a.vm_reset()
        if m1e == 1:
            I("s_barrier")
        I("buffer_load_dwordx4 v[32:35], v14, s[4:7], 0 offen", vmid="x")
        I("buffer_load_dwordx4 v[36:39], v14, s[4:7], 0 offen offset:16", vmid="x")
        I("buffer_load_dwordx4 v[40:43], v15, s[4:7], s26 offen", vmid="xa")
        for i in range(8):
            I(f"buffer_load_dwordx4 v[{64+4*i}:{67+4*i}], v16, s[8:11], s28 offen offset:{3584*(i & 1)} nt", vmid=f"w{i}")
            if i & 1 and i < 7:
                I("s_add_u32 s28, s28, 7168")
        if m1e == 2:
            I("s_barrier")
        I("s_branch L_h1b")
        vm_h1 = list(a.vm)

    a.label("L_stream")
    a.c("stream wave")
    if wl == 1:
        I("s_lshl_b32 s24, s3, 17")
    elif wl == 2:
        I("s_lshl_b32 s24, s3, 17")
        I("s_and_b32 s24, s24, 0x40000")
        I("s_and_b32 s23, s3, 1")
        I("s_lshl_b32 s23, s23, 12")
        I("s_add_u32 s24, s24, s23")
    else:
        I("s_lshl_b32 s24, s3, 12")
    I("v_and_b32 v2, 3, v0")
    I("v_lshlrev_b32 v2, 10, v2")
    I("v_bfe_u32 v1, v0, 2, 2")
    I("v_lshl_or_b32 v2, v1, 8, v2")
    I("v_lshrrev_b32 v1, 4, v0")
    I("v_lshl_or_b32 v2, v1, 4, v2")
    I("v_add_u32 v2, s24, v2")
    I("v_lshl_add_u32 v3, v0, 4, s24")
    if tlb:
        I(f"v_lshlrev_b32 v20, {tlb}, v0")
    if dyn:
        I("s_lshr_b32 s29, s20, 4")
        I("s_lshl_b32 s30, s29, 2")
        I("s_add_u32 s30, s30, s3")
        I("s_lshl_b32 s30, s30, 8")
        I(f"s_add_u32 s30, s30, {CTR}")
        I("s_lshl_b32 s29, s29, 23")
        I("s_mov_b32 s6, 0x800000")
        I("s_mov_b32 s10, 0x800000")
        I("s_and_b32 s23, s20, 15")
        I("s_mov_b32 s56, s23")
        I(f"s_mul_i32 s23, s23, {dyn * 0x4000 if dlay == 0 else 0x80000}")
        I("s_mov_b32 s18, 0")
        I("s_mov_b32 s19, 0x00020000")
    else:
        if il > 1:
            assert rot == 0 and not tdeep and not tlb
            I(f"s_and_b32 s29, s20, {256 - il}")
            I("s_lshl_b32 s29, s29, 19")
            I(f"s_and_b32 s6, s20, {il - 1}")
            I("s_lshl_b32 s6, s6, 14")
            I("s_add_u32 s29, s29, s6")
        else:
            I("s_lshl_b32 s29, s20, 19")
        I(f"s_mov_b32 s6, {hex(31 * il * 0x4000 + 0x4000)}")
        I(f"s_mov_b32 s10, {hex(31 * il * 0x4000 + 0x4000)}")
        if rot == 0:
            I("s_mov_b32 s23, 0")
        elif rot == 1:
            I("s_lshr_b32 s23, s2, 6")
            I("s_lshl_b32 s23, s23, 17")
        elif rot == 2:
            I("s_lshr_b32 s23, s2, 3")
            I("s_lshl_b32 s23, s23, 14")
        elif rot == 3:
            I("s_mul_i32 s23, s2, 5")
            I("s_and_b32 s23, s23, 31")
            I("s_lshl_b32 s23, s23, 14")
        elif rot == 4:
            I("s_and_b32 s23, s2, 7")
            I("s_lshl_b32 s23, s23, 16")
        elif rot == 5:
            I("s_lshr_b32 s23, s2, 3")
            I("s_and_b32 s23, s23, 1")
            I("s_lshl_b32 s23, s23, 14")
    I("s_cmp_eq_u32 s3, 7")
    I("s_cselect_b64 exec, 0, -1")
    def kreg(s, c): return f"v[{64+32*s+4*c}:{67+32*s+4*c}]"
    def vreg(s, r): return f"v[{80+32*s+4*r}:{83+32*s+4*r}]"

    def issueK(s, sk=True, tk=None, s2=None):
        k = skipid[0]; skipid[0] += 1
        if s2 is not None:
            I("s_add_u32 s24, s23, 0x4000")
        if drys and sk:
            I(f"s_cbranch_execz L_sk{k}", flush=False)
        if tk is not None:
            I("s_mov_b64 exec, 1")
            I(f"buffer_atomic_add v{tk}, off, s[16:19], 0 sc0" if tk >= 160 else f"buffer_atomic_add v{tk}, off, s[16:19], 0")
            I("s_mov_b64 exec, -1")
        for c in range(4):
            I(f"buffer_load_dwordx4 {kreg(s, c)}, v2, s[4:7], s23 offen offset:{64*c} {ntk}")
        if s2 is not None:
            for c in range(4):
                I(f"buffer_load_dwordx4 {kreg(s2, c)}, v2, s[4:7], s24 offen offset:{64*c} {ntk}")
        if drys and sk:
            a.label(f"L_sk{k}", flush=False)

    def issueV(s, sk=True, s2=None):
        k = skipid[0]; skipid[0] += 1
        if drys and sk:
            I(f"s_cbranch_execz L_sk{k}", flush=False)
        for r in range(4):
            I(f"buffer_load_dwordx4 {vreg(s, r)}, v3, s[8:11], s23 offen offset:{1024*r} {ntv}")
        if s2 is not None:
            for r in range(4):
                I(f"buffer_load_dwordx4 {vreg(s2, r)}, v3, s[8:11], s24 offen offset:{1024*r} {ntv}")
        if drys and sk:
            a.label(f"L_sk{k}", flush=False)
        I(f"s_add_u32 s23, s23, {(0x4000 if s2 is None else 0x8000) * il // (1, 4, 2)[wl]}")
        if rot:
            I("s_and_b32 s23, s23, 0x7ffff")

    for r in (36, 37, 40, 41, 44, 45, 48, 49, 52, 53, 25, 28, 29, 30, 31, 32, 33, 34, 35):
        I(f"v_mov_b32 v{r}, 0")
    I("v_mov_b32 v24, 0xff7fffff")
    I(f"s_mov_b32 s25, {f32(128 ** -0.5 * LOG2E)}")
    I("v_and_b32 v26, 1, v0")
    I("v_cmp_eq_u32 vcc, 1, v26")
    I("v_mov_b32 v54, 0x0c0c0100")
    I("v_mov_b32 v27, 0x01000c0c")
    I("v_cndmask_b32 v54, v54, v27, vcc")
    I("v_mov_b32 v55, 0x0c0c0302")
    I("v_mov_b32 v27, 0x03020c0c")
    I("v_cndmask_b32 v55, v55, v27, vcc")
    I("v_and_b32 v26, 2, v0")
    I("v_cmp_eq_u32 vcc, 2, v26")
    I("v_mov_b32 v27, 0x0c0c0c0c")
    I("v_bfe_u32 v26, v0, 2, 2")
    I("v_cndmask_b32 v56, v27, v54, vcc")
    I("v_cndmask_b32 v57, v27, v55, vcc")
    I("v_cndmask_b32 v54, v54, v27, vcc")
    I("v_cndmask_b32 v55, v55, v27, vcc")
    I("v_lshrrev_b32 v27, 4, v0")
    I("v_lshlrev_b32 v62, 8, v26")
    I("v_lshl_or_b32 v62, v27, 4, v62")
    I("v_lshlrev_b32 v63, 4, v0")
    I("s_lshl_b32 s24, s3, 9")
    I(f"s_add_u32 s24, s24, {L_OL}")
    I("v_lshl_add_u32 v59, v0, 3, s24")
    I("s_lshl_b32 s24, s3, 3")
    I(f"s_add_u32 s24, s24, {L_ML}")
    I("v_lshl_add_u32 v1, v26, 5, s24")
    I("s_lshl_b32 s24, s3, 11")
    I(f"s_add_u32 s24, s24, {L_OL}")
    I("v_and_b32 v0, 15, v0")
    I("v_lshlrev_b32 v0, 5, v0")
    I("v_lshl_or_b32 v0, v27, 9, v0")
    I("v_add_u32 v0, s24, v0")
    I("s_lshr_b32 s24, s20, 4")
    I("s_lshl_b32 s24, s24, 2")
    I("s_add_u32 s24, s24, s3")
    I("s_lshl_b32 s24, s24, 4")
    I("s_and_b32 s26, s20, 15")
    I("s_add_u32 s24, s24, s26")
    I(f"s_mul_i32 s27, s24, {SO1}")
    I(f"s_add_u32 s27, s27, {O1}")
    if loc >= 2 or xo:
        I(f"s_add_u32 s28, s27, {O1A - O1}")
    else:
        I("s_lshl_b32 s28, s24, 4")
        I(f"s_add_u32 s28, s28, {ML}")
    I("s_waitcnt lgkmcnt(0)")
    I("s_add_u32 s4, s34, s29")
    I("s_addc_u32 s5, s35, 0")
    I("s_add_u32 s8, s36, s29")
    I("s_addc_u32 s9, s37, 0")
    if dyn:
        I("s_add_u32 s16, s12, s30")
        I("s_addc_u32 s17, s13, 0")

    I("s_load_dword s21, s[12:13], 0")
    I("s_barrier")
    if drys:
        I("s_cbranch_execz L_pro", flush=False)
    def tlbw():
        I("s_cmp_lg_u32 s3, 0")
        I("s_cbranch_scc1 L_notlb", flush=False)
        I("buffer_load_dword v21, v20, s[4:7], 0 offen nt")
        I("buffer_load_dword v22, v20, s[8:11], 0 offen nt")
        a.label("L_notlb", flush=False)
    if tlb and tlbpos == 0:
        tlbw()
    issueK(0, False); issueV(0, False)
    stamp(6)
    issueK(1, False); issueV(1, False)
    if tlb and tlbpos == 1:
        tlbw()
    stamp(7)
    for s in range(2, 6):
        I(f"s_waitcnt vmcnt({pace})")
        issueK(s, False)
        I(f"s_waitcnt vmcnt({pace})")
        issueV(s, False)
    I("s_waitcnt lgkmcnt(0)")
    tagcalc()
    stamp(1)
    if fb1:
        I(f"v_mov_b32 v4, {L_FL}")
        I(f"s_mov_b32 s22, {budget * 8}")
        a.label("L_qf")
        I("ds_read_b32 v5, v4 offset:4")
        I("s_sub_u32 s22, s22, 1")
        I("s_cbranch_scc1 L_qfok")
        I("s_waitcnt lgkmcnt(0)")
        I("v_readfirstlane_b32 s24, v5")
        I("s_cmp_lt_u32 s24, 4")
        I("s_cbranch_scc1 L_qf")
        a.label("L_qfok")
    else:
        I("s_barrier")
    stamp(2)
    a.label("L_pro", flush=False)
    for c in range(4):
        I(f"ds_read_b128 v[{4+4*c}:{7+4*c}], v62 offset:{L_Q + 64*c}")
    I("s_cmp_eq_u32 s3, 7")
    if dyn:
        I(f"s_cselect_b32 s26, 1, {dyn - 8}")
        I(f"s_cselect_b32 s30, 0, {16 * (32 - dyn)}")
    else:
        I(f"s_cselect_b32 s26, 1, {6 if tdeep else 8}")
    I("s_waitcnt lgkmcnt(0)")

    def proc(s, wk=None, wv=None, iss=None, vearly=True, tick=False, iss2=None):
        a.c(f"unit in slot {s}")
        if wk is not None:
            I(f"s_waitcnt vmcnt({wk})")
        if tick:
            I(f"v_readfirstlane_b32 s22, v{160 + (s + 2) % 3}")
        for c in range(4):
            I(f"v_mfma_f32_16x16x32_bf16 v[20:23], {kreg(s, c)}, v[{4+4*c}:{7+4*c}], {'0' if c == 0 else 'v[20:23]'}")
            if tick and c == 0:
                I("s_mov_b32 s31, s6")
                if dmode:
                    I("s_mov_b32 s22, s56")
                    I("s_cmp_gt_i32 s26, 0")
                    I("s_cselect_b32 s57, 0, 16")
                    I("s_add_u32 s56, s56, s57")
                I("s_cmp_lt_u32 s22, s30")
                I("s_cselect_b32 s24, s6, 0")
                if dlay == 0:
                    I("s_lshl_b32 s22, s22, 14")
                    I(f"s_add_u32 s22, s22, {16 * dyn * 0x4000}")
                else:
                    I("s_and_b32 s29, s22, 15")
                    I("s_lshl_b32 s29, s29, 19")
                    I("s_lshr_b32 s22, s22, 4")
                    I("s_lshl_b32 s22, s22, 14")
                    I("s_add_u32 s22, s22, s29")
                    I(f"s_add_u32 s22, s22, {dyn * 0x4000}")
            if tick and c == 1:
                I("s_cmp_gt_i32 s26, 0")
                I("s_cselect_b32 s23, s23, s22")
                I("s_cselect_b32 s6, s6, s24")
                I("s_mov_b32 s10, s6")
            if tick and c == 2:
                I("s_cmp_lt_i32 s26, 3")
                I(f"s_cselect_b32 s18, {'0' if dmode == 1 else 's6'}, 0")
                I("s_sub_u32 s26, s26, 1")
                I(f"v_mov_b32 v{160 + (s + 1) % 3}, 1")
        if iss is not None:
            issueK(iss, tk=(160 + (s + 1) % 3) if tick else (0 if dyn else None), s2=iss2)
        I("v_max3_f32 v26, v20, v21, v22")
        I("v_max_f32 v26, v26, v23")
        I("v_mov_b32 v27, v26")
        I("v_permlane32_swap_b32 v26, v27")
        I("v_max_f32 v26, v26, v27")
        I("v_mov_b32 v27, v26")
        I("v_permlane16_swap_b32 v26, v27")
        I("v_max_f32 v26, v26, v27")
        I("v_mul_f32 v26, s25, v26")
        I("v_max_f32 v26, v24, v26")
        I("v_sub_f32 v62, v24, v26")
        for r in range(4):
            I(f"v_fma_f32 v{20+r}, v{20+r}, s25, -v26")
        I("v_exp_f32 v62, v62")
        I("v_exp_f32 v20, v20")
        I("v_exp_f32 v21, v21")
        I("v_mov_b32_dpp v58, v62 row_newbcast:0 row_mask:0x1 bank_mask:0xf")
        I("v_exp_f32 v22, v22")
        I("v_exp_f32 v23, v23")
        I("v_mov_b32_dpp v58, v62 row_newbcast:4 row_mask:0x2 bank_mask:0xf")
        I("v_mov_b32 v24, v26")
        I("v_cvt_pk_bf16_f32 v60, v20, v21")
        I("v_mov_b32_dpp v58, v62 row_newbcast:8 row_mask:0x4 bank_mask:0xf")
        I("v_cvt_pk_bf16_f32 v61, v22, v23")
        I("v_add_f32 v27, v20, v21")
        I("v_mov_b32_dpp v58, v62 row_newbcast:12 row_mask:0x8 bank_mask:0xf")
        I("v_add_f32 v26, v22, v23")
        for r in range(4):
            u = 60 + (r >> 1)
            I(f"v_perm_b32 v{38+4*r}, v{u}, v{u}, v{54 + (r & 1)}")
            I(f"v_perm_b32 v{39+4*r}, v{u}, v{u}, v{56 + (r & 1)}")
        I("v_add_f32 v27, v27, v26")
        for r in range(4):
            I(f"v_pk_mul_f32 v[{28+2*r}:{29+2*r}], v[{28+2*r}:{29+2*r}], v[58:59] op_sel_hi:[1,0]")
        I("v_fma_f32 v25, v25, v62, v27")
        if wv is not None:
            I(f"s_waitcnt vmcnt({wv})")
        if iss is not None and vearly:
            issueV(iss, s2=iss2)
        for r in range(4):
            I(f"v_mfma_f32_16x16x32_bf16 v[28:31], v[{38+4*r}:{41+4*r}], {vreg(s, r)}, v[28:31]")
            I(f"v_mfma_f32_16x16x32_bf16 v[32:35], v[{36+4*r}:{39+4*r}], {vreg(s, r)}, v[32:35]")
        if iss is not None and not vearly:
            issueV(iss)

    if pace > 12:
        assert not dyn
        proc(0, 44, 44, iss=0, vearly=False)
        proc(1, 44, 44, iss=1, vearly=False)
        proc(2, 44, 40)
        proc(3, 36, 32)
    else:
        proc(0, iss=0, vearly=False)
        proc(1, iss=1, vearly=False)
        proc(2)
        proc(3)
    if dyn:
        proc(4, 30, 26)
        proc(5, 22, 18)
        stamp(3)
        a.label("L_loop")
        proc(0, 13, 14, iss=2, tick=True)
        I("s_cmp_eq_u32 s31, 0")
        I("s_cbranch_scc1 L_epi")
        proc(1, 13, 14, iss=0, tick=True)
        I("s_cmp_eq_u32 s31, 0")
        I("s_cbranch_scc1 L_epi")
        proc(2, 13, 14, iss=1, tick=True)
        I("s_cmp_eq_u32 s31, 0")
        I("s_cbranch_scc1 L_epi")
        I("s_cmp_gt_i32 s26, -300")
        I("s_cbranch_scc1 L_loop")
    elif tdeep:
        proc(4, 28, 24)
        proc(5, 20, 16)
        stamp(3)
        a.label("L_loop")
        proc(0, 12, 12, iss=2)
        proc(1, 12, 12, iss=0)
        proc(2, 12, 12, iss=1)
        I("s_sub_u32 s26, s26, 1")
        I("s_cmp_lg_u32 s26, 0")
        I("s_cbranch_scc1 L_loop")
        if tdeep == 2:
            I("s_cbranch_execz L_epi")
        proc(0, 12, 16, iss=2, iss2=3)
        proc(1, 20, 24, iss=0, iss2=4)
        proc(2, 28, 28, iss=1, iss2=5)
        proc(3, None, 32)
        proc(0, 28, 20)
        proc(4, None, 16)
        proc(1, 12, 4)
        proc(5, None, 0)
    else:
        proc(4, 28, 24)
        proc(5, 20, 16)
        stamp(3)
        a.label("L_loop")
        I("s_cmp_eq_u32 s26, 0")
        I("s_cselect_b32 s6, 0, s6")
        I("s_cselect_b32 s10, 0, s10")
        proc(0, 12, 12, iss=2)
        proc(1, 12, 12, iss=0)
        I("s_cmp_eq_u32 s26, 0")
        I("s_cbranch_scc1 L_epi")
        proc(2, 12, 12, iss=1)
        I("s_sub_u32 s26, s26, 1")
        I("s_branch L_loop")
    a.label("L_epi")
    stamp(4)
    if prof and dyn:
        I(f"s_sub_u32 s80, {dyn - 2}, s26")
    I("v_mov_b32 v27, v25")
    I("ds_write_b128 v0, v[28:31]")
    I("v_permlane32_swap_b32 v25, v27")
    I("ds_write_b128 v0, v[32:35] offset:16")
    I("v_add_f32 v25, v25, v27")
    I("v_mov_b32 v27, v25")
    I("s_lshl_b32 s24, s3, 5")
    I(f"s_add_u32 s24, s24, {L_ML}")
    I("v_permlane16_swap_b32 v25, v27")
    I("v_add_f32 v25, v25, v27")
    I("v_mov_b32 v26, s24")
    I("ds_write_b64 v1, v[24:25]")
    if eml:
        I("v_mov_b32 v45, s21")
        I("s_mov_b32 s56, 0xaaaaaaaa")
        I("s_mov_b32 s57, 0xaaaaaaaa")
        I("s_mov_b32 s58, 0x07060302")
        I("s_mov_b32 s59, 0x05040100")
    else:
        I("v_mov_b32 v21, s21")
        I("v_mov_b32 v23, s21")
        I("v_mov_b32 v45, s21")
        I("v_mov_b32 v47, s21")
    I("s_waitcnt lgkmcnt(0)")
    barrier()
    I("ds_read_b128 v[4:7], v26")
    I("ds_read_b128 v[8:11], v26 offset:16")
    for w in range(4):
        I(f"ds_read_b64 v[{12+2*w}:{13+2*w}], v59 offset:{2048*w}")
    I("s_waitcnt lgkmcnt(4)")
    I("v_max3_f32 v44, v4, v6, v8")
    I("v_max_f32 v44, v44, v10")
    for w in range(4):
        I(f"v_sub_f32 v{4+2*w}, v{4+2*w}, v44")
    for w in range(4):
        I(f"v_exp_f32 v{4+2*w}, v{4+2*w}")
    I("v_mul_f32 v46, v4, v5")
    if eml:
        for w in range(1, 4):
            I(f"v_fmac_f32 v46, v{4+2*w}, v{5+2*w}")
        I("v_cndmask_b32 v44, v44, v46, s[56:57]")
        I("s_waitcnt lgkmcnt(0)")
        I("v_mul_f32 v20, v4, v12")
        I("v_mul_f32 v22, v4, v13")
        I("v_perm_b32 v21, v45, v44, s58")
        I("v_perm_b32 v23, v45, v44, s59")
        for w in range(1, 4):
            I(f"v_fmac_f32 v20, v{4+2*w}, v{12+2*w}")
            I(f"v_fmac_f32 v22, v{4+2*w}, v{13+2*w}")
    else:
        I("s_waitcnt lgkmcnt(0)")
        I("v_mul_f32 v20, v4, v12")
        I("v_mul_f32 v22, v4, v13")
        for w in range(1, 4):
            I(f"v_fmac_f32 v20, v{4+2*w}, v{12+2*w}")
            I(f"v_fmac_f32 v22, v{4+2*w}, v{13+2*w}")
            I(f"v_fmac_f32 v46, v{4+2*w}, v{5+2*w}")
    if drys:
        I("s_cbranch_execz L_hinit", flush=False)
    if (loc >= 2 or xo) and lord == 0:
        I("buffer_store_dwordx4 v[20:23], v63, s[12:15], s28 offen")
    I("buffer_store_dwordx4 v[20:23], v63, s[12:15], s27 offen sc1")
    if (loc >= 2 or xo) and lord == 1:
        I("buffer_store_dwordx4 v[20:23], v63, s[12:15], s28 offen")
    if not eml:
        I("s_mov_b64 exec, 1")
        I("buffer_store_dwordx4 v[44:47], off, s[12:15], s28 sc1")
    stamp(5)
    stamps_out("s3")
    diag_spin('S')
    a.label("L_exit", flush=False)
    I("s_endpgm")

    def red_b(v, t, op="v_add_f32"):
        I(f"{op}_dpp v{v}, v{v}, v{v} quad_perm:[1,0,3,2] {DPPF}")
        I(f"{op}_dpp v{v}, v{v}, v{v} quad_perm:[2,3,0,1] {DPPF}")
        I(f"{op}_dpp v{v}, v{v}, v{v} row_half_mirror {DPPF}")
        I(f"v_mov_b32 v{t}, v{v}")
        I(f"v_permlane16_swap_b32 v{v}, v{t}")
        I(f"{op} v{v}, v{v}, v{t}")
        I(f"v_mov_b32 v{t}, v{v}")
        I(f"v_permlane32_swap_b32 v{v}, v{t}")
        I(f"{op} v{v}, v{v}, v{t}")

    def unpack(src, f, n=8):
        for i in range(n):
            I(f"v_lshlrev_b32 v{f+2*i}, 16, v{src+i}")
            I(f"v_and_b32 v{f+2*i+1}, 0xffff0000, v{src+i}")

    def ln_stats(src, f, t):
        unpack(src, f)
        I(f"v_pk_add_f32 v[{t}:{t+1}], v[{f}:{f+1}], v[{f+2}:{f+3}]")
        I(f"v_pk_add_f32 v[{t+2}:{t+3}], v[{f+4}:{f+5}], v[{f+6}:{f+7}]")
        I(f"v_pk_add_f32 v[{t}:{t+1}], v[{t}:{t+1}], v[{f+8}:{f+9}]")
        I(f"v_pk_add_f32 v[{t+2}:{t+3}], v[{t+2}:{t+3}], v[{f+10}:{f+11}]")
        I(f"v_pk_add_f32 v[{t}:{t+1}], v[{t}:{t+1}], v[{f+12}:{f+13}]")
        I(f"v_pk_add_f32 v[{t+2}:{t+3}], v[{t+2}:{t+3}], v[{f+14}:{f+15}]")
        I(f"v_pk_add_f32 v[{t}:{t+1}], v[{t}:{t+1}], v[{t+2}:{t+3}]")
        I(f"v_add_f32 v{t}, v{t}, v{t+1}")
        red_b(t, t + 1)
        I(f"v_mul_f32 v{t}, {f32(1/512)}, v{t}")
        for i in range(8):
            I(f"v_pk_add_f32 v[{f+2*i}:{f+2*i+1}], v[{f+2*i}:{f+2*i+1}], v[{t}:{t+1}] op_sel_hi:[1,0] neg_lo:[0,1] neg_hi:[0,1]")
        I(f"v_pk_mul_f32 v[{t+2}:{t+3}], v[{f}:{f+1}], v[{f}:{f+1}]")
        I(f"v_pk_mul_f32 v[{t+4}:{t+5}], v[{f+2}:{f+3}], v[{f+2}:{f+3}]")
        for i in range(2, 8):
            d = t + 2 + 2 * (i & 1)
            I(f"v_pk_fma_f32 v[{d}:{d+1}], v[{f+2*i}:{f+2*i+1}], v[{f+2*i}:{f+2*i+1}], v[{d}:{d+1}]")
        I(f"v_pk_add_f32 v[{t+2}:{t+3}], v[{t+2}:{t+3}], v[{t+4}:{t+5}]")
        I(f"v_add_f32 v{t+2}, v{t+2}, v{t+3}")
        red_b(t + 2, t + 3)
        I(f"v_mul_f32 v{t+2}, {f32(1/512)}, v{t+2}")
        I(f"v_cvt_pk_bf16_f32 v{t+1}, v{t}, v{t+2}")
        I(f"v_lshlrev_b32 v{t}, 16, v{t+1}")
        I(f"v_and_b32 v{t+2}, 0xffff0000, v{t+1}")
        I(f"v_add_f32 v{t+2}, {f32(1e-5)}, v{t+2}")
        I(f"v_cvt_pk_bf16_f32 v{t+2}, v{t+2}, v{t+2}")
        I(f"v_and_b32 v{t+2}, 0xffff0000, v{t+2}")
        I(f"v_sqrt_f32 v{t+2}, v{t+2}")
        I(f"v_cvt_pk_bf16_f32 v{t+2}, v{t+2}, v{t+2}")
        I(f"v_and_b32 v{t+2}, 0xffff0000, v{t+2}")
        I(f"v_rcp_f32 v{t+2}, v{t+2}")

    def ln_apply(src, f, t, n=8, dup=None):
        unpack(src, f, n)
        for i in range(n):
            I(f"v_pk_add_f32 v[{f+2*i}:{f+2*i+1}], v[{f+2*i}:{f+2*i+1}], v[{t}:{t+1}] op_sel_hi:[1,0] neg_lo:[0,1] neg_hi:[0,1]")
        for i in range(n):
            I(f"v_cvt_pk_bf16_f32 v{src+i}, v{f+2*i}, v{f+2*i+1}")
        unpack(src, f, n)
        for i in range(n):
            I(f"v_pk_mul_f32 v[{f+2*i}:{f+2*i+1}], v[{f+2*i}:{f+2*i+1}], v[{t+2}:{t+3}] op_sel_hi:[1,0]")
        if dup is None:
            for i in range(n):
                I(f"v_cvt_pk_bf16_f32 v{src+i}, v{f+2*i}, v{f+2*i+1}")
        else:
            for i in range(2 * n):
                I(f"v_cvt_pk_bf16_f32 v{dup+i}, v{f+i}, v{f+i}")

    a.raw(".p2align 6")
    a.label("L_h0b")
    stamp(9)
    masks()
    I("v_lshrrev_b32 v13, 5, v0")
    I("v_lshlrev_b32 v13, 13, v13")
    I("v_and_b32 v14, 31, v0")
    I("v_lshl_or_b32 v13, v14, 4, v13")
    I("s_lshl_b32 s29, s25, 14")
    I("s_lshl_b32 s30, s24, 10")
    I("s_add_u32 s29, s29, s30")
    I(f"s_add_u32 s29, s29, {QP}")
    I("s_waitcnt lgkmcnt(0)")
    tagcalc(31)
    I("v_mov_b32 v57, s31")
    I("v_mov_b32 v59, s31")
    I("v_mov_b32 v61, s31")
    I("v_mov_b32 v63, s31")
    a.c("q producer")
    a.vm_reset(vm_h0)
    a.vm_wait("x")
    stamp(10)
    ln_stats(32, 128, 48)
    a.vm_wait("xa")
    ln_apply(40, 128, 48, dup=144)
    for t in range(16):
        for r in range(4):
            I(f"v_and_b32 v{160+4*t+r}, v{144+t}, v{4+r}")
    stamp(11)
    for t in range(16):
        ab = 160 + 4 * t
        a.vm_wait(f"wq{t}")
        if t == 0:
            stamp(12)
        I(f"v_mfma_f32_16x16x32_bf16 v[48:51], v[{ab}:{ab+3}], v[{64+4*t}:{67+4*t}], {'0' if t == 0 else 'v[48:51]'}")
    I("v_mov_b32 v56, v48")
    I("v_mov_b32 v58, v49")
    I("v_mov_b32 v60, v50")
    I("v_mov_b32 v62, v51")
    if xq:
        I(f"s_add_u32 s30, s29, {QPA - QP}")
        I("buffer_store_dwordx4 v[56:59], v13, s[12:15], s30 offen")
        I("buffer_store_dwordx4 v[60:63], v13, s[12:15], s30 offen offset:512")
    I("buffer_store_dwordx4 v[56:59], v13, s[12:15], s29 offen sc1")
    I("buffer_store_dwordx4 v[60:63], v13, s[12:15], s29 offen offset:512 sc1")
    I("v_mov_b32 v8, 1")
    I(f"v_mov_b32 v9, {L_FL}")
    I("ds_write_b32 v9, v8")
    stamp(1)

    a.label("L_hinit")
    I("s_mov_b64 exec, -1")
    I("s_setprio 3")
    I("s_sub_u32 s3, s3, 4")
    I("s_waitcnt lgkmcnt(0)")
    I("s_load_dword s21, s[12:13], 0")
    I(f"s_mov_b32 s22, {budget}")
    lanebits()
    I("v_lshlrev_b32 v12, 4, v0")
    I("s_and_b32 s24, s2, 7")
    I("s_lshr_b32 s25, s2, 3")
    I("s_lshr_b32 s23, s2, 5")
    if loc:
        assert eml and cmap == 0 and not wol
        I("s_lshl_b32 s28, s24, 3")
        I("s_add_u32 s23, s23, s28")
        I("s_and_b32 s28, s23, 31")
        I("s_lshl_b32 s28, s28, 2")
        I("s_add_u32 s28, s28, s3")
        I("s_lshl_b32 s29, s28, 15")
    else:
        if xl and xw:
            I("s_lshl_b32 s28, s24, 3")
            I("s_add_u32 s23, s23, s28")
        else:
            I("s_lshl_b32 s23, s23, 3")
            I("s_add_u32 s23, s23, s24")
        I("s_lshl_b32 s28, s23, 2")
        I("s_add_u32 s28, s28, s3")
        I("s_lshl_b32 s29, s28, 14")
    I("s_and_b32 s30, s25, 3")
    I("s_lshl_b32 s31, s30, 8")
    I("s_add_u32 s29, s29, s31")
    I("s_add_u32 s16, s40, s29")
    I("s_addc_u32 s17, s41, 0")
    I(f"s_mov_b32 s18, {(31 if loc else 15)*1024+256}")
    I("s_mov_b32 s19, 0x00020000")
    I("v_and_b32 v15, 1, v2")
    I("v_lshlrev_b32 v15, 13, v15")
    I("v_lshrrev_b32 v14, 1, v2")
    I("v_lshl_or_b32 v15, v14, 10, v15")
    I("v_lshl_or_b32 v15, v3, 4, v15")
    I("s_movk_i32 s26, 0x1000")
    if wol:
        I("s_mov_b64 s[96:97], s[16:17]")
        I("s_mov_b64 s[98:99], s[18:19]")
        I("v_mov_b32 v11, v15")
    for t in range(0 if (nowo or wol) else 4):
        I(f"buffer_load_dwordx4 v[{16+4*t}:{19+4*t}], v15, s[16:19], {'s26' if t >= 2 else '0'} offen offset:{2048*(t&1)} nt")
    if loc:
        I("s_movk_i32 s26, 0x4000")
        I("s_movk_i32 s27, 0x5000")
        for t in range(4):
            I(f"buffer_load_dwordx4 v[{192+4*t}:{195+4*t}], v15, s[16:19], {'s27' if t >= 2 else 's26'} offen offset:{2048*(t&1)} nt")
    I("s_mov_b32 s4, s32")
    I("s_mov_b32 s5, s33")
    I("s_mov_b32 s6, 2048")
    I("s_mov_b32 s54, 2048")
    I("s_mov_b32 s55, 0x00020000")
    I("v_mov_b32 v61, 0")
    I("s_cmp_eq_u32 s3, 0")
    I("s_cbranch_scc1 L_igate")
    I("s_cmp_eq_u32 s3, 3")
    I("s_cbranch_scc1 L_qw")
    I(f"s_cmp_ge_u32 s2, {0 if mlv < 1 else 224}")
    I("s_cbranch_scc1 L_qw")
    I("s_cmp_eq_u32 s3, 1")
    I(f"s_cbranch_scc1 {'L_qw' if m1e else 'L_imlp1'}")
    I("s_lshr_b32 s26, s24, 2")
    I("s_lshl_b32 s27, s25, 1")
    I("s_add_u32 s27, s27, s26")
    I("s_lshl_b32 s29, s27, 15")
    I("s_and_b32 s26, s24, 3")
    I("s_lshl_b32 s26, s26, 8")
    I("s_add_u32 s29, s29, s26")
    I("s_add_u32 s8, s48, s29")
    I("s_addc_u32 s9, s49, 0")
    I(f"s_mov_b32 s10, {31*1024+256}")
    I("v_lshlrev_b32 v14, 4, v3")
    I("v_lshl_or_b32 v14, v2, 13, v14")
    I("s_movk_i32 s29, 0x1000")
    for t in range(8):
        I(f"buffer_load_dwordx4 v[{64+4*t}:{67+4*t}], v14, s[8:11], {'s29' if t >= 4 else '0'} offen offset:{1024*(t&3)} nt")
    I("s_lshl_b32 s29, s25, 7")
    I("s_add_u32 s16, s46, s29")
    I("s_addc_u32 s17, s47, 0")
    I("s_mov_b32 s18, 128")
    I("v_and_b32 v47, 7, v0")
    I("v_lshlrev_b32 v47, 4, v47")
    I("v_lshl_or_b32 v47, v1, 3, v47")
    I("v_lshrrev_b32 v14, 5, v0")
    I("v_lshl_or_b32 v47, v14, 2, v47")
    I("buffer_load_dword v62, v47, s[16:19], 0 offen")
    I("s_branch L_qw")
    a.label("L_imlp1")
    I("v_and_b32 v13, 7, v0")
    I("v_lshl_or_b32 v14, v2, 3, v13")
    I("v_lshlrev_b32 v14, 5, v14")
    I("v_lshl_or_b32 v14, v1, 10, v14")
    I("buffer_load_dwordx4 v[32:35], v14, s[4:7], 0 offen")
    I("buffer_load_dwordx4 v[36:39], v14, s[4:7], 0 offen offset:16")
    I("v_bfe_u32 v14, v0, 2, 1")
    I("v_lshl_or_b32 v14, v2, 1, v14")
    I("v_lshlrev_b32 v14, 4, v14")
    I("v_lshl_or_b32 v14, v1, 10, v14")
    I("s_lshl_b32 s26, s24, 7")
    I("buffer_load_dwordx4 v[40:43], v14, s[4:7], s26 offen")
    I(f"s_mul_i32 s26, s24, {64*3584}")
    I("s_lshl_b32 s27, s25, 7")
    I("s_add_u32 s26, s26, s27")
    I("s_add_u32 s8, s44, s26")
    I("s_addc_u32 s9, s45, 0")
    I(f"s_mov_b32 s10, {63*3584+128}")
    I("v_lshl_or_b32 v14, v2, 1, v1")
    I(f"v_mul_u32_u24 v14, {8*3584}, v14")
    I("v_lshl_add_u32 v14, v13, 4, v14")
    I("s_mov_b32 s26, 0")
    for i in range(8):
        I(f"buffer_load_dwordx4 v[{64+4*i}:{67+4*i}], v14, s[8:11], s26 offen offset:{3584*(i & 1)} nt")
        if i & 1 and i < 7:
            I("s_add_u32 s26, s26, 7168")
    I("s_branch L_qw")
    a.label("L_igate")
    I("s_bfe_u32 s26, s2, 0x20001")
    I("s_lshl_b32 s26, s26, 7")
    I("s_and_b32 s27, s25, 7")
    I("s_lshl_b32 s27, s27, 4")
    I("s_add_u32 s26, s26, s27")
    I("s_bfe_u32 s27, s25, 0x10003")
    I("s_lshl_b32 s27, s27, 2")
    I("s_add_u32 s26, s26, s27")
    I("s_lshr_b32 s27, s25, 4")
    I("s_lshl_b32 s27, s27, 1")
    I("s_add_u32 s26, s26, s27")
    I("v_lshrrev_b32 v60, 5, v0")
    I("v_and_b32 v61, 1, v0")
    I("v_lshl_or_b32 v60, v61, 3, v60")
    I("v_add_u32 v60, s26, v60")
    I("v_lshlrev_b32 v60, 1, v60")
    I("s_and_b32 s27, s2, 1")
    I("s_lshl_b32 s27, s27, 10")
    I("v_add_u32 v61, s27, v60")
    I("s_mov_b32 s8, s50")
    I("s_mov_b32 s9, s51")
    I("s_mov_b32 s10, 1024")
    I("buffer_load_ushort v62, v61, s[4:7], 0 offen")
    I("buffer_load_ushort v63, v60, s[8:11], 0 offen")
    if otl:
        I("buffer_load_ushort v11, v61, s[52:55], 0 offen")

    a.label("L_qw")
    I("s_lshr_b32 s26, s20, 4")
    I("s_and_b32 s27, s26, 7")
    I("s_lshl_b32 s27, s27, 2")
    I("s_add_u32 s27, s27, s3")
    I("s_lshl_b32 s27, s27, 14")
    I("s_lshr_b32 s26, s26, 3")
    I("s_lshl_b32 s26, s26, 13")
    I("s_add_u32 s26, s26, s27")
    I(f"s_add_u32 s26, s26, {QP}")
    I("s_add_u32 s27, s26, 4096")
    if xq:
        I("s_mov_b32 s97, s26")
        I(f"s_add_u32 s96, s26, {QPA - QP}")
    I("v_lshlrev_b32 v13, 4, v3")
    I("v_bfe_u32 v14, v0, 4, 1")
    I("v_lshl_or_b32 v13, v14, 3, v13")
    I("v_lshrrev_b32 v14, 5, v0")
    I("v_lshl_or_b32 v13, v14, 2, v13")
    I("s_lshl_b32 s29, s3, 8")
    I("v_add_u32 v13, s29, v13")
    masks()
    I("s_waitcnt lgkmcnt(0)")
    tagcalc()
    stamp(13)
    I("s_cmp_eq_u32 s3, 0")
    I("s_cbranch_scc1 L_qpoll")
    I(f"v_mov_b32 v14, {L_FL}")
    a.label("L_fw")
    I("ds_read_b32 v15, v14")
    I("s_waitcnt lgkmcnt(0)")
    I("v_readfirstlane_b32 s29, v15")
    I("s_cmp_lg_u32 s29, 0")
    I("s_cbranch_scc1 L_fok")
    I("s_sleep 2")
    I("s_sub_u32 s22, s22, 1")
    I("s_cbranch_scc0 L_fw")
    I("s_mov_b32 s22, 0")
    a.label("L_fok")
    if qd:
        I(f"s_sleep {qd}")
    a.label("L_qpoll")

    pollid = [0]

    def poll(loads, tags, sleep=0, live="-1", lives=None, depth=1, gap=0, st=None, pre=()):
        k = pollid[0]; pollid[0] += 1
        M = [f"s[{32+2*i}:{33+2*i}]" for i in range(len(loads))]
        for i_, m in enumerate(M):
            I(f"s_mov_b64 {m}, {lives[i_] if lives else live}")
        for _ in range(depth - 1):
            for l, m in zip(loads, M):
                I(f"s_mov_b64 exec, {m}")
                I(l)
            I(f"s_sleep {gap}")
        a.label(f"L_poll{k}")
        if st is not None and prof:
            I(f"s_mov_b64 s[{64+2*st+2}:{64+2*st+3}], s[{64+2*st}:{64+2*st+1}]")
            stamp(st)
        for x_ in pre:
            I(x_)
        for l, m in zip(loads, M):
            I(f"s_mov_b64 exec, {m}")
            I(l)
        I("s_mov_b32 s58, 0")
        I(f"s_waitcnt vmcnt({len(loads) * (depth - 1)})" + (" lgkmcnt(0)" if prof else ""))
        for tg, m in zip(tags, M):
            t1, t2 = tg[0], tg[1]
            I(f"s_mov_b64 exec, {m}")
            if len(tg) == 3:
                I(f"v_perm_b32 v{tg[2]}, v{t1}, v{t2}, s48")
                I(f"v_cmpx_eq_u32 vcc, s21, v{tg[2]}")
            else:
                I(f"v_cmpx_eq_u32 vcc, s21, v{t1}")
                I(f"v_cmpx_eq_u32 vcc, s21, v{t2}")
            I(f"s_andn2_b64 {m}, {m}, exec")
            I("s_addc_u32 s58, s58, 0")
        I(f"s_mov_b64 exec, {live}")
        I("s_cmp_eq_u32 s58, 0")
        I(f"s_cbranch_scc1 L_pok{k}", flush=False)
        p0 = a.pos
        h0 = list(a.hist)
        if sleep:
            I(f"s_sleep {sleep}")
        I("s_sub_u32 s22, s22, 1")
        I(f"s_cbranch_scc0 L_poll{k}", flush=False)
        I("s_mov_b32 s22, 0")
        a.label(f"L_pok{k}", flush=False)
        a.pos = p0
        a.hist = h0
        a.vm_reset()

    def tp(base, n):
        return [(base + 4 * i + 1, base + 4 * i + 3) for i in range(n)]

    def sum8(base):
        for k in (0, 2, 4, 6):
            I(f"v_add_f32 v{base+4*k}, v{base+4*k}, v{base+4+4*k}")
            I(f"v_add_f32 v{base+2+4*k}, v{base+2+4*k}, v{base+6+4*k}")
        for k in (0, 4):
            I(f"v_add_f32 v{base+4*k}, v{base+4*k}, v{base+8+4*k}")
            I(f"v_add_f32 v{base+2+4*k}, v{base+2+4*k}, v{base+10+4*k}")
        I(f"v_add_f32 v{base}, v{base}, v{base+16}")
        I(f"v_add_f32 v{base+2}, v{base+2}, v{base+18}")

    a.c("q consumer")
    stamp(15)
    if not noq:
        poll([f"buffer_load_dwordx4 v[{128+4*k}:{131+4*k}], v12, s[12:15], s{26+(k>>2)} offen offset:{1024*(k&3)} sc1" for k in range(8)],
             tp(128, 8), sleep=slpq,
             pre=([f"s_and_b32 s98, s22, {qper}", "s_cselect_b32 s26, s96, s97", "s_add_u32 s27, s26, 4096"] if xq else []))
    sum8(128)
    I("v_cvt_pk_bf16_f32 v128, v128, v130")
    I(f"ds_write_b32 v13, v128 offset:{L_Q}")
    if fb1:
        I(f"v_mov_b32 v14, {L_FL}")
        I("v_mov_b32 v15, 1")
        I("s_mov_b64 exec, 1")
        I("s_waitcnt lgkmcnt(0)")
        I("ds_add_u32 v14, v15 offset:4")
        I("s_mov_b64 exec, -1")
        stamp(2)
    else:
        I("s_waitcnt lgkmcnt(0)")
        stamp(2)
        I("s_barrier")
    I("v_lshrrev_b32 v46, 1, v0")
    I(f"v_mul_u32_u24 v46, {SO2}, v46")
    I("v_and_b32 v14, 1, v0")
    I("v_lshl_add_u32 v46, v14, 4, v46")
    I("s_bfe_u32 s26, s2, 0x20001")
    I(f"s_mul_i32 s31, s26, {64*SO2}")
    I("s_lshr_b32 s27, s25, 4")
    I("s_lshl_b32 s27, s27, 10")
    I("s_add_u32 s31, s31, s27")
    I("s_and_b32 s27, s2, 1")
    I("s_lshl_b32 s27, s27, 9")
    I("s_add_u32 s31, s31, s27")
    I("s_and_b32 s27, s25, 15")
    I("s_lshl_b32 s27, s27, 5")
    I("s_add_u32 s31, s31, s27")
    I("s_mov_b32 s62, 3")
    I("s_mov_b32 s63, 3")
    I(f"s_cmp_eq_u32 s3, {3 if dryt else 99}")
    I("s_cselect_b64 s[60:61], 0, -1")
    if hprio != 3:
        I(f"s_setprio {hprio}")
    I(f"s_cmp_eq_u32 s3, {99 if (mlv < 4 or gdef) else 0}")
    I("s_cbranch_scc1 L_gate")
    I("s_cmp_eq_u32 s3, 0")
    I("s_cbranch_scc1 L_tail")
    I("s_cmp_eq_u32 s3, 3")
    I("s_cbranch_scc1 L_tail")
    I(f"s_cmp_ge_u32 s2, {0 if mlv < 2 else 224}")
    I("s_cbranch_scc1 L_tail")
    I("s_cmp_eq_u32 s3, 1")
    I(f"s_cbranch_scc1 {'L_tail' if m1e else 'L_mlp1'}")
    if mlv >= 3:
        I("s_branch L_mlp2")
    else:
        I("s_branch L_tail")

    def rbf(v):
        I(f"v_cvt_pk_bf16_f32 v{v}, v{v}, v{v}")
        I(f"v_and_b32 v{v}, 0xffff0000, v{v}")

    def reduce2(x0, x1):
        I(f"v_permlane32_swap_b32 v{x0}, v{x1}")
        I(f"v_add_f32 v{x0}, v{x0}, v{x1}")
        I(f"v_mov_b32 v{x1}, v{x0}")
        I(f"v_permlane16_swap_b32 v{x0}, v{x1}")
        I(f"v_add_f32 v{x0}, v{x0}, v{x1}")
        I(f"v_add_f32_dpp v{x0}, v{x0}, v{x0} row_ror:8 {DPPF}")
        I(f"v_add_f32_dpp v{x0}, v{x0}, v{x0} row_ror:4 {DPPF}")
        I(f"v_add_f32_dpp v{x0}, v{x0}, v{x0} quad_perm:[2,3,0,1] {DPPF}")

    def gate_calc():
        I("v_cndmask_b32 v136, 0, v132, s[56:57]")
        I("v_cndmask_b32 v138, 0, v134, s[56:57]")
        I("v_add_f32 v136, v128, v136")
        I("v_add_f32 v138, v130, v138")
        reduce2(136, 138)
        rbf(136)
        I("v_lshlrev_b32 v63, 16, v63")
        I("v_lshlrev_b32 v62, 16, v62")
        I("v_add_f32 v136, v136, v63")
        rbf(136)
        I(f"v_mul_f32 v63, {f32(-LOG2E)}, v136")
        I("v_exp_f32 v63, v63")
        I("v_add_f32 v63, 1.0, v63")
        I("v_rcp_f32 v63, v63")
        I("v_mul_f32 v63, v63, v136")
        rbf(63)

    a.raw(".p2align 6")
    a.label("L_tail")
    if hprio != 3:
        I("s_setprio 3")
    I(f"v_mul_u32_u24 v13, {128 if loc else 512*SO1}, v1")
    I(f"v_mul_u32_u24 v14, {4*SO1}, v2")
    I("v_add_u32 v13, v13, v14")
    I("v_and_b32 v14, 7, v0")
    I("v_lshl_add_u32 v13, v14, 4, v13")
    I("v_and_b32 v14, 3, v0")
    I("v_lshlrev_b32 v14, 4, v14")
    I("v_lshl_or_b32 v14, v2, 6, v14")
    I("v_lshl_or_b32 v14, v1, 13, v14")
    I("s_lshr_b32 s27, s28, 3")
    if loc:
        I(f"s_mul_i32 s26, s23, {16*SO1}")
        I("s_lshl_b32 s29, s3, 8")
    else:
        I(f"s_mul_i32 s26, s27, {16*SO1}")
        I("s_and_b32 s29, s28, 7")
        I("s_lshl_b32 s29, s29, 7")
    I("s_add_u32 s26, s26, s29")
    I(f"s_add_u32 s26, s26, {O1}")
    if loc or xo:
        I("s_mov_b32 s97, s26")
        I(f"s_add_u32 s96, s26, {O1A - O1}")
    if loc:
        I("s_mov_b32 s100, 0")
        I("s_mov_b32 s101, -1")
    I("s_lshl_b32 s27, s27, 8")
    I(f"s_add_u32 s27, s27, {ML}")
    I("s_lshl_b32 s29, s3, 10")
    I(f"s_add_u32 s29, s29, {L_RL - 1024}")
    I("v_add_u32 v15, s29, v12")
    I("s_lshl_b32 s29, s30, 6")
    I("s_add_u32 s29, s29, s23")
    I(f"s_mul_i32 s29, s29, {SO2}")
    I(f"s_add_u32 s29, s29, {O2}")
    I(f"s_add_u32 s24, s31, {O2}")
    if loc:
        I("s_and_b32 s25, s2, 1")
        I(f"s_mul_i32 s25, s25, {32*SO2 - 512}")
        I("s_add_u32 s24, s24, s25")
        I("s_add_u32 s25, s24, 512")
    else:
        I(f"s_add_u32 s25, s31, {O2 + 32*SO2}")
    I("v_mov_b32 v53, s21")
    I("v_mov_b32 v55, s21")
    I("v_mov_b32 v57, s21")
    I("v_mov_b32 v59, s21")
    if gdef:
        I(f"s_add_u32 s31, s31, {OM}")
        I("v_cmp_gt_u32 s[56:57], 48, v0")
        I(f"v_add_u32 v47, {32*SO2}, v46")
        I("v_cndmask_b32 v47, v46, v47, s[56:57]")
        I("s_cmp_eq_u32 s3, 0")
        I("s_cselect_b64 s[50:51], -1, 0")
    if eml:
        I("s_mov_b32 s48, 0x07060302")
        I("s_mov_b32 s49, 0x05040100")
    a.label("L_tail2")
    I("s_mov_b64 exec, s[60:61]")
    I("s_waitcnt vmcnt(0)")
    if wol:
        I("s_movk_i32 s100, 0x1000")
    barrier()
    stamp(4)
    if wol:
        for t in range(4):
            I(f"buffer_load_dwordx4 v[{16+4*t}:{19+4*t}], v11, s[96:99], {'s100' if t >= 2 else '0'} offen offset:{2048*(t&1)} {'nt' if wol == 1 else ''}")
    lds_ = [] if eml else [f"buffer_load_dwordx4 v[80:83], v14, s[12:15], s27 offen sc1"]
    for i in range(4):
        lds_.append(f"buffer_load_dwordx4 v[{64+4*i}:{67+4*i}], v13, s[12:15], s26 offen offset:{SO1*i} sc1")
    tg1 = [(65 + 4 * i, 67 + 4 * i, 92 + i) for i in range(4)] if eml else tp(80, 1) + tp(64, 4)
    assert gdef
    lds_ += [f"buffer_load_dwordx4 v[{128+4*e}:{131+4*e}], v{46+e}, s[12:15], s31 offen sc1" for e in range(2)]
    poll(lds_, tg1 + tp(128, 2), sleep=slp1, live="s[60:61]", lives=["s[60:61]"] * len(tg1) + ["s[50:51]"] * 2, depth=pd1, gap=pg1, st=8,
         pre=([f"s_and_b32 s98, s22, {lper}", "s_cselect_b32 s26, s96, s97"] if (loc >= 2 or xo) else []))
    stamp(5)
    if eml:
        for i in range(4):
            I(f"v_perm_b32 v{80+i}, v{65+4*i}, v{67+4*i}, s49")
        I("v_max3_f32 v84, v80, v81, v82")
        I("v_max_f32 v84, v84, v83")
    else:
        I(f"v_max_f32_dpp v84, v80, v80 quad_perm:[1,0,3,2] {DPPF}")
        I(f"v_max_f32_dpp v84, v84, v84 quad_perm:[2,3,0,1] {DPPF}")
    I("v_mov_b32 v85, v84")
    I("v_permlane16_swap_b32 v84, v85")
    I("v_max_f32 v84, v84, v85")
    I("v_mov_b32 v85, v84")
    I("v_permlane32_swap_b32 v84, v85")
    I("v_max_f32 v84, v84, v85")
    if eml:
        for i in range(4):
            I(f"v_sub_f32 v{92+i}, v{80+i}, v84")
        for i in range(4):
            I(f"v_exp_f32 v{92+i}, v{92+i}")
        for i in range(4):
            op = "v_mul_f32_dpp" if i == 0 else "v_fmac_f32_dpp"
            I(f"{op} v87, v{92+i}, v{80+i} quad_perm:[0,0,2,2] {DPPF}")
            I(f"{op} v88, v{92+i}, v{64+4*i} quad_perm:[0,0,2,2] {DPPF}")
            I(f"{op} v90, v{92+i}, v{66+4*i} quad_perm:[0,0,2,2] {DPPF}")
        I("v_mov_b32 v91, v87")
    else:
        I("v_sub_f32 v86, v80, v84")
        I("v_exp_f32 v86, v86")
        I("v_mul_f32 v87, v86, v82")
        I(f"v_mul_f32_dpp v88, v86, v64 quad_perm:[0,0,0,0] {DPPF}")
        I(f"v_mul_f32_dpp v90, v86, v66 quad_perm:[0,0,0,0] {DPPF}")
        I(f"v_add_f32_dpp v87, v87, v87 quad_perm:[1,0,3,2] {DPPF}")
        for i in range(1, 4):
            I(f"v_fmac_f32_dpp v88, v86, v{64+4*i} quad_perm:[{i},{i},{i},{i}] {DPPF}")
            I(f"v_fmac_f32_dpp v90, v86, v{66+4*i} quad_perm:[{i},{i},{i},{i}] {DPPF}")
            if i == 1:
                I(f"v_add_f32_dpp v87, v87, v87 quad_perm:[2,3,0,1] {DPPF}")
            if i == 2:
                I("v_mov_b32 v91, v87")
    I("v_permlane32_swap_b32 v87, v91")
    I("v_permlane32_swap_b32 v88, v90")
    I("v_add_f32 v87, v87, v91")
    I("v_add_f32 v88, v88, v90")
    I("v_permlane16_swap_b32 v88, v87")
    I("v_add_f32 v88, v88, v87")
    I("v_mov_b32 v87, v88")
    I("v_permlane16_swap_b32 v88, v87")
    I(f"v_rcp_f32_dpp v87, v87 quad_perm:[1,1,3,3] {DPPF}" if eml else "v_rcp_f32 v87, v87")
    I("v_mul_f32 v88, v88, v87")
    I("v_cvt_pk_bf16_f32 v88, v88, v88")
    I("v_mov_b32_dpp v88, v88 row_shr:4 row_mask:0x5 bank_mask:0xa")
    I("v_mov_b32_dpp v88, v88 row_shl:4 row_mask:0xa bank_mask:0x5")
    for t in range(4):
        for r in range(4):
            I(f"v_and_b32_dpp v{96+4*t+r}, v88, v{4+r} quad_perm:[{t},{t},{t},{t}] {DPPF}")
    for t in range(4):
        I(f"v_mfma_f32_16x16x32_bf16 v[48:51], v[{96+4*t}:{99+4*t}], v[{16+4*t}:{19+4*t}], {'0' if t == 0 else 'v[48:51]'}")
        if loc:
            I(f"v_mfma_f32_16x16x32_bf16 v[208:211], v[{96+4*t}:{99+4*t}], v[{192+4*t}:{195+4*t}], {'0' if t == 0 else 'v[208:211]'}")
    if loc:
        for r in range(4):
            I(f"v_cndmask_b32 v{48+r}, v{48+r}, v{208+r}, s[100:101]")
    I("s_cbranch_execz L_fin", flush=False)
    I("s_cmp_eq_u32 s3, 0")
    I("s_cbranch_scc1 L_fin", flush=False)
    I("ds_write_b128 v15, v[48:51]")
    I("s_waitcnt lgkmcnt(0)")
    I("s_barrier")
    if prof:
        I("s_add_u32 s3, s3, 4")
        stamps_out("s3")
    I("s_endpgm")
    a.label("L_fin")
    barrier()
    for w in range(3):
        I(f"ds_read_b128 v[{112+4*w}:{115+4*w}], v12 offset:{L_RL + 1024*w}")
    I("s_waitcnt lgkmcnt(1)")
    for r in range(4):
        I(f"v_add_f32 v{48+r}, v{48+r}, v{112+r}")
    for r in range(4):
        I(f"v_add_f32 v{48+r}, v{48+r}, v{116+r}")
    I("s_waitcnt lgkmcnt(0)")
    for r in range(4):
        I(f"v_add_f32 v{52+2*r}, v{48+r}, v{120+r}")
    I("buffer_store_dwordx4 v[52:55], v12, s[12:15], s29 offen sc1")
    I("buffer_store_dwordx4 v[56:59], v12, s[12:15], s29 offen offset:1024 sc1")
    stamp(6)
    if gdef:
        gate_calc()
    poll([f"buffer_load_dwordx4 v[{140+4*e}:{143+4*e}], v46, s[12:15], s{24+e} offen sc1" for e in range(2)],
         tp(140, 2), sleep=slp2, live="s[60:61]", depth=pd2, gap=pg2, st=10)
    stamp(14)
    I("v_add_f32 v148, v140, v144")
    I("v_add_f32 v150, v142, v146")
    reduce2(148, 150)
    rbf(148)
    I("v_mul_f32 v148, v148, v63")
    rbf(148)
    I("v_add_f32 v148, v148, v62")
    I("v_cvt_pk_bf16_f32 v148, v148, v148")
    I("s_and_b64 exec, exec, s[62:63]")
    I(f"buffer_store_short v148, v61, s[52:55], 0 offen {osc}")
    I("s_cbranch_execz L_dry2", flush=False)
    I("s_cmp_lg_u32 s2, 0")
    I("s_cbranch_scc1 L_end2", flush=False)
    I("s_mov_b64 exec, 1")
    I("buffer_store_dword v53, off, s[12:15], 0 sc1")
    a.label("L_end2")
    stamp(7)
    stamps_out("4")
    diag_spin('H')
    I("s_endpgm")
    a.label("L_dry2")
    I("s_mov_b64 s[60:61], -1")
    stamp(3)
    I("s_branch L_tail2")

    a.raw(".p2align 6")
    a.label("L_gate")
    a.c("gate value for this workgroup's 4 outputs")
    I(f"s_add_u32 s26, s31, {OM}")
    I("v_cmp_gt_u32 s[56:57], 48, v0")
    I(f"v_add_u32 v47, {32*SO2}, v46")
    I("v_cndmask_b32 v47, v46, v47, s[56:57]")
    poll([f"buffer_load_dwordx4 v[{128+4*e}:{131+4*e}], v{46+e}, s[12:15], s26 offen sc1" for e in range(2)],
         tp(128, 2), sleep=slpg)
    gate_calc()
    stamp(3)
    I("s_branch L_tail")

    if m1e:
        a.raw(".p2align 6")
        a.label("L_h1b")
        a.vm_reset(vm_h1)
        I("s_load_dword s31, s[12:13], 0")
        masks()
        I("v_or_b32 v116, v4, v6")
        I("v_or_b32 v117, v5, v7")
        for i in range(9):
            I(f"v_mov_b32 v{120+4*i}, 0")
            I(f"v_mov_b32 v{121+4*i}, 0")
        I("v_lshlrev_b32 v13, 4, v13")
        I("v_lshl_or_b32 v13, v2, 7, v13")
        I("s_lshl_b32 s26, s2, 10")
        I(f"s_add_u32 s26, s26, {HP}")
        I("s_waitcnt lgkmcnt(0)")
        tagcalc(31)
        for r in range(4):
            I(f"v_mov_b32 v{161+2*r}, s31")
        a.vm_wait("x")
        ln_stats(32, 96, 48)
        ln_apply(32, 96, 48)
        ln_stats(32, 96, 54)
        a.vm_wait("xa")
        ln_apply(40, 96, 48, n=4)
        ln_apply(40, 96, 54, n=4, dup=104)
        for i in range(8):
            I(f"v_and_b32 v{122+4*i}, v{104+i}, v116")
            I(f"v_and_b32 v{123+4*i}, v{104+i}, v117")
        for i in range(8):
            cx = '0' if i == 0 else 'v[32:35]'
            cy = '0' if i == 0 else 'v[36:39]'
            a.vm_wait(f"w{i}")
            I(f"v_mfma_f32_16x16x32_bf16 v[32:35], v[{122+4*i}:{125+4*i}], v[{64+4*i}:{67+4*i}], {cx}")
            I(f"v_mfma_f32_16x16x32_bf16 v[36:39], v[{120+4*i}:{123+4*i}], v[{64+4*i}:{67+4*i}], {cy}")
        for r in range(4):
            I(f"v_permlane16_swap_b32 v{32+r}, v{36+r}")
        for r in range(4):
            I(f"v_add_f32_dpp v{160+2*r}, v{36+r}, v{32+r} row_ror:8 {DPPF}")
        I("s_mov_b32 exec_lo, 0x00ff00ff")
        I("s_mov_b32 exec_hi, 0x00ff00ff")
        I("buffer_store_dwordx4 v[160:163], v13, s[12:15], s26 offen sc1")
        I("buffer_store_dwordx4 v[164:167], v13, s[12:15], s26 offen offset:512 sc1")
        stamp(3)
        I("s_branch L_hinit")

    a.raw(".p2align 6")
    a.label("L_mlp1")
    a.c("channel MLP layer 1: 64 hidden columns x 64 rows")
    I("v_and_b32 v13, 7, v0")
    I("v_or_b32 v116, v4, v6")
    I("v_or_b32 v117, v5, v7")
    for i in range(9):
        I(f"v_mov_b32 v{120+4*i}, 0")
        I(f"v_mov_b32 v{121+4*i}, 0")
    I("v_lshlrev_b32 v13, 4, v13")
    I("v_lshl_or_b32 v13, v2, 7, v13")
    I("s_lshl_b32 s26, s2, 10")
    I(f"s_add_u32 s26, s26, {HP}")
    ln_stats(32, 96, 48)
    ln_apply(32, 96, 48)
    ln_stats(32, 96, 54)
    ln_apply(40, 96, 48, n=4)
    ln_apply(40, 96, 54, n=4, dup=104)
    for i in range(8):
        I(f"v_and_b32 v{122+4*i}, v{104+i}, v116")
        I(f"v_and_b32 v{123+4*i}, v{104+i}, v117")
    for i in range(8):
        cx = '0' if i == 0 else 'v[32:35]'
        cy = '0' if i == 0 else 'v[36:39]'
        I(f"v_mfma_f32_16x16x32_bf16 v[32:35], v[{122+4*i}:{125+4*i}], v[{64+4*i}:{67+4*i}], {cx}")
        I(f"v_mfma_f32_16x16x32_bf16 v[36:39], v[{120+4*i}:{123+4*i}], v[{64+4*i}:{67+4*i}], {cy}")
    for r in range(4):
        I(f"v_mov_b32 v{65+2*r}, s21")
    for r in range(4):
        I(f"v_permlane16_swap_b32 v{32+r}, v{36+r}")
    for r in range(4):
        I(f"v_add_f32_dpp v{64+2*r}, v{36+r}, v{32+r} row_ror:8 {DPPF}")
    I("s_mov_b32 exec_lo, 0x00ff00ff")
    I("s_mov_b32 exec_hi, 0x00ff00ff")
    I("buffer_store_dwordx4 v[64:67], v13, s[12:15], s26 offen sc1")
    I("buffer_store_dwordx4 v[68:71], v13, s[12:15], s26 offen offset:512 sc1")
    I("s_mov_b64 exec, -1")
    stamp(3)
    I("s_branch L_tail")

    a.raw(".p2align 6")
    a.label("L_mlp2")
    a.c("channel MLP layer 2: 32 hidden rows x 128 columns")
    I("s_lshr_b32 s26, s24, 2")
    I("s_lshl_b32 s27, s25, 1")
    I("s_add_u32 s27, s27, s26")
    I("s_and_b32 s24, s24, 3")
    I("v_lshlrev_b32 v13, 1, v47")
    I("v_and_b32 v14, 1, v2")
    I("v_lshl_or_b32 v13, v14, 8, v13")
    I("s_lshl_b32 s26, s26, 7")
    I("v_lshlrev_b32 v14, 5, v2")
    I("v_lshl_or_b32 v14, v1, 8, v14")
    I("v_add_u32 v14, s26, v14")
    I("s_lshl_b32 s24, s24, 6")
    I("s_add_u32 s29, s24, s27")
    I(f"s_mul_i32 s29, s29, {SO2}")
    I(f"s_add_u32 s29, s29, {OM}")
    I("s_lshl_b32 s26, s25, 13")
    I(f"s_add_u32 s26, s26, {HP}")
    I("s_add_u32 s27, s26, 4096")
    I("v_lshlrev_b32 v15, 10, v0")
    I("s_movk_i32 s56, 0xff")
    I("s_mov_b32 s57, 0")
    for _ in range(m2sl):
        I("s_sleep 127")
    if m2pl:
        if not m2sl and not m1e:
            poll(["buffer_load_dwordx4 v[128:131], v15, s[12:15], s26 offen offset:1008 sc1"], tp(128, 1), sleep=slpm, live="s[56:57]")
        I("s_mov_b64 exec, -1")
        poll([f"buffer_load_dwordx4 v[{128+4*k}:{131+4*k}], v12, s[12:15], s{26+(k>>2)} offen offset:{1024*(k&3)} sc1" for k in range(8)],
             tp(128, 8), sleep=slpm)
    sum8(128)
    I("v_cvt_pk_bf16_f32 v32, v128, v130")
    unpack(32, 36, 1)
    unpack(62, 40, 1)
    for r in range(2):
        I(f"v_add_f32 v{36+r}, v{36+r}, v{40+r}")
    I("v_cvt_pk_bf16_f32 v32, v36, v37")
    unpack(32, 36, 1)
    kk = -2.0 * math.sqrt(2.0 / math.pi) * LOG2E
    I(f"s_mov_b32 s26, {f32(kk * 0.044715)}")
    I(f"v_mov_b32 v44, {f32(kk)}")
    for r in range(2):
        I(f"v_mul_f32 v{40+r}, v{36+r}, v{36+r}")
    for r in range(2):
        I(f"v_fma_f32 v{40+r}, v{40+r}, s26, v44")
    for r in range(2):
        I(f"v_mul_f32 v{40+r}, v{40+r}, v{36+r}")
    for r in range(2):
        I(f"v_exp_f32 v{40+r}, v{40+r}")
    for r in range(2):
        I(f"v_add_f32 v{40+r}, 1.0, v{40+r}")
    for r in range(2):
        I(f"v_rcp_f32 v{40+r}, v{40+r}")
    for r in range(2):
        I(f"v_mul_f32 v{40+r}, v{40+r}, v{36+r}")
    I("v_cvt_pk_bf16_f32 v32, v40, v40")
    I("v_cvt_pk_bf16_f32 v33, v41, v41")
    I(f"ds_write_b64 v13, v[32:33] offset:{L_HL}")
    I("s_waitcnt lgkmcnt(0)")
    I(f"ds_read_b128 v[96:99], v14 offset:{L_HL}")
    I(f"ds_read_b128 v[100:103], v14 offset:{L_HL + 16}")
    for r in range(4):
        I(f"v_mov_b32 v{37+2*r}, s21")
    I("s_waitcnt lgkmcnt(0)")
    for t in range(8):
        for r in range(4):
            I(f"v_and_b32 v{160+4*t+r}, v{96+t}, v{4+r}")
    for t in range(8):
        I(f"v_mfma_f32_16x16x32_bf16 v[32:35], v[{160+4*t}:{163+4*t}], v[{64+4*t}:{67+4*t}], {'0' if t == 0 else 'v[32:35]'}")
    for r in range(4):
        I(f"v_mov_b32 v{36+2*r}, v{32+r}")
    if m2st:
        I("buffer_store_dwordx4 v[36:39], v12, s[12:15], s29 offen sc1")
        I("buffer_store_dwordx4 v[40:43], v12, s[12:15], s29 offen offset:1024 sc1")
    stamp(3)
    I("s_branch L_tail")

    a.raw('.section .rodata,"a"')
    a.raw(".p2align 6")
    a.raw(f".amdhsa_kernel {NAME}")
    a.raw("  .amdhsa_next_free_vgpr 256")
    a.raw("  .amdhsa_next_free_sgpr 102")
    a.raw("  .amdhsa_accum_offset 256")
    a.raw("  .amdhsa_group_segment_fixed_size 0")
    a.raw("  .amdhsa_kernarg_size 104")
    a.raw("  .amdhsa_user_sgpr_count 2")
    a.raw("  .amdhsa_user_sgpr_kernarg_segment_ptr 1")
    a.raw("  .amdhsa_system_sgpr_workgroup_id_x 1")
    a.raw(".end_amdhsa_kernel")
    return a.text()


if __name__ == "__main__":
    out = sys.argv[1]
    kw = eval("dict(" + (sys.argv[2] if len(sys.argv) > 2 else "") + ")")
    open(out, "w").write(gen(**kw))
```
